```python
import torch

def _softmax(x, axis=-1):
    return torch.softmax(x, dim=axis)
def _gelu(x):
    return torch.nn.functional.gelu(x, approximate="tanh")
def _silu(x):
    return torch.nn.functional.silu(x)
def _sigmoid(x):
    return torch.sigmoid(x)
def _layernorm(x, axis=-1, eps=1e-5):
    m = x.mean(dim=axis, keepdim=True)
    v = x.var(dim=axis, keepdim=True, unbiased=False)
    return (x - m) / torch.sqrt(v + eps)
def _scatter_add(tgt, idx, src, axis=0):
    return tgt.clone().index_add_(axis, idx, src)
def _segment_sum(src, seg, n):
    out = torch.zeros((n,) + src.shape[1:], dtype=src.dtype)
    return out.index_add_(0, seg, src)
def _pad(x, pw):
    flat = tuple(v for pair in reversed(pw) for v in pair)
    return torch.nn.functional.pad(x, flat)

kernel_name = 'standalone__deep_cross_fibinet__recsys'

def setup_inputs():

    _w = (lambda a: (lambda t: t.to(torch.bfloat16) if t.is_floating_point() else t)(torch.as_tensor(a)))
    B, F, D = 4096, 26, 64
    V = min(100000, 100000)
    Fr = max(F // 2, 1)
    H = min(F * D, 256)
    return {
        "idx": _w((lambda lo, hi, *s: torch.randint(lo, hi, s))(0, V, B, F).to(torch.int64)),
        "table": _w((lambda *s: torch.randn(*s, dtype=torch.bfloat16) * 1.6)(V, D)),
        "se_w1": _w((lambda *s: torch.randn(*s, dtype=torch.bfloat16) * 1.6)(F, Fr)),
        "se_w2": _w((lambda *s: torch.randn(*s, dtype=torch.bfloat16) * 1.6)(Fr, F)),
        "w_bi": _w((lambda *s: torch.randn(*s, dtype=torch.bfloat16) * 0.05)(D, D) * (D ** -0.5)),
        "w_cross": _w((lambda *s: torch.randn(*s, dtype=torch.bfloat16) * 0.05)(2 * F * F * D) * 0.01),
        "w_deep1": _w((lambda *s: torch.randn(*s, dtype=torch.bfloat16) * 0.8)(F * D, H) * ((F * D) ** -0.5)),
        "w_deep2": _w((lambda *s: torch.randn(*s, dtype=torch.bfloat16) * 0.05)(H) * 0.01),
    }

def reference(idx, table, se_w1, se_w2, w_bi, w_cross, w_deep1, w_deep2):
    emb = table[idx]
    B = emb.shape[0]
    z = emb.mean(axis=-1)
    a = _sigmoid(_gelu(z @ se_w1) @ se_w2)
    v = a[:, :, None] * emb
    eW = torch.einsum('bfd,de->bfe', emb, w_bi)
    vW = torch.einsum('bfd,de->bfe', v, w_bi)
    p = torch.einsum('bie,bje->bije', eW, emb).reshape(B, -1)
    q = torch.einsum('bie,bje->bije', vW, v).reshape(B, -1)
    cross_feat = torch.concatenate([p, q], axis=-1)
    logit_cross = cross_feat @ w_cross
    h = _gelu(emb.reshape(B, -1) @ w_deep1)
    logit_deep = h @ w_deep2
    return logit_cross + logit_deep
```

```python
import sys, re
src = open('standalone__deep_cross_fibinet__recsys.s').read().split('\n')
K = 'standalone__deep_cross_fibinet__recsys_kernel'
def make(out, where):
    L = []
    first = True
    armed = False
    for n, ln in enumerate(src):
        s = ln.strip()
        if s == 's_cbranch_scc1 L_end' and first:
            first = False
            L.append('    s_cbranch_scc1 L_exit'); continue
        if where == 'red' and s == '; wave 0: final sum + cross-WG handoff':
            L.append('    s_memtime s[92:93]')
        if where == 'cross' and s == '; cross stage':
            L.append('    s_memtime s[92:93]'); L.append('    s_waitcnt lgkmcnt(0)')
        L.append(ln)
        if s == K + ':':
            L.append('    s_memrealtime s[96:97]')
            L.append('    s_memtime s[94:95]')
        if where == 'idx' and s == '; wait idx; build gather offsets': armed = 'w'
        elif isinstance(where, int) and s.startswith(f'; ---- p {where} field'): armed = 'b'
        elif armed == 'w' and s.startswith('s_waitcnt vmcnt'):
            L.append('    s_memtime s[92:93]'); L.append('    s_waitcnt lgkmcnt(0)'); armed = False
        elif armed == 'b' and s == 's_barrier':
            L.append('    s_waitcnt lgkmcnt(0)')
            L.append('    s_memtime s[92:93]'); L.append('    s_waitcnt lgkmcnt(0)'); armed = False
        if s == 'L_end:':
            if where == 'end':
                L.append('    s_memtime s[92:93]')
            L += f"""    s_waitcnt vmcnt(0) lgkmcnt(0)
    s_sub_u32 s92, s92, s94
    s_lshl_b32 s98, s2, 3
    s_add_u32 s98, s98, s72
    s_lshl_b32 s98, s98, 2
    s_add_u32 s98, s98, 0x100000
    v_mov_b32 v1, 0
    v_mov_b32 v2, s92
    s_mov_b64 exec, 1
    buffer_store_dword v2, v1, s[68:71], s98 offen
    s_waitcnt vmcnt(0)
    s_mul_i32 s92, s92, 43
    s_lshr_b32 s92, s92, 8
    s_add_u32 s92, s92, 3000
L_spin1:
    s_memrealtime s[98:99]
    s_waitcnt lgkmcnt(0)
    s_sub_u32 s98, s98, s96
    s_cmp_lt_u32 s98, s92
    s_cbranch_scc1 L_spin1
L_exit:""".split('\n')
    open(out, 'w').write('\n'.join(L))
make('q_idx.s', 'idx'); make('q_0.s', 0); make('q_13.s', 13); make('q_25.s', 25); make('q_red.s', 'red'); make('q_end.s', 'end')
```

```python
import re, struct

class Asm:
    def __init__(s):
        s.L = []
        s.vm = []
        s.ds = []
        s.vm_done = -1
        s.ds_done = -1
    def e(s, t): s.L.append("    " + t)
    def lab(s, t): s.L.append(t + ":")
    def cm(s, t): s.L.append("    ; " + t)
    def raw(s, t): s.L.append(t)
    def reset(s):
        s.vm = []; s.ds = []; s.vm_done = -1; s.ds_done = -1
    def vmem(s, t, tag):
        s.e(t); s.vm.append(tag)
    def lds(s, t, tag="x"):
        s.e(t); s.ds.append(tag)
        assert len(s.ds) - 1 - s.ds_done <= 15, "more than 15 LDS ops outstanding: " + t
    def vm_wait(s, tag):
        last = max(i for i, t in enumerate(s.vm) if t == tag)
        if last <= s.vm_done: return
        n = len(s.vm) - 1 - last
        assert n <= 63
        s.vm_done = last
        s.e(f"s_waitcnt vmcnt({n})")
    def vm_all(s):
        s.vm_done = len(s.vm) - 1
        s.e("s_waitcnt vmcnt(0)")
    def ds_wait(s, tag):
        last = max(i for i, t in enumerate(s.ds) if t == tag)
        if last <= s.ds_done: return
        n = len(s.ds) - 1 - last
        s.ds_done = last
        s.e(f"s_waitcnt lgkmcnt({n})")
    def ds_all(s):
        s.ds_done = len(s.ds) - 1
        s.e("s_waitcnt lgkmcnt(0)")

def vr(b, n): return f"v[{b}:{b+n-1}]" if n > 1 else f"v{b}"
def sr(b, n): return f"s[{b}:{b+n-1}]" if n > 1 else f"s{b}"
def fbits(x): return "0x%08x" % struct.unpack("<I", struct.pack("<f", x))[0]

_tok = re.compile(r"^(-?)(abs\()?([vsa])(?:\[(\d+):(\d+)\]|(\d+))\)?$")
def regs(op):
    op = op.strip()
    if op == "vcc": return {("s", 106), ("s", 107)}
    if op == "exec": return {("s", 126), ("s", 127)}
    if op == "m0": return {("s", 124)}
    m = _tok.match(op)
    if not m: return set()
    k = m.group(3)
    if m.group(4): return {(k, i) for i in range(int(m.group(4)), int(m.group(5)) + 1)}
    return {(k, int(m.group(6)))}

TRANS = ("v_exp_f32", "v_log_f32", "v_rcp_f32", "v_rsq_f32", "v_sqrt_f32", "v_sin_f32", "v_cos_f32")
class I:
    def __init__(s, line):
        s.line = line
        t = line.strip().split(";")[0].strip()
        p = t.split(None, 1)
        s.op = p[0]
        rest = p[1] if len(p) > 1 else ""
        ops = [x.strip() for x in rest.split(",")] if rest else []
        if ops:
            last = ops[-1].split()
            s.mods = last[1:]; ops[-1] = last[0]
        else: s.mods = []
        s.ops = ops
        op = s.op
        s.mfma = op.startswith("v_mfma")
        s.valu = op.startswith("v_") and not s.mfma
        s.dot = op.startswith("v_dot")
        s.trans = op.replace("_e32", "").replace("_e64", "") in TRANS
        s.dpp = op.endswith("_dpp")
        s.perml = op.startswith("v_permlane")
        s.rdlane = op.startswith("v_readlane") or op.startswith("v_readfirstlane")
        s.vmem = op.startswith("buffer_") or op.startswith("global_")
        s.dma = s.vmem and ("lds" in s.mods or "_lds_" in op)
        s.dsop = op.startswith("ds_")
        s.salu = op.startswith("s_")
        s.w = set(); s.r = set(); s.srcC = set(); s.srcAB = set()
        R = [regs(x) for x in ops]
        if s.mfma:
            s.w = R[0]; s.srcAB = R[1] | R[2]; s.srcC = R[3]; s.r = s.srcAB | s.srcC
            s.passes = 8 if "32x32" in op else 4
        elif s.valu:
            if s.perml or op.startswith("v_swap"):
                s.w = R[0] | R[1]; s.r = R[0] | R[1]
            else:
                s.w = R[0]
                for x in R[1:]: s.r |= x
                if op.startswith("v_fmac") or op.startswith("v_dot2c") or s.dpp or op.startswith("v_writelane"): s.r |= R[0]
                if op.startswith(("v_add_co", "v_sub_co", "v_addc_co")): s.w |= R[1]
        elif s.dsop:
            if op.startswith(("ds_read", "ds_bpermute", "ds_swizzle", "ds_permute")):
                s.w = R[0]
                for x in R[1:]: s.r |= x
            else:
                for x in R: s.r |= x
        elif s.vmem:
            if "_load" in op and not s.dma:
                s.w = R[0]
                for x in R[1:]: s.r |= x
            else:
                for x in R: s.r |= x
                if "atomic" in op and "sc0" in s.mods: s.w = R[0]
            if s.dma: s.r |= {("s", 124)}
            s.wide = ("store_dwordx3" in op or "store_dwordx4" in op or "cmpswap_x2" in op)
        elif s.salu:
            if op.startswith(("s_cmp", "s_cbranch", "s_branch", "s_waitcnt", "s_barrier", "s_nop", "s_endpgm", "s_setprio", "s_sleep", "s_bitcmp")):
                for x in R: s.r |= x
            elif R:
                s.w = R[0]
                if op.startswith("s_addk"): s.r |= R[0]
                for x in R[1:]: s.r |= x
        s.states = int(ops[0], 0) + 1 if op == "s_nop" else 1

def need(p, c):
    n = 0
    vw = {x for x in p.w if x[0] in "va"}
    sw = {x for x in p.w if x[0] == "s"}
    if p.valu:
        if c.mfma and vw & c.r: n = max(n, 3 if p.dot else 2)
        if p.dot and c.op != p.op and (vw & (c.r | c.w)): n = max(n, 3)
        if p.dot and c.op == p.op:
            ab = set()
            for x in c.ops[1:3]: ab |= regs(x)
            if vw & ab: n = max(n, 3)
        if c.perml and vw & c.r: n = max(n, 2)
        if c.dpp and vw & regs(c.ops[1]): n = max(n, 2)
        if c.rdlane and vw & c.r: n = max(n, 1)
        if p.trans and c.valu and not c.trans and vw & c.r: n = max(n, 1)
        if p.trans and c.mfma and vw & c.r: n = max(n, 2)
        if sw:
            if (c.valu or c.mfma) and sw & c.r: n = max(n, 4 if c.rdlane else 2)
            if c.valu and c.op.startswith("v_cndmask") and len(c.ops) == 3 and sw & regs("vcc"): n = max(n, 2)
            if c.vmem and sw & c.r: n = max(n, 5)
            if c.salu and sw & c.r: n = max(n, 1)
    if p.mfma:
        big = {4: 8, 8: 12}[p.passes]
        if c.mfma:
            if vw & c.srcAB: n = max(n, big)
            if vw & c.srcC:
                if not (c.srcC == vw and c.passes == p.passes): n = max(n, {4: 6, 8: 10}[p.passes])
            if vw & c.w and not (vw & c.srcC): n = max(n, {4: 6, 8: 10}[p.passes])
        elif (c.valu or c.vmem or c.dsop) and vw & (c.r | c.w): n = max(n, big)
        if c.valu and p.srcC & c.w: n = max(n, {4: 3, 8: 7}[p.passes])
        if (c.dsop or c.vmem) and p.srcC & c.w: n = max(n, {4: 3, 8: 7}[p.passes])
    if p.salu and ("s", 124) in p.w and c.dma: n = max(n, 1)
    if p.vmem and getattr(p, "wide", False) and (c.valu or c.dsop or c.vmem) and regs(p.ops[0]) & c.w: n = max(n, 2)
    return n

def autonop(lines):
    out = []; hist = []; ins = 0
    for ln in lines:
        t = ln.strip()
        if not t or t.startswith((";", ".")) or t.endswith(":") or not ln.startswith("    "):
            out.append(ln); continue
        c = I(ln)
        dist = 0; pad = 0
        for p in reversed(hist):
            nd = need(p, c)
            if nd > dist: pad = max(pad, nd - dist)
            dist += p.states
            if dist >= 20: break
        while pad > 0:
            k = min(pad, 16)
            nop = I(f"    s_nop {k-1}")
            out.append(nop.line); hist.append(nop); pad -= k; ins += 1
        out.append(ln); hist.append(c)
        if c.op in ("s_branch", "s_endpgm"): hist = []
        if len(hist) > 40: hist = hist[-40:]
    return out
```

```python
import os, sys, math
sys.path.insert(0, os.path.dirname(os.path.abspath(__file__)))
from asmlib import *

STAMPS = int(os.environ.get("STAMPS", "0"))
def P(name, d): return int(os.environ.get(name, d))
KN = "standalone__deep_cross_fibinet__recsys_kernel"
A = Asm(); e = A.e; lab = A.lab; cm = A.cm

S_IDX, S_TAB, S_W1, S_WC, S_WBI, S_SW1, S_SW2, S_W2, S_OUT, S_DBG, S_WS = [8 + 4*i for i in range(11)]
SIZE = {S_IDX: 4096*104, S_TAB: 100000*128, S_W1: 1664*512, S_WC: 86528*2, S_WBI: 8192, S_SW1: 676, S_SW2: 676, S_W2: 512,
        S_OUT: 8192, S_DBG: 256, S_WS: 1 << 28}
sW, sRG, sHF, sX16 = 52, 53, 54, 55
sT0, sT1, sT2, sT3 = 56, 57, 58, 59
sMB, sMB2, sK6, sM6 = 60, 61, 62, 63
sLO, sHI, sC0, sC1, sMSK, sNL = 64, 65, 66, 67, 68, 69
KT = 84
def srd(b): return f"s[{b}:{b+3}]"

nst = [0]
def stamp():
    if not STAMPS: return
    k = nst[0]; nst[0] += 1
    assert k < 24
    e("s_memtime s[100:101]")
    e("s_waitcnt lgkmcnt(0)")
    e(f"s_mov_b32 s{70 + k}, s100") if k < 14 else e(f"s_mov_b32 s{84 + k - 14}, s100")
    A.ds_done = len(A.ds) - 1

def mf16(d, a, b, c=None):
    e(f"v_mfma_f32_16x16x32_bf16 {vr(d,4)}, {vr(a,4)}, {vr(b,4)}, {'0' if c is None else vr(c,4)}")
def mf32(d, a, b, c=None):
    e(f"v_mfma_f32_32x32x16_bf16 {vr(d,16)}, {vr(a,4)}, {vr(b,4)}, {'0' if c is None else vr(c,16)}")

def mksrd(b):
    e(f"s_mov_b32 s{b+2}, {SIZE[b]}")
    e(f"s_mov_b32 s{b+3}, 0x00020000")
def cpsrd(b, k):
    e(f"s_mov_b64 s[{b}:{b+1}], s[{KT+2*k}:{KT+2*k+1}]")

def entry():
    e("s_cmp_ge_u32 s2, 256")
    e("s_cbranch_scc1 L_exit")
    if STAMPS: e("s_memtime s[4:5]")
    e(f"s_load_dwordx2 s[{S_IDX}:{S_IDX+1}], s[0:1], 0")
    e(f"s_load_dwordx2 s[{S_W1}:{S_W1+1}], s[0:1], 48")
    e(f"s_load_dwordx2 s[{S_TAB}:{S_TAB+1}], s[0:1], 8")
    e(f"s_load_dwordx8 s[{KT}:{KT+7}], s[0:1], 16")
    e(f"s_load_dwordx8 s[{KT+8}:{KT+15}], s[0:1], 56")
    e("v_lshrrev_b32 v1, 6, v0")
    e(f"s_lshr_b32 s{sT0}, s2, 5")
    e(f"v_readfirstlane_b32 s{sW}, v1")
    e(f"s_and_b32 s{sT1}, s2, 7")
    e(f"s_lshl3_add_u32 s{sRG}, s{sT0}, s{sT1}")
    e(f"s_bfe_u32 s{sHF}, s2, 0x10003")
    mksrd(S_IDX); mksrd(S_W1); mksrd(S_TAB)
    e("s_bitcmp1_b32 s2, 4")
    e("s_cbranch_scc1 L_B")

def rest_srds():
    for b in (S_SW1, S_SW2, S_WBI, S_WC, S_W2, S_OUT, S_DBG, S_WS): mksrd(b)
def rest_srds2():
    for k, b in enumerate((S_SW1, S_SW2, S_WBI, S_WC, S_W2, S_OUT, S_DBG, S_WS)): cpsrd(b, k)

def consts():
    c0 = -2.0 * math.sqrt(2.0 / math.pi) * math.log2(math.e)
    e(f"s_mov_b32 s{sLO}, 0x05040100")
    e(f"s_mov_b32 s{sHI}, 0x07060302")
    e(f"s_mov_b32 s{sC0}, {fbits(c0)}")
    e(f"s_mov_b32 s{sC1}, {fbits(c0 * 0.044715)}")
    e(f"s_mov_b32 s{sMSK}, 0xffff0000")
    e(f"s_mov_b32 s{sNL}, {fbits(-math.log2(math.e))}")

R0, R1, R2 = 0, 53248, 106496
MISC = 147456
L_WBI, L_SE1, L_SE2, L_AV, L_RED = MISC, MISC + 8192, MISC + 9216, MISC + 10240, MISC
LDS_TOTAL = 163840
vSw, vI, vG, vPf, vDum = 1, 2, [5, 6], 7, 8
aE = [[10, 11], [12, 13]]
aC, aC6 = [14, 15], [16, 17]
aJ0, aJ0t, aJ1, aJ1t = 18, 19, 20, 21
vC0 = [22, 23, 24, 25, 26]; vC1 = 27
aAw = 28; aAr = [29, 30]; aRed = [31, 9]
XF, CAP, RAW, WF, T, U, AK, ACCP = 32, 96, 152, 180, 196, 228, 236, 252
ACCQ = [1, 2, 3, 4, 5, 6, 7, 8, 10, 11, 12, 13, 14, 15]
AF, DD, WB, ZF, SE1F, SE2F = T, WF, RAW, RAW + 8, RAW + 12, RAW + 16
def xf(el, t, q): return XF + el*8 + t*4 + q
def cap(t, tl): return CAP + t*8 + tl*4
GAHEAD = P("GAHEAD", 5)
NPF0 = P("NPF0", 2)
PFB = [(S_W1, 512 + 1024*k) for k in range(6)] + [(S_WC, 0), (S_WC, 1024)]

def a_gather(s):
    g = vG[s & 1]
    c = s >> 1; r = vI + 2*(s & 1)
    e(f"v_add_u32_dpp v{g}, v{r}, v{vSw} row_newbcast:{c} row_mask:0xf bank_mask:0x3")
    e(f"v_add_u32_dpp v{g}, v{r}, v{vSw} row_newbcast:{8+c} row_mask:0xf bank_mask:0xc")
    e(f"s_add_u32 m0, s{sMB}, {s*8192}")
    A.vmem(f"buffer_load_dwordx4 v{g}, {srd(S_TAB)}, 0 offen lds", f"g{s}")

def a_pf(k):
    b, line = PFB[k]
    e(f"s_mov_b32 s{sT0}, {line*128}")
    A.vmem(f"buffer_load_dword v{vDum}, v{vPf}, {srd(b)}, s{sT0} offen", "pf")

def a_wc(c, k):
    part = 0 if c < 2 else 1
    if c in (0, 3):
        e(f"s_add_u32 m0, s{sMB2}, {R2 + k*8192}")
        if part:
            e(f"s_mov_b32 s{sT0}, 86528")
            A.vmem(f"buffer_load_dwordx4 v{vC0[k]}, {srd(S_WC)}, s{sT0} offen lds", f"c{c}")
        else:
            A.vmem(f"buffer_load_dwordx4 v{vC0[k]}, {srd(S_WC)}, 0 offen lds", f"c{c}")
    else:
        reg = R0 if c == 1 else R1
        if k < 6:
            e(f"s_add_u32 m0, s{sMB2}, {reg + k*8192}")
            e(f"s_mov_b32 s{sT0}, {part*86528 + 4*k*3328}")
        else:
            e(f"s_add_u32 m0, s{sM6}, {reg}")
            e(f"s_add_u32 s{sT0}, s{sK6}, {part*86528}")
        A.vmem(f"buffer_load_dwordx4 v{vC1}, {srd(S_WC)}, s{sT0} offen lds", f"c{c}")

def gelu(dst, x, t0, vc0):
    e(f"v_mul_f32 v{t0}, v{x}, v{x}")
    e(f"v_fma_f32 v{t0}, v{t0}, s{sC1}, v{vc0}")
    e(f"v_mul_f32 v{t0}, v{t0}, v{x}")
    e(f"v_exp_f32 v{t0}, v{t0}")
    e(f"v_add_f32 v{t0}, 1.0, v{t0}")
    e(f"v_rcp_f32 v{t0}, v{t0}")
    e(f"v_mul_f32 v{dst}, v{x}, v{t0}")

def zipl(lists):
    n = max(len(x) for x in lists)
    for i in range(n):
        for x in lists:
            if i < len(x): A.L.append(x[i])
class Cap:
    def __enter__(s): s.sv = A.L; A.L = []; s.l = A.L; return s
    def __exit__(s, *a): A.L = s.sv

def role_a():
    A.reset()
    t0, t1, t2, t3, t4, t5 = U, U+1, U+2, U+3, U+4, U+5
    cm("===== role A")
    e(f"v_bfe_u32 v{t0}, v0, 3, 5")
    e(f"v_mul_u32_u24 v{t0}, 104, v{t0}")
    e(f"v_and_b32 v{t1}, 7, v0")
    e(f"v_lshl_add_u32 v{t0}, v{t1}, 4, v{t0}")
    e(f"v_lshrrev_b32 v{t1}, 8, v0")
    e(f"v_lshl_add_u32 v{t0}, v{t1}, 2, v{t0}")
    e(f"s_lshl1_add_u32 s{sT0}, s{sRG}, s{sHF}")
    e(f"s_mul_i32 s{sT0}, s{sT0}, {32*104}")
    rest_srds()
    e("s_waitcnt lgkmcnt(0)")
    A.vmem(f"buffer_load_dwordx3 {vr(vI,3)}, v{t0}, {srd(S_IDX)}, s{sT0} offen", "idx")
    rest_srds2()
    e(f"v_lshrrev_b32 v{t1}, 4, v0")
    e(f"v_xor_b32 v{t1}, v{t1}, v0")
    e(f"v_and_b32 v{t1}, 7, v{t1}")
    e(f"v_lshlrev_b32 v{vSw}, 4, v{t1}")
    e(f"s_lshl_b32 s{sMB}, s{sW}, 10")
    e(f"s_mov_b32 s{sMB2}, s{sMB}")
    e(f"s_lshr_b32 s{sT0}, s2, 5")
    e(f"s_lshl1_add_u32 s{sT0}, s{sT0}, s{sHF}")
    e(f"s_lshl3_add_u32 s{sT0}, s{sT0}, s{sW}")
    e(f"s_lshl_b32 s{sT0}, s{sT0}, 10")
    e(f"v_and_b32 v{t2}, 63, v0")
    e(f"v_lshl_add_u32 v{vPf}, v{t2}, 7, s{sT0}")
    e(f"v_lshlrev_b32 v{t3}, 4, v0")
    e(f"s_lshl_b32 s{sT1}, s{sW}, 7")
    e(f"v_lshl_add_u32 v{t4}, v{t2}, 4, s{sT1}")
    e("s_barrier")
    e("s_mov_b64 exec, 0xff")
    for k in range(NPF0): a_pf(k)
    e(f"s_add_u32 m0, s{sT1}, {L_SE1}")
    A.vmem(f"buffer_load_dwordx4 v{t4}, {srd(S_SW1)}, 0 offen lds", "sm")
    e(f"s_add_u32 m0, s{sT1}, {L_SE2}")
    A.vmem(f"buffer_load_dwordx4 v{t4}, {srd(S_SW2)}, 0 offen lds", "sm")
    e("s_mov_b64 exec, -1")
    e(f"s_add_u32 m0, s{sMB}, {L_WBI}")
    A.vmem(f"buffer_load_dwordx4 v{t3}, {srd(S_WBI)}, 0 offen lds", "sm")
    consts()
    stamp()
    A.vm_wait("idx")
    stamp()
    e(f"v_lshlrev_b32 v{vI}, 7, v{vI}")
    e(f"v_lshlrev_b32 v{vI+2}, 7, v{vI+2}")
    for s in range(GAHEAD): a_gather(s)
    L15, G = T, T + 1
    e(f"v_and_b32 v{L15}, 15, v0")
    e(f"v_bfe_u32 v{G}, v0, 4, 2")
    e(f"v_lshrrev_b32 v{t0}, 1, v{L15}")
    e(f"s_and_b32 s{sT0}, s{sW}, 1")
    e(f"s_lshl_b32 s{sT0}, s{sT0}, 11")
    e(f"v_lshl_add_u32 v{t1}, v{L15}, 7, s{sT0}")
    e(f"v_xor_b32 v{t2}, v{G}, v{t0}")
    e(f"v_lshl_add_u32 v{aE[0][0]}, v{t2}, 4, v{t1}")
    e(f"v_xor_b32 v{aE[1][0]}, 64, v{aE[0][0]}")
    e(f"v_xor_b32 v{aE[0][1]}, 0x800, v{aE[0][0]}")
    e(f"v_xor_b32 v{aE[1][1]}, 0x800, v{aE[1][0]}")
    e(f"v_xor_b32 v{t2}, s{sW}, v{t0}")
    e(f"v_lshlrev_b32 v{t2}, 4, v{t2}")
    e(f"v_add_u32 v{t3}, v{t2}, v{t1}")
    e(f"v_lshl_add_u32 v{aC[0]}, v{G}, 13, v{t3}")
    e(f"v_xor_b32 v{aC[1]}, 0x800, v{aC[0]}")
    e(f"v_lshl_add_u32 v{aC6[0]}, v{G}, 12, v{t3}")
    e(f"v_add_u32 v{aC6[0]}, {24*4096}, v{aC6[0]}")
    e(f"v_xor_b32 v{aC6[1]}, 0x800, v{aC6[0]}")
    e(f"v_lshl_add_u32 v{t3}, v{L15}, 7, v{t2}")
    e(f"v_lshl_add_u32 v{aJ0}, v{G}, 12, v{t3}")
    e(f"v_min_u32 v{t4}, 1, v{G}")
    e(f"v_lshl_add_u32 v{aJ0t}, v{t4}, 11, v{t3}")
    e(f"v_add_u32 v{aJ0t}, {24*2048}, v{aJ0t}")
    e(f"v_lshrrev_b32 v{t0}, 2, v{L15}")
    e(f"v_and_b32 v{t1}, 3, v{L15}")
    e(f"v_lshlrev_b32 v{t2}, 1, v{t0}")
    e(f"v_add_u32 v{t3}, 1, v{t2}")
    e(f"v_cmp_eq_u32 vcc, 1, v{t1}")
    e(f"v_cndmask_b32 v{t2}, v{t2}, v{t3}, vcc")
    e(f"v_add_u32 v{t3}, 8, v{t0}")
    e(f"v_and_b32 v{t5}, 11, v{L15}")
    e(f"v_cmp_eq_u32 vcc, 2, v{t5}")
    e(f"v_cndmask_b32 v{t2}, v{t2}, v{t3}, vcc")
    e(f"v_lshrrev_b32 v{t3}, 1, v{t2}")
    e(f"v_xor_b32 v{t3}, s{sW}, v{t3}")
    e(f"v_lshlrev_b32 v{t3}, 4, v{t3}")
    e(f"v_lshl_add_u32 v{t3}, v{t2}, 7, v{t3}")
    e(f"v_add_u32 v{t3}, {R2}, v{t3}")
    e(f"v_mul_u32_u24 v{t5}, 2560, v{G}")
    e(f"v_add_u32 v{aJ1}, v{t5}, v{t3}")
    e(f"v_mul_u32_u24 v{t5}, 1280, v{t4}")
    e(f"v_add_u32 v{aJ1t}, v{t5}, v{t3}")
    e(f"v_add_u32 v{aJ1t}, {24*1280}, v{aJ1t}")
    e(f"s_bfe_u32 s{sT0}, s{sW}, 0x10001")
    e(f"s_lshl_b32 s{sT1}, s{sT0}, 2")
    e(f"v_add_u32 v{t1}, s{sT1}, v{t1}")
    e(f"v_lshrrev_b32 v{t2}, 1, v{t1}")
    e(f"v_lshlrev_b32 v{t2}, 3, v{t2}")
    e(f"v_lshl_add_u32 v{t2}, v{t0}, 1, v{t2}")
    e(f"v_and_b32 v{t3}, 1, v{t1}")
    e(f"v_add_u32 v{t2}, v{t2}, v{t3}")
    e(f"v_add_u32 v{t3}, 24, v{t0}")
    e(f"v_cmp_lt_u32 vcc, 5, v{t1}")
    e(f"v_cndmask_b32 v{t2}, v{t2}, v{t3}, vcc")
    aS2 = T + 2
    e(f"v_mul_u32_u24 v{t3}, 208, v{G}")
    e(f"v_lshl_add_u32 v{aS2}, v{t2}, 1, v{t3}")
    e(f"v_add_u32 v{aS2}, {L_SE2}, v{aS2}")
    aS1, aS1t = T + 3, T + 4
    e(f"v_mul_u32_u24 v{t3}, 52, v{G}")
    e(f"v_lshl_add_u32 v{aS1}, v{L15}, 1, v{t3}")
    e(f"v_add_u32 v{aS1}, {L_SE1}, v{aS1}")
    e(f"v_mul_u32_u24 v{t3}, 26, v{G}")
    e(f"v_lshl_add_u32 v{aS1t}, v{L15}, 1, v{t3}")
    e(f"v_add_u32 v{aS1t}, {L_SE1 + 24*26}, v{aS1t}")
    e(f"s_and_b32 s{sT1}, s{sW}, 1")
    e(f"s_mul_i32 s{sT2}, s{sT1}, {16*144}")
    e(f"s_sub_u32 s{sT3}, {16*144}, s{sT2}")
    e(f"v_mul_u32_u24 v{t3}, 144, v{L15}")
    e(f"v_lshl_add_u32 v{t5}, v{G}, 5, v{t3}")
    e(f"v_add_u32 v{t5}, {L_AV}, v{t5}")
    e(f"v_add_u32 v{aAr[0]}, s{sT2}, v{t5}")
    e(f"v_add_u32 v{aAr[1]}, s{sT3}, v{t5}")
    e(f"s_lshl_b32 s{sT0}, s{sT0}, 4")
    e(f"v_add_u32 v{aAw}, s{sT0}, v{aAr[0]}")
    e(f"v_lshl_add_u32 v{t5}, v{G}, 2, v{t3}")
    e(f"s_lshl_b32 s{sT0}, s{sW}, 4")
    e(f"s_add_u32 s{sT0}, s{sT0}, {L_RED}")
    e(f"v_add_u32 v{t5}, s{sT0}, v{t5}")
    e(f"v_add_u32 v{aRed[0]}, s{sT2}, v{t5}")
    e(f"v_add_u32 v{aRed[1]}, s{sT3}, v{t5}")
    aWb = T + 5
    e(f"v_lshrrev_b32 v{t0}, 2, v{L15}")
    e(f"v_and_b32 v{t1}, 1, v{L15}")
    e(f"v_lshl_add_u32 v{t0}, v{t0}, 1, v{t1}")
    e(f"v_lshlrev_b32 v{t0}, 1, v{t0}")
    e(f"v_lshl_add_u32 v{t0}, v{G}, 10, v{t0}")
    e(f"s_lshl_b32 s{sT0}, s{sW}, 4")
    e(f"s_add_u32 s{sT0}, s{sT0}, {L_WBI}")
    e(f"v_add_u32 v{aWb}, s{sT0}, v{t0}")
    e(f"v_bfe_u32 v{t0}, v0, 3, 4")
    e(f"v_bfe_u32 v{t1}, v{t0}, 1, 1")
    e(f"v_lshlrev_b32 v{t1}, 3, v{t1}")
    e(f"v_lshrrev_b32 v{t2}, 2, v{t0}")
    e(f"v_lshl_add_u32 v{t1}, v{t2}, 1, v{t1}")
    e(f"v_and_b32 v{t2}, 1, v{t0}")
    e(f"v_add_u32 v{t1}, v{t1}, v{t2}")
    e(f"v_lshl_add_u32 v{t1}, v{t1}, 7, v{vSw}")
    e(f"s_lshr_b32 s{sT0}, s{sW}, 1")
    e(f"s_mul_i32 s{sT0}, s{sT0}, 3328")
    e(f"v_add_u32 v{vC1}, s{sT0}, v{t1}")
    e(f"s_lshr_b32 s{sT0}, s{sW}, 2")
    e(f"s_mul_i32 s{sT0}, s{sT0}, {2*3328}")
    e(f"s_sub_u32 s{sK6}, {24*3328}, s{sT0}")
    e(f"s_and_b32 s{sT0}, s{sW}, 3")
    e(f"s_lshl_b32 s{sT0}, s{sT0}, 10")
    e(f"s_add_u32 s{sM6}, s{sT0}, {24*2048}")
    e(f"v_lshrrev_b32 v{t0}, 3, v0")
    e(f"v_and_b32 v{t5}, 7, v0")
    for k in range(5):
        e(f"v_add_u32 v{t1}, {64*k}, v{t0}")
        e(f"v_mul_u32_u24 v{t2}, 205, v{t1}")
        e(f"v_lshrrev_b32 v{t2}, 11, v{t2}")
        e(f"v_mul_u32_u24 v{t3}, 10, v{t2}")
        e(f"v_sub_u32 v{t3}, v{t1}, v{t3}")
        e(f"v_lshl_add_u32 v{t2}, v{t2}, 4, v{t1}")
        e(f"v_lshrrev_b32 v{t3}, 1, v{t3}")
        e(f"v_xor_b32 v{t3}, v{t3}, v{t5}")
        e(f"v_lshlrev_b32 v{t3}, 4, v{t3}")
        e(f"v_lshl_add_u32 v{t3}, v{t2}, 7, v{t3}")
        e(f"v_add_u32 v{vC0[k]}, {16*128}, v{t3}")
        if k == 4:
            e(f"v_mov_b32 v{t3}, 0x7ffffff0")
            e(f"v_cmp_lt_u32 vcc, 259, v{t1}")
            e(f"v_cndmask_b32 v{vC0[k]}, v{vC0[k]}, v{t3}, vcc")
    for tl in range(2):
        for d in range(4): e(f"v_mov_b32 v{cap(6, tl) + d}, 0")
        for el in range(4, 8): e(f"v_mov_b32 v{xf(el, tl, 3)}, 0")
    e(f"v_mov_b32 v{ZF+3}, 0")
    for i in range(4): e(f"v_mov_b32 v{ACCP+i}, 0")
    A.vm_wait("sm")
    e("s_barrier")
    TM = T + 8
    for ks in range(2):
        for s in range(8):
            A.lds(f"ds_read_u16 v{TM + ks*8 + s}, v{aWb} offset:{(32*ks + s)*128}", f"wb{ks}")
            if ks == 1 and s == 3: A.ds_wait("wb0")
    e(f"v_and_b32 v{t0}, 3, v{L15}")
    e(f"v_cmp_eq_u32 vcc, 2, v{t0}")
    e(f"v_mov_b32 v{t1}, 0x3c803c80")
    e(f"v_cndmask_b32 v{t1}, 0, v{t1}, vcc")
    e(f"v_cmp_gt_u32 vcc, 2, v{t0}")
    A.ds_all()
    for d in range(8):
        e(f"v_lshl_or_b32 v{WB + d}, v{TM + 2*d + 1}, 16, v{TM + 2*d}")
        e(f"v_cndmask_b32 v{WB + d}, v{t1}, v{WB + d}, vcc")
    for t in range(6):
        A.lds(f"ds_read_u16 v{TM + t}, v{aS1} offset:{(8*(t >> 1) + (t & 1))*26}", "se")
    A.lds(f"ds_read_u16 v{SE1F + 3}, v{aS1t}", "se")
    for kk in range(4):
        A.lds(f"ds_read_u16 v{TM + 8 + kk}, v{aS2} offset:{kk*52}", "se")
    A.ds_all()
    for q in range(3): e(f"v_lshl_or_b32 v{SE1F + q}, v{TM + 2*q + 1}, 16, v{TM + 2*q}")
    for q in range(2): e(f"v_lshl_or_b32 v{SE2F + q}, v{TM + 8 + 2*q + 1}, 16, v{TM + 8 + 2*q}")
    stamp()
    pfk = NPF0
    for s in range(13):
        cm(f"-- A step {s}")
        A.vm_wait(f"g{s}")
        e("s_barrier")
        if s in (0, 6, 12): stamp()
        if s + GAHEAD < 13: a_gather(s + GAHEAD)
        else: a_wc(0, s + GAHEAD - 13)
        if pfk < 8:
            e("s_mov_b64 exec, 0xff")
            a_pf(pfk); pfk += 1
            e("s_mov_b64 exec, -1")
        elif pfk == 8:
            cm("touch out/debug/ws pages")
            pfk += 1
            e("s_mov_b64 exec, 1")
            e(f"v_mov_b32 v{vPf}, 0")
            for b in (S_OUT, S_DBG, S_WS):
                A.vmem(f"buffer_load_dword v{vDum}, v{vPf}, {srd(b)}, 0 offen", "pf")
            e("s_mov_b64 exec, -1")
        if s == 8:
            for r in aE[0] + aE[1] + aC: e(f"v_add_u32 v{r}, 0x10000, v{r}")
        for fi in range(2):
            f = 2*s + fi
            for tl in range(2):
                for ks in range(2):
                    A.lds(f"ds_read_b128 {vr(AF + fi*16 + tl*8 + ks*4, 4)}, v{aE[ks][tl]} offset:{(f & 15)*4096}", f"e{fi}{tl}")
        for fi in range(2):
            for tl in range(2):
                A.ds_wait(f"e{fi}{tl}")
                d = DD + fi*8 + tl*4
                mf16(d, WB, AF + fi*16 + tl*8)
                mf16(d, WB + 4, AF + fi*16 + tl*8 + 4, d)
        q, Gq = s >> 2, s & 3
        if s % 4 == 3:
            for t in (2*q, 2*q + 1):
                for tl in range(2):
                    A.lds(f"ds_read_b128 {vr(cap(t, tl), 4)}, v{aC[tl]} offset:{((8*q + (t & 1)) & 15)*4096}", "cap")
        if s == 12:
            e("s_mov_b32 exec_hi, 0")
            for tl in range(2):
                A.lds(f"ds_read_b128 {vr(cap(6, tl), 4)}, v{aC6[tl]}", "cap")
            e("s_mov_b64 exec, -1")
        if s < 12:
            for tl in range(2):
                for r in range(2):
                    e(f"v_cvt_pk_bf16_f32 v{xf(2*Gq + r, tl, q)}, v{DD + tl*4 + r}, v{DD + 8 + tl*4 + r}")
            lo = 0xffff << (16*Gq)
            e(f"s_mov_b32 exec_lo, {lo & 0xffffffff}")
            e(f"s_mov_b32 exec_hi, {lo >> 32}")
            e(f"v_cvt_pk_bf16_f32 v{ZF + q}, v{DD + 2}, v{DD + 8 + 2}")
            e("s_mov_b64 exec, -1")
        else:
            e("s_mov_b64 exec, 0xffff")
            e(f"v_cvt_pk_bf16_f32 v{ZF + 3}, v{DD + 2}, 0")
            e("s_mov_b32 exec_lo, 0xffff0000")
            e(f"v_cvt_pk_bf16_f32 v{ZF + 3}, v{DD + 8 + 2}, 0")
            e("s_mov_b64 exec, -1")
            for tl in range(2):
                for fi in range(2):
                    for r in range(2):
                        e(f"v_cvt_pk_bf16_f32 v{xf(2*fi + r, tl, 3)}, v{DD + fi*8 + tl*4 + r}, 0")
        def swaps():
            for tl in range(2):
                for r in range(2):
                    R = [xf(2*g + r, tl, q) for g in range(4)]
                    e(f"v_permlane32_swap_b32 v{R[0]}, v{R[2]}")
                    e(f"v_permlane32_swap_b32 v{R[1]}, v{R[3]}")
            for tl in range(2):
                for r in range(2):
                    R = [xf(2*g + r, tl, q) for g in range(4)]
                    e(f"v_permlane16_swap_b32 v{R[0]}, v{R[1]}")
                    e(f"v_permlane16_swap_b32 v{R[2]}, v{R[3]}")
        if s % 4 == 3:
            swaps()
            A.ds_all()
    c1q = list(range(7))
    a_wc(1, c1q.pop(0))
    e(f"s_cmp_ge_u32 s{sW}, 4")
    e("s_cbranch_scc1 L_nosenet")
    b = T
    mf16(b, SE1F, ZF)
    e(f"v_mov_b32 v{b+20}, s{sC0}")
    e(f"v_cvt_pk_bf16_f32 v{b+8}, v{b+0}, v{b+1}")
    e(f"v_cvt_pk_bf16_f32 v{b+9}, v{b+2}, v{b+3}")
    for d in range(2):
        e(f"v_lshlrev_b32 v{b+2*d}, 16, v{b+8+d}")
        e(f"v_and_b32 v{b+2*d+1}, s{sMSK}, v{b+8+d}")
    ls = []
    for r in range(4):
        with Cap() as c: gelu(b + 4 + r, b + r, b + 12 + r, b + 20)
        ls.append(c.l)
    zipl(ls)
    e(f"v_cvt_pk_bf16_f32 v{b+10}, v{b+4}, v{b+5}")
    e(f"v_cvt_pk_bf16_f32 v{b+11}, v{b+6}, v{b+7}")
    e(f"v_mfma_f32_16x16x16_bf16 {vr(b+16,4)}, {vr(SE2F,2)}, {vr(b+10,2)}, 0")
    e(f"v_cvt_pk_bf16_f32 v{b+8}, v{b+16}, v{b+17}")
    e(f"v_cvt_pk_bf16_f32 v{b+9}, v{b+18}, v{b+19}")
    for d in range(2):
        e(f"v_lshlrev_b32 v{b+2*d}, 16, v{b+8+d}")
        e(f"v_and_b32 v{b+2*d+1}, s{sMSK}, v{b+8+d}")
    for r in range(4): e(f"v_mul_f32 v{b+r}, s{sNL}, v{b+r}")
    for r in range(4): e(f"v_exp_f32 v{b+r}, v{b+r}")
    for r in range(4): e(f"v_add_f32 v{b+r}, 1.0, v{b+r}")
    for r in range(4): e(f"v_rcp_f32 v{b+r}, v{b+r}")
    for r in range(4):
        if r & 1: e(f"v_cvt_pk_bf16_f32 v{b+4+r}, 0, v{b+r}")
        else: e(f"v_cvt_pk_bf16_f32 v{b+4+r}, v{b+r}, 0")
    e(f"ds_write_b128 v{aAw}, {vr(b+4,4)}")
    lab("L_nosenet")
    e("s_nop 1")
    q = 3
    swaps()
    a_wc(1, c1q.pop(0))
    for r in ACCQ: e(f"v_mov_b32 v{r}, 0")
    a_wc(1, c1q.pop(0))
    A.ds_all()
    stamp()

    def chunk(c, issue):
        jt = 1 if c in (0, 3) else 0
        part = 0 if c < 2 else 1
        nr = 3 if jt else 4
        bs, bt, st = (aJ1, aJ1t, 1280) if jt else (aJ0, aJ0t, 2048)
        A.vm_wait(f"c{c}")
        e("s_barrier")
        stamp()
        for t in range(6):
            A.lds(f"ds_read_b128 {vr(RAW + 4*t, 4)}, v{bs} offset:{(8*(t >> 1) + (t & 1))*st}", "raw")
        A.lds(f"ds_read_b128 {vr(RAW + 24, 4)}, v{bt}", "raw")
        if c == 1:
            for tl in range(2):
                for u in range(2):
                    A.lds(f"ds_read_b128 {vr(AK + tl*8 + u*4, 4)}, v{aAr[tl]} offset:{u*16}", "ak")
            e(f"v_add_u32 v{aJ0}, {R1}, v{aJ0}")
            e(f"v_add_u32 v{aJ0t}, {R1}, v{aJ0t}")
        def iss():
            if issue: a_wc(*issue.pop(0))
        iss()
        def xq(ep):
            for el in (2*ep, 2*ep + 1):
                for tl in range(2):
                    for qq in range(3):
                        e(f"v_dot2_f32_bf16 v{U + 2*qq}, v{xf(el, tl, qq)}, v{AK + tl*8 + 2*qq}, 0")
                        e(f"v_dot2_f32_bf16 v{U + 2*qq + 1}, v{xf(el, tl, qq)}, v{AK + tl*8 + 2*qq + 1}, 0")
                    e(f"v_dot2_f32_bf16 v{U + 6}, v{xf(el, tl, 3)}, v{AK + tl*8 + 6}, 0")
                    for qq in range(3):
                        e(f"v_cvt_pk_bf16_f32 v{xf(el, tl, qq)}, v{U + 2*qq}, v{U + 2*qq + 1}")
                    e(f"v_cvt_pk_bf16_f32 v{xf(el, tl, 3)}, v{U + 6}, 0")
        def perms(ep):
            w = WF + (ep & 1)*8
            for qq in range(3):
                e(f"v_perm_b32 v{w + qq}, v{RAW + 4*(2*qq+1) + ep}, v{RAW + 4*(2*qq) + ep}, s{sLO}")
                e(f"v_perm_b32 v{w + 4 + qq}, v{RAW + 4*(2*qq+1) + ep}, v{RAW + 4*(2*qq) + ep}, s{sHI}")
            e(f"v_mov_b32 v{w + 3}, v{RAW + 24 + ep}")
            e(f"v_lshrrev_b32 v{w + 7}, 16, v{RAW + 24 + ep}")
        def mm(ep):
            w = WF + (ep & 1)*8; tb = T + (ep & 1)*16
            for tl in range(2):
                for x in range(2):
                    mf16(tb + x*8 + tl*4, w + 4*x, xf(2*ep + x, tl, 0))
        def fin(ep):
            tb = T + (ep & 1)*16
            for tl in range(2):
                for r in range(nr):
                    e(f"v_cvt_pk_bf16_f32 v{U + tl*4 + r}, v{tb + tl*4 + r}, v{tb + 8 + tl*4 + r}")
            for tl in range(2):
                for r in range(nr):
                    t = 4*jt + r
                    acc = ACCQ[t*2 + tl] if part else ACCP + tl*2 + (r & 1)
                    e(f"v_dot2c_f32_bf16 v{acc}, v{U + tl*4 + r}, v{cap(t, tl) + ep}")
        if c == 2: xq(0)
        A.ds_wait("raw")
        perms(0); mm(0)
        for ep in range(4):
            iss()
            if ep < 3:
                if c == 2: xq(ep + 1)
                perms(ep + 1); mm(ep + 1)
            iss()
            fin(ep)
        while issue: iss()
        A.ds_all()
    chunk(0, [(1, k) for k in c1q] + [(2, k) for k in range(4)])
    chunk(1, [(2, k) for k in range(4, 7)] + [(3, k) for k in range(5)])
    chunk(2, [])
    chunk(3, [])
    stamp()
    for tl in range(2):
        for t in range(0, 7, 2): e(f"v_lshlrev_b32 v{AK + tl*8 + t}, 16, v{AK + tl*8 + t}")
    for tl in range(2):
        for t in range(7):
            e(f"v_fmac_f32 v{ACCP + tl*2 + (t & 1)}, v{AK + tl*8 + t}, v{ACCQ[t*2 + tl]}")
    for tl in range(2):
        e(f"v_add_f32 v{ACCP + tl*2}, v{ACCP + tl*2}, v{ACCP + tl*2 + 1}")
        e(f"ds_write_b32 v{aRed[tl]}, v{ACCP + tl*2}")
    e("s_waitcnt lgkmcnt(0)")
    e("s_barrier")
    e(f"s_cmp_lg_u32 s{sW}, 0")
    e("s_cbranch_scc1 L_end")
    e(f"v_and_b32 v1, 31, v0")
    e(f"v_mul_u32_u24 v2, 144, v1")
    e(f"v_lshrrev_b32 v3, 5, v0")
    e(f"v_lshl_add_u32 v2, v3, 6, v2")
    e(f"v_add_u32 v2, {L_RED}, v2")
    for k in range(4): e(f"ds_read_b128 {vr(16 + 4*k, 4)}, v2 offset:{16*k}")
    e(f"s_lshl_b32 s{sT0}, s{sHF}, 7")
    e(f"s_add_u32 s{sT0}, s{sT0}, 512")
    e(f"v_lshl_add_u32 v5, v1, 2, s{sT0}")
    e("s_waitcnt lgkmcnt(0)")
    for st in (8, 4, 2, 1):
        for k in range(st): e(f"v_add_f32 v{16+k}, v{16+k}, v{16+k+st}")
    e("v_mov_b32 v17, v16")
    e("v_permlane32_swap_b32 v16, v17")
    e("v_add_f32 v4, v16, v17")
    e("s_branch L_fin")

NWS, NGS = 8, 4
WBASE, GBASE = 0, NWS*16384
B_RED = 4*16384
LEAD = P("LEAD", 8)

def role_b():
    lab("L_B")
    cm("===== role B")
    e(f"s_cmp_lt_u32 s{sW}, 4")
    e("s_cbranch_scc1 L_Bc")
    A.reset(); nst[0] = 0
    vW, vS, vIa = 1, 2, [4, 8]
    vGt = [12, 13]
    t0, t1, t2 = 14, 15, 16
    e(f"v_bfe_u32 v{t0}, v0, 4, 4")
    e(f"v_lshlrev_b32 v{t0}, 9, v{t0}")
    e(f"v_bfe_u32 v{t1}, v0, 4, 2")
    e(f"v_lshlrev_b32 v{t1}, 2, v{t1}")
    e(f"v_xor_b32 v{t1}, v{t1}, v0")
    e(f"v_and_b32 v{t1}, 15, v{t1}")
    e(f"v_lshl_add_u32 v{t0}, v{t1}, 4, v{t0}")
    e(f"s_lshl_b32 s{sT0}, s{sHF}, 8")
    e(f"v_add_u32 v{vW}, s{sT0}, v{t0}")
    e(f"s_and_b32 s{sMB}, s{sW}, 3")
    e(f"s_lshl_b32 s{sMB}, s{sMB}, 10")
    e(f"v_bfe_u32 v{t0}, v0, 3, 5")
    e(f"v_mul_u32_u24 v{t0}, 104, v{t0}")
    e(f"v_and_b32 v{t1}, 7, v0")
    e(f"v_lshl_add_u32 v{t0}, v{t1}, 4, v{t0}")
    e(f"s_mul_i32 s{sT1}, s{sRG}, {64*104}")
    e(f"v_lshrrev_b32 v{t1}, 4, v0")
    e(f"v_xor_b32 v{t1}, v{t1}, v0")
    e(f"v_and_b32 v{t1}, 7, v{t1}")
    e(f"v_lshlrev_b32 v{vS}, 4, v{t1}")
    if STAMPS: rest_srds()
    e("s_waitcnt lgkmcnt(0)")
    if STAMPS: rest_srds2()
    stamp()
    wq = [(f, n) for f in range(26) for n in range(4)]
    def wpiece():
        f, n = wq.pop(0)
        e(f"s_add_u32 m0, s{sMB}, {WBASE + (f % NWS)*16384 + n*4096}")
        e(f"s_mov_b32 s{sT0}, {f*32768 + n*8192}")
        A.vmem(f"buffer_load_dwordx4 v{vW}, {srd(S_W1)}, s{sT0} offen lds", f"w{f}")
    def gpiece(f):
        for u in range(2):
            g = vGt[u]; c = f >> 2; r = vIa[u] + (f & 3)
            e(f"v_add_u32_dpp v{g}, v{r}, v{vS} row_newbcast:{c} row_mask:0xf bank_mask:0x3")
            e(f"v_add_u32_dpp v{g}, v{r}, v{vS} row_newbcast:{8+c} row_mask:0xf bank_mask:0xc")
            e(f"s_add_u32 m0, s{sMB}, {GBASE + (f % NGS)*8192 + u*4096}")
            A.vmem(f"buffer_load_dwordx4 v{g}, {srd(S_TAB)}, 0 offen lds", f"g{f}")
    for k in range(4): wpiece()
    A.vmem(f"buffer_load_dwordx4 {vr(vIa[0],4)}, v{t0}, {srd(S_IDX)}, s{sT1} offen", "idx")
    A.vmem(f"buffer_load_dwordx4 {vr(vIa[1],4)}, v{t0}, {srd(S_IDX)}, s{sT1} offen offset:{32*104}", "idx")
    for k in range(LEAD*4 - 4): wpiece()
    A.vm_wait("idx")
    for u in range(2):
        for d in range(4): e(f"v_lshlrev_b32 v{vIa[u]+d}, 7, v{vIa[u]+d}")
    stamp()
    for f in range(NGS): gpiece(f)
    tot = len(wq); done = 0
    nsteps = 26 - NGS
    for f in range(26):
        A.vm_wait(f"w{f}"); A.vm_wait(f"g{f}")
        e("s_barrier")
        if f in (0, 6, 12, 18, 25): stamp()
        if f >= 1 and f - 1 + NGS < 26:
            tgt = f * tot // nsteps
            while done < tgt and wq and wq[0][0] <= f - 1 + NWS:
                wpiece(); done += 1
            gpiece(f - 1 + NGS)
    assert not wq
    e("s_branch L_end")
    lab("L_Bc")
    A.reset(); nst[0] = 0
    aEm = [1, 2, 3, 4]; aW = [5, 6]
    W2 = 16; ACC = 32
    EF = lambda st, tl, s: 64 + st*32 + tl*16 + s*4
    WFr = lambda st, s: 128 + st*16 + s*4
    t0, t1, t2, t3 = 8, 9, 10, 11
    rest_srds()
    consts()
    e(f"v_and_b32 v{t0}, 31, v0")
    e(f"v_bfe_u32 v{t1}, v0, 5, 1")
    e(f"v_bfe_u32 v{t2}, v0, 1, 3")
    e(f"v_xor_b32 v{t2}, v{t2}, v{t1}")
    e(f"v_lshlrev_b32 v{t2}, 4, v{t2}")
    e(f"v_lshl_add_u32 v{t2}, v{t0}, 7, v{t2}")
    e(f"v_add_u32 v{aEm[0]}, {GBASE}, v{t2}")
    for s in range(1, 4): e(f"v_xor_b32 v{aEm[s]}, {32*s}, v{aEm[0]}")
    e(f"v_bfe_u32 v{t0}, v0, 2, 2")
    e(f"v_lshl_add_u32 v{t2}, v{t1}, 3, v{t0}")
    e(f"v_lshlrev_b32 v{t2}, 8, v{t2}")
    e(f"v_xor_b32 v{t0}, s{sW}, v{t0}")
    e(f"v_lshl_add_u32 v{t2}, v{t0}, 6, v{t2}")
    e(f"v_bfe_u32 v{t0}, v0, 4, 1")
    e(f"v_lshl_add_u32 v{t2}, v{t0}, 5, v{t2}")
    e(f"v_and_b32 v{t0}, 3, v0")
    e(f"v_lshl_add_u32 v{aW[0]}, v{t0}, 3, v{t2}")
    e(f"v_add_u32 v{aW[1]}, 0x10000, v{aW[0]}")
    e(f"s_lshl_b32 s{sT0}, s{sHF}, 8")
    e(f"s_lshl_b32 s{sT1}, s{sW}, 6")
    e(f"s_add_u32 s{sT0}, s{sT0}, s{sT1}")
    e(f"v_lshlrev_b32 v{t1}, 3, v{t1}")
    e("s_waitcnt lgkmcnt(0)")
    rest_srds2()
    for q in range(4):
        A.vmem(f"buffer_load_dwordx2 {vr(64 + 2*q, 2)}, v{t1}, {srd(S_W2)}, s{sT0} offen offset:{16*q}", "w2")
    e("s_mov_b64 exec, 1")
    e(f"v_mov_b32 v{t0}, 0")
    for b in (S_OUT, S_DBG, S_WS):
        A.vmem(f"buffer_load_dword v{t3}, v{t0}, {srd(b)}, 0 offen", "pf")
    e("s_mov_b64 exec, -1")
    for i in range(32): e(f"v_mov_b32 v{ACC+i}, 0")
    A.vm_all()
    for d in range(8):
        e(f"v_lshlrev_b32 v{W2 + 2*d}, 16, v{64 + d}")
        e(f"v_and_b32 v{W2 + 2*d + 1}, s{sMSK}, v{64 + d}")
    stamp()
    def reads(f, s):
        st = f & 1
        ws = f % NWS
        for u in range(2):
            A.lds(f"ds_read_b64_tr_b16 {vr(WFr(st, s) + 2*u, 2)}, v{aW[ws >> 2]} offset:{(ws & 3)*16384 + s*4096 + u*1024}", f"r{f}_{s}")
        for tl in range(2):
            A.lds(f"ds_read_b128 {vr(EF(st, tl, s), 4)}, v{aEm[s]} offset:{(f % NGS)*8192 + tl*4096}", f"r{f}_{s}")
    def mms(f, s):
        st = f & 1
        for tl in range(2): mf32(ACC + 16*tl, WFr(st, s), EF(st, tl, s), ACC + 16*tl)
    for f in range(26):
        cm(f"-- B step {f}")
        e("s_barrier")
        if f in (0, 6, 12, 18, 25): stamp()
        reads(f, 0); reads(f, 1)
        if f: mms(f - 1, 2)
        reads(f, 2)
        if f: mms(f - 1, 3)
        A.ds_wait(f"r{f}_0")
        reads(f, 3)
        mms(f, 0)
        A.ds_wait(f"r{f}_1")
        mms(f, 1)
        A.ds_all()
    mms(25, 2); mms(25, 3)
    stamp()
    C0 = 12
    e(f"v_mov_b32 v{C0}, s{sC0}"); e(f"v_mov_b32 v{C0+1}, s{sC0}")
    e(f"v_mov_b32 v{C0+2}, s{sC1}"); e(f"v_mov_b32 v{C0+3}, s{sC1}")
    S = 8
    TT = 64
    for tl in range(2):
        ls = []
        for p in range(8):
            x = ACC + 16*tl + 2*p; t = TT + 2*p
            with Cap() as c:
                e(f"v_pk_mul_f32 {vr(t,2)}, {vr(x,2)}, {vr(x,2)}")
                e(f"v_pk_fma_f32 {vr(t,2)}, {vr(t,2)}, {vr(C0+2,2)}, {vr(C0,2)}")
                e(f"v_pk_mul_f32 {vr(t,2)}, {vr(t,2)}, {vr(x,2)}")
                e(f"v_exp_f32 v{t}, v{t}")
                e(f"v_exp_f32 v{t+1}, v{t+1}")
                e(f"v_pk_mul_f32 {vr(x,2)}, {vr(x,2)}, {vr(W2 + 2*p,2)}")
                e(f"v_pk_add_f32 {vr(t,2)}, {vr(t,2)}, 1.0 op_sel_hi:[1,0]")
                e(f"v_rcp_f32 v{t}, v{t}")
                e(f"v_rcp_f32 v{t+1}, v{t+1}")
                if p == 0: e(f"v_pk_mul_f32 {vr(S + 2*tl,2)}, {vr(x,2)}, {vr(t,2)}")
                else: e(f"v_pk_fma_f32 {vr(S + 2*tl,2)}, {vr(x,2)}, {vr(t,2)}, {vr(S + 2*tl,2)}")
            ls.append(c.l)
        zipl(ls)
    e(f"v_add_f32 v{S}, v{S}, v{S+1}")
    e(f"v_add_f32 v{S+2}, v{S+2}, v{S+3}")
    e(f"v_lshlrev_b32 v1, 2, v0")
    e(f"v_add_u32 v1, {B_RED}, v1")
    e(f"v_permlane32_swap_b32 v{S}, v{S+2}")
    e(f"v_add_f32 v{S}, v{S}, v{S+2}")
    e(f"ds_write_b32 v1, v{S}")
    e("s_waitcnt lgkmcnt(0)")
    e("s_barrier")
    stamp()
    e(f"s_cmp_lg_u32 s{sW}, 0")
    e("s_cbranch_scc1 L_end")
    for k in range(1, 4): e(f"ds_read_b32 v{16+k}, v1 offset:{256*k}")
    e(f"s_lshl_b32 s{sT0}, s{sHF}, 8")
    e(f"v_lshl_add_u32 v5, v0, 2, s{sT0}")
    e("s_waitcnt lgkmcnt(0)")
    e(f"v_add_f32 v{S}, v{S}, v17")
    e(f"v_add_f32 v18, v18, v19")
    e(f"v_add_f32 v4, v{S}, v18")

def fin():
    lab("L_fin")
    cm("wave 0: v4 = partial, v5 = byte offset inside the row group's 768-byte block")
    e(f"s_mul_i32 s{sT0}, s{sRG}, 768")
    e(f"buffer_store_dword v4, v5, {srd(S_WS)}, s{sT0} offen sc1")
    e(f"v_mov_b32 v6, 1")
    e(f"s_lshl_b32 s{sT1}, s{sRG}, 2")
    e(f"v_mov_b32 v7, s{sT1}")
    e(f"v_lshlrev_b32 v8, 2, v0")
    e("s_waitcnt vmcnt(0)")
    e("s_mov_b64 exec, 1")
    e(f"buffer_atomic_add v6, v7, {srd(S_DBG)}, 0 offen sc0 sc1")
    e("s_waitcnt vmcnt(0)")
    e(f"v_readfirstlane_b32 s{sT2}, v6")
    e("s_mov_b64 exec, -1")
    e(f"s_cmp_lg_u32 s{sT2}, 3")
    e("s_cbranch_scc1 L_end")
    for c in range(3):
        e(f"buffer_load_dword v{10+c}, v8, {srd(S_WS)}, s{sT0} offen offset:{c*256} sc1")
    e(f"s_lshl_b32 s{sT0}, s{sRG}, 7")
    e(f"v_lshlrev_b32 v9, 1, v0")
    e("s_waitcnt vmcnt(0)")
    e(f"v_add_f32 v10, v10, v11")
    e(f"v_add_f32 v10, v10, v12")
    e(f"v_cvt_pk_bf16_f32 v10, v10, v10")
    e(f"buffer_store_short v10, v9, {srd(S_OUT)}, s{sT0} offen")
    lab("L_end")
    if STAMPS:
        e("s_waitcnt vmcnt(0)")
        e("s_memtime s[100:101]")
        e("s_waitcnt lgkmcnt(0)")
        e(f"s_lshl3_add_u32 s{sT0}, s2, s{sW}")
        e(f"s_lshl_b32 s{sT0}, s{sT0}, 7")
        e(f"s_add_u32 s{sT0}, s{sT0}, 0x100000")
        e("s_mov_b64 exec, 1")
        e("v_mov_b32 v0, 0")
        regs_ = [4] + list(range(70, 84)) + list(range(84, 94)) + [100]
        for i, r in enumerate(regs_):
            e(f"v_mov_b32 v1, s{r}")
            e(f"buffer_store_dword v1, v0, {srd(S_WS)}, s{sT0} offen offset:{4*i}")
    lab("L_exit")
    e("s_endpgm")

def main():
    A.raw("; Kernarg: in0 idx, in1 table, in2 se_w1, in3 se_w2, in4 w_bi, in5 w_cross, in6 w_deep1, in7 w_deep2, out, debug, ws")
    A.raw(f"; @launch grid=(256,1,1) block=(512,1,1) lds={LDS_TOTAL}")
    for t in ['.amdgcn_target "amdgcn-amd-amdhsa--gfx950"', ".text", f".globl {KN}", ".p2align 8", f".type {KN},@function", f"{KN}:"]: A.raw(t)
    entry()
    role_a()
    role_b()
    fin()
    for t in ['.section .rodata,"a"', ".p2align 6", f".amdhsa_kernel {KN}", "  .amdhsa_next_free_vgpr 256", "  .amdhsa_next_free_sgpr 102",
              "  .amdhsa_accum_offset 256", "  .amdhsa_group_segment_fixed_size 0", "  .amdhsa_kernarg_size 88", "  .amdhsa_user_sgpr_count 2",
              "  .amdhsa_user_sgpr_kernarg_segment_ptr 1", "  .amdhsa_system_sgpr_workgroup_id_x 1", ".end_amdhsa_kernel"]: A.raw(t)
    out = autonop([x for x in A.L if x is not None])
    open(sys.argv[1], "w").write("\n".join(out) + "\n")
main()
```

```python
import os, sys, math
sys.path.insert(0, os.path.dirname(os.path.abspath(__file__)))
from asmlib import *

STAMPS = int(os.environ.get("STAMPS", "0"))
def P(name, d): return int(os.environ.get(name, d))
KN = "standalone__deep_cross_fibinet__recsys_kernel"
A = Asm(); e = A.e; lab = A.lab; cm = A.cm

S_IDX, S_TAB, S_W1, S_WC, S_WBI, S_SW1, S_SW2, S_W2, S_OUT, S_DBG, S_WS = [8 + 4*i for i in range(11)]
SIZE = {S_IDX: 4096*104, S_TAB: 100000*128, S_W1: 1664*512, S_WC: 86528*2, S_WBI: 8192, S_SW1: 676, S_SW2: 676, S_W2: 512,
        S_OUT: 8192, S_DBG: 256, S_WS: 1 << 28}
sW, sRG, sHF, sX16 = 52, 53, 54, 55
sT0, sT1, sT2, sT3 = 56, 57, 58, 59
sMB, sMB2, sK6, sM6 = 60, 61, 62, 63
sMa, sMa3, sMb, sKa3 = 6, 7, 3, 55
sLO, sHI, sC0, sC1, sMSK, sNL = 64, 65, 66, 67, 68, 69
KT = 84
def srd(b): return f"s[{b}:{b+3}]"

nst = [0]
FS = P("FS", 6)
fst = [0]
def fstamp():
    if STAMPS != 3: return
    k = fst[0]; fst[0] += 1
    e(f"s_memtime s[{70 + 2*k}:{71 + 2*k}]")
def stamp():
    if not STAMPS or STAMPS == 3: return
    k = nst[0]; nst[0] += 1
    assert k < 24
    e("s_memtime s[100:101]")
    e("s_waitcnt lgkmcnt(0)")
    e(f"s_mov_b32 s{70 + k}, s100") if k < 14 else e(f"s_mov_b32 s{84 + k - 14}, s100")
    A.ds_done = len(A.ds) - 1

def mf16(d, a, b, c=None):
    e(f"v_mfma_f32_16x16x32_bf16 {vr(d,4)}, {vr(a,4)}, {vr(b,4)}, {'0' if c is None else vr(c,4)}")
def mf32(d, a, b, c=None):
    e(f"v_mfma_f32_32x32x16_bf16 {vr(d,16)}, {vr(a,4)}, {vr(b,4)}, {'0' if c is None else vr(c,16)}")

def mksrd(b):
    e(f"s_mov_b32 s{b+2}, {SIZE[b]}")
    e(f"s_mov_b32 s{b+3}, 0x00020000")
def cpsrd(b, k):
    e(f"s_mov_b64 s[{b}:{b+1}], s[{KT+2*k}:{KT+2*k+1}]")

def entry():
    e("s_cmp_ge_u32 s2, 256")
    e("s_cbranch_scc1 L_exit")
    if STAMPS: e("s_memtime s[4:5]")
    e(f"s_load_dwordx2 s[{S_IDX}:{S_IDX+1}], s[0:1], 0")
    e(f"s_load_dwordx2 s[{S_W1}:{S_W1+1}], s[0:1], 48")
    e(f"s_load_dwordx2 s[{S_TAB}:{S_TAB+1}], s[0:1], 8")
    e(f"s_load_dwordx8 s[{KT}:{KT+7}], s[0:1], 16")
    e(f"s_load_dwordx8 s[{KT+8}:{KT+15}], s[0:1], 56")
    e("v_lshrrev_b32 v1, 6, v0")
    e(f"s_lshr_b32 s{sT0}, s2, 5")
    e(f"v_readfirstlane_b32 s{sW}, v1")
    e(f"s_and_b32 s{sT1}, s2, 7")
    e(f"s_lshl3_add_u32 s{sRG}, s{sT0}, s{sT1}")
    e(f"s_bfe_u32 s{sHF}, s2, 0x10003")
    if CPF:
        cm("pull the kernel's code into L2: one 128-byte line per wave")
        e(f"s_getpc_b64 s[{S_WC}:{S_WC+1}]")
        lab("L_pc")
        e(f"s_mov_b32 s{S_WC+2}, L_codeend-L_pc")
        e(f"s_mov_b32 s{S_WC+3}, 0x00020000")
        e(f"s_andn2_b32 s{sT0}, s2, 7")
        e(f"s_add_u32 s{sT0}, s{sT0}, s{sW}")
        e(f"s_lshl_b32 s{sT0}, s{sT0}, 7")
        e("s_mov_b64 exec, 1")
        e(f"buffer_load_dword v8, off, {srd(S_WC)}, s{sT0}")
        e("s_mov_b64 exec, -1")
    mksrd(S_IDX); mksrd(S_W1); mksrd(S_TAB)
    e("s_bitcmp1_b32 s2, 4")
    e("s_cbranch_scc1 L_B")

def rest_srds():
    for b in (S_SW1, S_SW2, S_WBI, S_WC, S_W2, S_OUT, S_DBG, S_WS): mksrd(b)
def rest_srds2():
    for k, b in enumerate((S_SW1, S_SW2, S_WBI, S_WC, S_W2, S_OUT, S_DBG, S_WS)): cpsrd(b, k)

def consts():
    c0 = -2.0 * math.sqrt(2.0 / math.pi) * math.log2(math.e)
    e(f"s_mov_b32 s{sLO}, 0x05040100")
    e(f"s_mov_b32 s{sHI}, 0x07060302")
    e(f"s_mov_b32 s{sC0}, {fbits(c0)}")
    e(f"s_mov_b32 s{sC1}, {fbits(c0 * 0.044715)}")
    e(f"s_mov_b32 s{sMSK}, 0xffff0000")
    e(f"s_mov_b32 s{sNL}, {fbits(-math.log2(math.e))}")

R0, R1, R2 = 0, 53248, 106496
MISC = 147456
L_WBI, L_SE1, L_SE2, L_AV, L_RED = MISC, MISC + 8192, MISC + 9216, MISC + 10240, MISC
LDS_TOTAL = 163840
vSw, vI, vG, vPf, vDum = 1, 2, [5, 6], 7, 8
aE = [[10, 11], [12, 13]]
aC, aC6 = [14, 15], [16, 17]
aJ0, aJ1 = 18, 19
vCa, vCb, vC1 = 22, 23, 27
aAw = 28; aAr = [29, 30]; aRed = [31, 9]
vHo, vTag, vPo = 20, 21, 24
XF, CAP, RAW, WF, T, U, AK, ACCP = 32, 96, 152, 180, 196, 228, 236, 252
ACCQ = [1, 2, 3, 4, 5, 6, 7, 8, 10, 11, 12, 13, 14, 15]
AF, DD, WB, ZF, SE1F, SE2F = T, WF, RAW, RAW + 8, RAW + 12, RAW + 16
def xf(el, t, q): return XF + el*8 + t*4 + q
def cap(t, tl): return CAP + t*8 + tl*4
GAHEAD = P("GAHEAD", 5)
TOUCH = P("TOUCH", 2)
CPF = P("CPF", 1)
X = os.environ.get("X", "").split(",")
NPF0 = P("NPF0", 2)
PFAT = P("PFAT", 1)
SPEC = P("SPEC", 14)
PFB = [(S_W1, 512 + 1024*k) for k in range(6)] + [(S_WC, 0), (S_WC, 1024)]

def a_gaddr(s, h):
    g = vG[s & 1]
    c = s >> 1; r = vI + 2*(s & 1)
    if h == 0: e(f"v_add_u32_dpp v{g}, v{r}, v{vSw} row_newbcast:{c} row_mask:0xf bank_mask:0x3")
    else: e(f"v_add_u32_dpp v{g}, v{r}, v{vSw} row_newbcast:{8+c} row_mask:0xf bank_mask:0xc")
def a_gissue(s):
    A.vmem(f"buffer_load_dwordx4 v{vG[s & 1]}, {srd(S_TAB)}, 0 offen lds", f"g{s}")
def a_gather(s):
    a_gaddr(s, 0)
    e(f"s_add_u32 m0, s{sMB}, {s*8192}")
    a_gaddr(s, 1)
    a_gissue(s)

def a_pf(k):
    b, line = PFB[k]
    e(f"s_mov_b32 s{sT0}, {line*128}")
    A.vmem(f"buffer_load_dword v{vDum}, v{vPf}, {srd(b)}, s{sT0} offen", "pf")

def a_wc(c, k):
    part = 0 if c < 2 else 1
    if "nowc" in X and (c, k) != (0, 0):
        A.vm.append(f"c{c}"); A.vm_done = len(A.vm) - 1
        return
    if c in (1, 3):
        if k < 3:
            e(f"s_add_u32 m0, s{sMa}, {k*10240}")
            e(f"s_mov_b32 s{sT0}, {part*86528 + 8*k*3328}")
            v = vCa
        elif k == 3:
            e(f"s_mov_b32 m0, s{sMa3}")
            e(f"s_add_u32 s{sT0}, s{sKa3}, {part*86528}")
            v = vCa
        else:
            e(f"s_mov_b32 m0, s{sMb}")
            e(f"s_mov_b32 s{sT0}, {part*86528}")
            v = vCb
        A.vmem(f"buffer_load_dwordx4 v{v}, {srd(S_WC)}, s{sT0} offen lds", f"c{c}")
    else:
        reg = R0 if c == 0 else R1
        if k < 6:
            e(f"s_add_u32 m0, s{sMB2}, {reg + (k >> 1)*16384 + (k & 1)*4096}")
            e(f"s_mov_b32 s{sT0}, {part*86528 + 4*k*3328}")
        else:
            e(f"s_add_u32 m0, s{sM6}, {reg}")
            e(f"s_add_u32 s{sT0}, s{sK6}, {part*86528}")
        A.vmem(f"buffer_load_dwordx4 v{vC1}, {srd(S_WC)}, s{sT0} offen lds", f"c{c}")

def gelu(dst, x, t0, vc0):
    e(f"v_mul_f32 v{t0}, v{x}, v{x}")
    e(f"v_fma_f32 v{t0}, v{t0}, s{sC1}, v{vc0}")
    e(f"v_mul_f32 v{t0}, v{t0}, v{x}")
    e(f"v_exp_f32 v{t0}, v{t0}")
    e(f"v_add_f32 v{t0}, 1.0, v{t0}")
    e(f"v_rcp_f32 v{t0}, v{t0}")
    e(f"v_mul_f32 v{dst}, v{x}, v{t0}")

def zipl(lists):
    n = max(len(x) for x in lists)
    for i in range(n):
        for x in lists:
            if i < len(x): A.L.append(x[i])
class Cap:
    def __enter__(s): s.sv = A.L; A.L = []; s.l = A.L; return s
    def __exit__(s, *a): A.L = s.sv

def setexec(m32):
    e(f"s_mov_b32 exec_lo, {m32:#x}")
    e(f"s_mov_b32 exec_hi, {m32:#x}")

def role_a():
    A.reset()
    t0, t1, t2, t3, t4, t5 = U, U+1, U+2, U+3, U+4, U+5
    L15, G, aS2, aS1, aS1t, aWb = AK, AK+1, AK+2, AK+3, AK+4, AK+5
    TM = T
    cm("===== role A")
    e(f"v_bfe_u32 v{t0}, v0, 3, 5")
    e(f"v_mul_u32_u24 v{t0}, 104, v{t0}")
    e(f"v_and_b32 v{t1}, 7, v0")
    e(f"v_lshl_add_u32 v{t0}, v{t1}, 4, v{t0}")
    e(f"v_lshrrev_b32 v{t1}, 8, v0")
    e(f"v_lshl_add_u32 v{t0}, v{t1}, 2, v{t0}")
    e(f"s_lshl1_add_u32 s{sT2}, s{sRG}, s{sHF}")
    e(f"s_mul_i32 s{sT2}, s{sT2}, {32*104}")
    e(f"s_lshl_b32 s{sMB}, s{sW}, 10")
    e(f"s_lshr_b32 s{sT0}, s2, 5")
    e(f"s_lshl1_add_u32 s{sT0}, s{sT0}, s{sHF}")
    e(f"s_lshl_b32 s{sT0}, s{sT0}, 13")
    e(f"v_and_b32 v{t2}, 63, v0")
    e(f"v_lshl_add_u32 v{vPf}, v{t2}, 7, s{sT0}")
    e(f"v_lshlrev_b32 v{t3}, 4, v0")
    e(f"s_cmp_lt_u32 s{sW}, 2")
    e(f"s_cselect_b32 s{sT3}, 4, 7")
    e(f"s_cselect_b32 s{sT0}, 0, s{sT0}")
    e(f"v_lshlrev_b32 v{t4}, s{sT3}, v{t2}")
    e(f"s_cselect_b32 s{S_SW1+2}, 676, s{S_W1+2}")
    e(f"s_mov_b32 s{S_SW1+3}, 0x00020000")
    e(f"s_sub_u32 s{sT1}, s{sW}, {8 - NPF0}")
    e(f"s_lshl_b32 s{sT1}, s{sT1}, 17")
    e(f"s_add_u32 s{sT1}, s{sT1}, 65536")
    e(f"s_min_u32 s{sT1}, s{sT1}, 0x7f000000")
    e(f"s_cmp_lt_u32 s{sW}, 2")
    e(f"s_cselect_b32 s{sT1}, 0, s{sT1}")
    e(f"s_add_u32 s{sT1}, s{sT1}, s{sT0}")
    e(f"s_min_u32 s{sT3}, s{sMB}, 2048")
    mksrd(S_WBI)
    e(f"s_add_u32 m0, s{sMB}, {L_WBI}")
    e("s_waitcnt lgkmcnt(0)")
    A.vmem(f"buffer_load_dwordx3 {vr(vI,3)}, v{t0}, {srd(S_IDX)}, s{sT2} offen", "idx")
    cpsrd(S_WBI, 2)
    e(f"s_cmp_eq_u32 s{sW}, 0")
    e(f"s_cselect_b64 s[{S_SW1}:{S_SW1+1}], s[{KT}:{KT+1}], s[{KT+2}:{KT+3}]")
    e(f"s_cmp_lt_u32 s{sW}, 2")
    e(f"s_cselect_b64 s[{S_SW1}:{S_SW1+1}], s[{S_SW1}:{S_SW1+1}], s[{S_W1}:{S_W1+1}]")
    if STAMPS == 2: stamp()
    e("s_barrier")
    A.vmem(f"buffer_load_dwordx4 v{t3}, {srd(S_WBI)}, 0 offen lds", "sm")
    e(f"s_add_u32 m0, s{sT3}, {L_SE1}")
    A.vmem(f"buffer_load_dwordx4 v{t4}, {srd(S_SW1)}, s{sT1} offen lds", "se")
    e("s_branch L_A2")
    sv = (A.vm, A.ds, A.vm_done, A.ds_done, nst[0])
    b_head()
    A.vm, A.ds, A.vm_done, A.ds_done, nst[0] = sv
    lab("L_A2")
    e(f"v_lshrrev_b32 v{t1}, 4, v0")
    e(f"v_xor_b32 v{t1}, v{t1}, v0")
    e(f"v_and_b32 v{t1}, 7, v{t1}")
    e(f"v_lshlrev_b32 v{vSw}, 4, v{t1}")
    e(f"v_and_b32 v{L15}, 15, v0")
    e(f"v_bfe_u32 v{G}, v0, 4, 2")
    e(f"v_lshrrev_b32 v{t0}, 1, v{L15}")
    e(f"s_and_b32 s{sT0}, s{sW}, 1")
    e(f"s_lshl_b32 s{sT0}, s{sT0}, 11")
    e(f"v_lshl_add_u32 v{t1}, v{L15}, 7, s{sT0}")
    e(f"v_xor_b32 v{t2}, v{G}, v{t0}")
    e(f"v_lshl_add_u32 v{aE[0][0]}, v{t2}, 4, v{t1}")
    e(f"v_xor_b32 v{aE[1][0]}, 64, v{aE[0][0]}")
    e(f"v_xor_b32 v{aE[0][1]}, 0x800, v{aE[0][0]}")
    e(f"v_xor_b32 v{aE[1][1]}, 0x800, v{aE[1][0]}")
    e(f"v_xor_b32 v{t2}, s{sW}, v{t0}")
    e(f"v_lshlrev_b32 v{t2}, 4, v{t2}")
    e(f"v_add_u32 v{t3}, v{t2}, v{t1}")
    e(f"v_lshl_add_u32 v{aC[0]}, v{G}, 13, v{t3}")
    e(f"v_xor_b32 v{aC[1]}, 0x800, v{aC[0]}")
    e(f"v_lshl_add_u32 v{aC6[0]}, v{G}, 12, v{t3}")
    e(f"v_add_u32 v{aC6[0]}, {24*4096}, v{aC6[0]}")
    e(f"v_xor_b32 v{aC6[1]}, 0x800, v{aC6[0]}")
    e(f"v_lshl_add_u32 v{t3}, v{L15}, 7, v{t2}")
    e(f"v_lshl_add_u32 v{aJ0}, v{G}, 11, v{t3}")
    e(f"v_lshrrev_b32 v{t0}, 2, v{L15}")
    e(f"v_and_b32 v{t1}, 1, v{L15}")
    e(f"v_lshl_add_u32 v{t2}, v{t0}, 1, v{t1}")
    e(f"v_lshlrev_b32 v{t3}, 1, v{t2}")
    e(f"v_lshl_add_u32 v{t3}, v{G}, 10, v{t3}")
    e(f"s_lshl_b32 s{sT0}, s{sW}, 4")
    e(f"s_add_u32 s{sT0}, s{sT0}, {L_WBI}")
    e(f"v_add_u32 v{aWb}, s{sT0}, v{t3}")
    e(f"s_bfe_u32 s{sT0}, s{sW}, 0x10001")
    e(f"v_bfe_u32 v{t3}, v{L15}, 1, 1")
    e(f"v_lshl_add_u32 v{t3}, v{t3}, 3, v{t2}")
    e(f"s_lshl_b32 s{sT1}, s{sT0}, 4")
    e(f"v_add_u32 v{t3}, s{sT1}, v{t3}")
    e(f"v_add_u32 v{t4}, 24, v{t0}")
    e(f"v_min_u32 v{t3}, v{t3}, v{t4}")
    e(f"s_mov_b32 s{sT2}, {L_SE1}")
    e(f"v_mov_b32 v{t5}, s{sT2}")
    e(f"s_movk_i32 s{sT3}, 208")
    e(f"v_mad_u32_u24 v{t4}, v{G}, s{sT3}, v{t5}")
    e(f"v_lshl_add_u32 v{aS2}, v{t3}, 1, v{t4}")
    e(f"v_lshl_add_u32 v{t5}, v{L15}, 1, v{t5}")
    e(f"v_mad_u32_u24 v{aS1t}, v{G}, 26, v{t5}")
    e(f"v_mad_u32_u24 v{aS1}, v{G}, 52, v{t5}")
    e(f"v_mov_b32 v{t5}, 0")
    setexec(0x44444444)
    e(f"v_mov_b32 v{t5}, 0x3c803c80")
    e("s_mov_b64 exec, -1")
    for d in range(8): e(f"v_mov_b32 v{WB + d}, v{t5}")
    def setup2():
        e(f"v_xor_b32 v{t3}, s{sW}, v{t0}")
        e(f"v_lshlrev_b32 v{t3}, 4, v{t3}")
        e(f"v_lshl_add_u32 v{t3}, v{t2}, 7, v{t3}")
        e(f"v_lshl_add_u32 v{t3}, v{G}, 10, v{t3}")
        e(f"v_lshl_add_u32 v{t4}, v{G}, 1, v{t0}")
        e(f"s_xor_b32 s{sT0}, s{sW}, 4")
        e(f"s_lshl_b32 s{sT0}, s{sT0}, 4")
        e(f"s_add_u32 s{sT0}, s{sT0}, 4096")
        setexec(0x00440044)
        e(f"v_lshl_add_u32 v{t3}, v{t4}, 7, s{sT0}")
        e("s_mov_b64 exec, -1")
        e(f"v_add_u32 v{aJ1}, {R2}, v{t3}")
        e(f"s_and_b32 s{sT2}, s{sW}, 1")
        e(f"s_mul_i32 s{sT2}, s{sT2}, {16*144}")
        e(f"s_sub_u32 s{sT3}, {16*144 + L_AV}, s{sT2}")
        e(f"s_add_u32 s{sT2}, s{sT2}, {L_AV}")
        e(f"v_mul_u32_u24 v{t3}, 144, v{L15}")
        e(f"v_lshl_add_u32 v{t5}, v{G}, 5, v{t3}")
        e(f"v_add_u32 v{aAr[0]}, s{sT2}, v{t5}")
        e(f"v_add_u32 v{aAr[1]}, s{sT3}, v{t5}")
        e(f"v_add_u32 v{aAw}, s{sT1}, v{aAr[0]}")
        e(f"v_lshl_add_u32 v{t5}, v{G}, 2, v{t3}")
        e(f"s_lshl_b32 s{sT0}, s{sW}, 4")
        e(f"s_sub_u32 s{sT0}, s{sT0}, {L_AV - L_RED}")
        e(f"s_add_u32 s{sT2}, s{sT2}, s{sT0}")
        e(f"s_add_u32 s{sT3}, s{sT3}, s{sT0}")
        e(f"v_add_u32 v{aRed[0]}, s{sT2}, v{t5}")
        e(f"v_add_u32 v{aRed[1]}, s{sT3}, v{t5}")
    def setup3():
        e(f"v_bfe_u32 v{t1}, v0, 4, 1")
        e(f"v_bfe_u32 v{t2}, v0, 5, 2")
        e(f"v_lshl_add_u32 v{t1}, v{t1}, 2, v{t2}")
        e(f"v_bfe_u32 v{t2}, v0, 3, 1")
        e(f"v_lshl_add_u32 v{t1}, v{t1}, 1, v{t2}")
        e(f"v_lshl_add_u32 v{t1}, v{t1}, 7, v{vSw}")
        e(f"s_lshr_b32 s{sT0}, s{sW}, 1")
        e(f"s_mul_i32 s{sT1}, s{sT0}, 3328")
        e(f"v_add_u32 v{vC1}, s{sT1}, v{t1}")
        e(f"s_and_b32 s{sT1}, s{sT0}, 1")
        e(f"s_lshl_b32 s{sMB2}, s{sT1}, 13")
        e(f"s_lshr_b32 s{sT1}, s{sW}, 2")
        e(f"s_lshl_b32 s{sT2}, s{sT1}, 11")
        e(f"s_add_u32 s{sMB2}, s{sMB2}, s{sT2}")
        e(f"s_and_b32 s{sT2}, s{sW}, 1")
        e(f"s_lshl_b32 s{sT3}, s{sT2}, 10")
        e(f"s_add_u32 s{sMB2}, s{sMB2}, s{sT3}")
        e(f"s_mul_i32 s{sT3}, s{sT1}, {2*3328}")
        e(f"s_sub_u32 s{sK6}, {24*3328}, s{sT3}")
        e(f"s_sub_u32 s{sKa3}, s{sK6}, s{sT3}")
        e(f"s_mul_i32 s{sMa}, s{sT2}, 5120")
        e(f"s_lshl_b32 s{sT0}, s{sT0}, 10")
        e(f"s_add_u32 s{sMa}, s{sMa}, s{sT0}")
        e(f"s_add_u32 s{sMa}, s{sMa}, {R2}")
        e(f"s_and_b32 s{sT0}, s{sMB}, 0xc00")
        e(f"s_add_u32 s{sM6}, s{sT0}, {6*8192}")
        e(f"s_add_u32 s{sMa3}, s{sT0}, {R2 + 6*5120}")
        e(f"v_and_b32 v{t3}, 7, v0")
        e(f"v_xor_b32 v{t4}, v{t3}, v{G}")
        e(f"v_bfe_u32 v{t5}, v0, 3, 3")
        e(f"v_lshlrev_b32 v{t5}, 7, v{t5}")
        e(f"v_lshl_add_u32 v{t4}, v{t4}, 4, v{t5}")
        e(f"s_mul_i32 s{sT0}, s{sW}, 3328")
        e(f"s_add_u32 s{sT0}, s{sT0}, 2048")
        e(f"v_add_u32 v{vCa}, s{sT0}, v{t4}")
        e(f"s_min_u32 s{sT0}, s{sW}, 6")
        e(f"s_mul_i32 s{sMb}, s{sT0}, 5120")
        e(f"s_add_u32 s{sMb}, s{sMb}, {R2 + 4096}")
        e(f"s_lshr_b32 s{sT1}, s{sT0}, 1")
        e(f"s_and_b32 s{sT2}, s{sT0}, 1")
        e(f"s_lshl3_add_u32 s{sT1}, s{sT1}, s{sT2}")
        e(f"s_mul_i32 s{sT1}, s{sT1}, 3328")
        e(f"s_add_u32 s{sT1}, s{sT1}, {24*128}")
        e(f"s_cmp_eq_u32 s{sT0}, 6")
        e(f"s_cselect_b32 s{sT2}, 1, 2")
        e(f"s_mul_i32 s{sT2}, s{sT2}, 3328")
        e(f"v_xor_b32 v{t3}, 4, v{t3}")
        e(f"v_lshlrev_b32 v{t3}, 4, v{t3}")
        e(f"v_lshl_add_u32 v{t3}, v{t2}, 7, v{t3}")
        e(f"v_mad_u32_u24 v{t3}, v{G}, s{sT2}, v{t3}")
        e(f"v_add_u32 v{vCb}, s{sT1}, v{t3}")
    def setup4():
        for b in (S_WC, S_W2, S_OUT, S_DBG, S_WS): mksrd(b)
        for k, b in enumerate((S_WC, S_W2, S_OUT, S_DBG, S_WS)): cpsrd(b, k + 3)
        consts()
        for tl in range(2):
            for d in range(4): e(f"v_mov_b32 v{cap(6, tl) + d}, 0")
            for el in range(4, 8): e(f"v_mov_b32 v{xf(el, tl, 3)}, 0")
        e(f"v_mov_b32 v{ZF+3}, 0")
    setup2()
    stamp()
    A.vm_wait("idx")
    stamp()
    fs0 = (lambda: fstamp()) if FS == -1 else (lambda: None)
    fs0()
    e(f"v_lshlrev_b32 v{vI}, 7, v{vI}")
    e(f"v_lshlrev_b32 v{vI+2}, 7, v{vI+2}")
    for s in range(GAHEAD): a_gather(s)
    fs0()
    setup3()
    fs0()
    def pfbatch():
        e(f"s_add_u32 s{sT0}, s{sW}, {NPF0}")
        e(f"s_lshl_b32 s{sT1}, s{sT0}, 17")
        e(f"s_cmp_lt_u32 s{sT0}, 6")
        e(f"s_cselect_b64 s[{S_SW2}:{S_SW2+1}], s[{S_W1}:{S_W1+1}], s[{KT+6}:{KT+7}]")
        e(f"s_cselect_b32 s{S_SW2+2}, s{S_W1+2}, {SIZE[S_WC]}")
        e(f"s_cselect_b32 s{sT0}, 1, -12")
        e(f"s_mov_b32 s{S_SW2+3}, 0x00020000")
        e(f"s_lshl_b32 s{sT0}, s{sT0}, 16")
        e(f"s_add_u32 s{sT1}, s{sT1}, s{sT0}")
        A.vmem(f"buffer_load_dword v{vDum}, v{vPf}, {srd(S_SW2)}, s{sT1} offen", "pf")
    if PFAT < 0: pfbatch()
    A.vm_wait("sm")
    fs0()
    e("s_barrier")
    fs0()
    for k in range(16):
        if k == 15: A.ds_wait("wb0")
        A.lds(f"ds_read_u16 v{TM + k}, v{aWb} offset:{(32*(k >> 3) + (k & 7))*128}", f"wb{k >> 3}")
    fs0()
    setup4()
    e(f"v_and_b32 v{t0}, 31, v0")
    e(f"v_bfe_u32 v{t1}, v0, 5, 1")
    e(f"v_lshlrev_b32 v{t0}, 3, v{t0}")
    e(f"v_lshl_add_u32 v{t0}, v{t1}, 9, v{t0}")
    e(f"s_lshl_b32 s{sT0}, s{sRG}, 2")
    e(f"s_add_u32 s{sT0}, s{sT0}, s{sHF}")
    e(f"s_lshl_b32 s{sT0}, s{sT0}, 8")
    e(f"v_add_u32 v{vHo}, s{sT0}, v{t0}")
    A.ds_all()
    setexec(0x33333333)
    for d in range(8):
        e(f"v_lshl_or_b32 v{WB + d}, v{TM + 2*d + 1}, 16, v{TM + 2*d}")
    e("s_mov_b64 exec, -1")
    SEA = [aS1, aS1t, aS2]
    for k in range(3): e(f"v_mov_b32 v{CAP + 40 + k}, v{SEA[k]}")
    def se_frags():
        TM2 = CAP + 28
        for t in range(6):
            A.lds(f"ds_read_u16 v{TM2 + t}, v{CAP + 40} offset:{(8*(t >> 1) + (t & 1))*26}", "se")
        A.lds(f"ds_read_u16 v{SE1F + 3}, v{CAP + 41} offset:{24*26}", "se")
    def se_frags2():
        TM2 = CAP + 28
        A.ds_wait("se")
        for kk in range(4):
            A.lds(f"ds_read_u16 v{TM2 + 8 + kk}, v{CAP + 42} offset:{1024 + kk*52}", "se")
    def se_frags3():
        TM2 = CAP + 28
        A.ds_wait("se")
        for q in range(3): e(f"v_lshl_or_b32 v{SE1F + q}, v{TM2 + 2*q + 1}, 16, v{TM2 + 2*q}")
        for q in range(2): e(f"v_lshl_or_b32 v{SE2F + q}, v{TM2 + 8 + 2*q + 1}, 16, v{TM2 + 8 + 2*q}")
    deferred = []
    stamp()
    def swaps(q, tls=(0, 1)):
        for tl in tls:
            for r in range(2):
                R = [xf(2*g + r, tl, q) for g in range(4)]
                e(f"v_permlane32_swap_b32 v{R[0]}, v{R[2]}")
                e(f"v_permlane32_swap_b32 v{R[1]}, v{R[3]}")
        for tl in tls:
            for r in range(2):
                R = [xf(2*g + r, tl, q) for g in range(4)]
                e(f"v_permlane16_swap_b32 v{R[0]}, v{R[1]}")
                e(f"v_permlane16_swap_b32 v{R[2]}, v{R[3]}")
    def pack(s, tl):
        q, Gq = s >> 2, s & 3
        for r in range(2):
            e(f"v_cvt_pk_bf16_f32 v{xf(2*Gq + r, tl, q)}, v{DD + tl*4 + r}, v{DD + 8 + tl*4 + r}")
    def packz(s):
        q, Gq = s >> 2, s & 3
        lo = 0xffff << (16*Gq)
        e(f"s_mov_b32 exec_lo, {lo & 0xffffffff}")
        e(f"s_mov_b32 exec_hi, {lo >> 32}")
        e(f"v_cvt_pk_bf16_f32 v{ZF + q}, v{DD + 2}, v{DD + 8 + 2}")
        e("s_mov_b64 exec, -1")
    pfk = NPF0
    wcq = [(0, k) for k in range(7)] + [(1, k) for k in range(5)]
    QB = [[AF + 4*i for i in range(8)], [AK, AK+4, AK+8, AK+12, U, U+4, ACCP, RAW+20]]
    def rd(s, i):
        tl, fi, ks = i >> 2, (i >> 1) & 1, i & 1
        f = 2*s + fi
        A.lds(f"ds_read_b128 {vr(QB[s & 1][i], 4)}, v{aE[ks][tl]} offset:{(f & 15)*4096}", f"e{s}_{i >> 1}")
    def mmi(s, i):
        tl, fi = i >> 2, (i >> 1) & 1
        d = DD + fi*8 + tl*4
        if i & 1: mf16(d, WB + 4, QB[s & 1][i], d)
        else:
            A.ds_wait(f"e{s}_{i >> 1}")
            mf16(d, WB, QB[s & 1][i])
    swq = []
    for s in range(13):
        cm(f"-- A step {s}")
        if s == 8:
            for r in aE[0] + aE[1] + aC: e(f"v_add_u32 v{r}, 0x10000, v{r}")
        if s == FS + 1: fstamp()
        A.vm_wait(f"g{s}")
        if s == 8: A.ds_all()
        if s == FS + 1: fstamp()
        e("s_barrier")
        if s in (FS, FS + 1): fstamp()
        if s in (0, 4, 8, 12): stamp()
        lag = 0 < s < 12
        q = s >> 2
        if s in (5, 9):
            with Cap() as cs: swaps(q - 1, (0,))
            swq += cs.l
        if s in (6, 10):
            with Cap() as cs: swaps(q - 1, (1,))
            swq += cs.l
        def take(lst, n):
            for _ in range(n):
                if lst: A.L.append(lst.pop(0))
        for i in range(8):
            if lag: mmi(s - 1, i)
            rd(s, i)
            if i == 0 and lag and s >= 2: pack(s - 2, 1)
            if i == 1 and s + GAHEAD < 13:
                a_gaddr(s + GAHEAD, 0)
                e(f"s_add_u32 m0, s{sMB}, {(s + GAHEAD)*8192}")
                a_gaddr(s + GAHEAD, 1)
            if i in (2, 3, 4, 5):
                take(swq, 2 if s >= 9 else 1)
                if not swq: take(deferred, 3)
            if i == 6 and lag: pack(s - 1, 0)
            if i == 7 and lag: packz(s - 1)
            if s == FS and i < 7: fstamp()
        if s + GAHEAD < 13: a_gissue(s + GAHEAD)
        else: a_wc(*wcq.pop(0))
        if s == PFAT:
            pfbatch()
            e(f"s_lshl_b32 s{sT0}, s{sW}, 28")
            A.vmem(f"buffer_load_dword v{vTag}, v{vHo}, {srd(S_WS)}, s{sT0} offen offset:4 sc1", "snap")
        if s == 0: se_frags()
        if s == 1: se_frags2()
        if s == 2: se_frags3()
        if s % 4 == 3:
            for t in (2*q, 2*q + 1):
                for tl in range(2):
                    A.lds(f"ds_read_b128 {vr(cap(t, tl), 4)}, v{aC[tl]} offset:{((8*q + (t & 1)) & 15)*4096}", "cap")
        if s == 12:
            e("s_mov_b32 exec_hi, 0")
            for tl in range(2):
                A.lds(f"ds_read_b128 {vr(cap(6, tl), 4)}, v{aC6[tl]}", "cap")
            e("s_mov_b64 exec, -1")
        if s == 11:
            assert not swq
            for i in range(8):
                mmi(s, i)
                if i == 1: pack(10, 1)
            pack(11, 0); packz(11); swaps(2, (0,)); pack(11, 1); swaps(2, (1,))
        if s == 12:
            for i in range(8): mmi(s, i)
    a_wc(*wcq.pop(0))
    e("s_mov_b64 exec, 0xffff")
    e(f"v_cvt_pk_bf16_f32 v{ZF + 3}, v{DD + 2}, 0")
    e("s_mov_b32 exec_lo, 0xffff0000")
    e(f"v_cvt_pk_bf16_f32 v{ZF + 3}, v{DD + 8 + 2}, 0")
    e("s_mov_b64 exec, -1")
    for tl in range(2):
        for fi in range(2):
            e(f"v_cvt_pk_bf16_f32 v{xf(2*fi, tl, 3)}, v{DD + fi*8 + tl*4}, 0")
            e(f"v_cvt_pk_bf16_f32 v{xf(2*fi + 1, tl, 3)}, 0, v{DD + fi*8 + tl*4 + 1}")
    a_wc(*wcq.pop(0))
    e(f"s_cmp_ge_u32 s{sW}, 4")
    e("s_cbranch_scc1 L_nosenet")
    b = T
    mf16(b, SE1F, ZF)
    e(f"v_mov_b32 v{b+20}, s{sC0}")
    e(f"v_cvt_pk_bf16_f32 v{b+8}, v{b+0}, v{b+1}")
    e(f"v_cvt_pk_bf16_f32 v{b+9}, v{b+2}, v{b+3}")
    for d in range(2):
        e(f"v_lshlrev_b32 v{b+2*d}, 16, v{b+8+d}")
        e(f"v_and_b32 v{b+2*d+1}, s{sMSK}, v{b+8+d}")
    ls = []
    for r in range(4):
        with Cap() as c: gelu(b + 4 + r, b + r, b + 12 + r, b + 20)
        ls.append(c.l)
    zipl(ls)
    e(f"v_cvt_pk_bf16_f32 v{b+10}, v{b+4}, v{b+5}")
    e(f"v_cvt_pk_bf16_f32 v{b+11}, v{b+6}, v{b+7}")
    e(f"v_mfma_f32_16x16x16_bf16 {vr(b+16,4)}, {vr(SE2F,2)}, {vr(b+10,2)}, 0")
    e(f"v_cvt_pk_bf16_f32 v{b+8}, v{b+16}, v{b+17}")
    e(f"v_cvt_pk_bf16_f32 v{b+9}, v{b+18}, v{b+19}")
    for d in range(2):
        e(f"v_lshlrev_b32 v{b+2*d}, 16, v{b+8+d}")
        e(f"v_and_b32 v{b+2*d+1}, s{sMSK}, v{b+8+d}")
    for r in range(4): e(f"v_mul_f32 v{b+r}, s{sNL}, v{b+r}")
    for r in range(4): e(f"v_exp_f32 v{b+r}, v{b+r}")
    for r in range(4): e(f"v_add_f32 v{b+r}, 1.0, v{b+r}")
    for r in range(4): e(f"v_rcp_f32 v{b+r}, v{b+r}")
    for r in range(4):
        if r & 1: e(f"v_cvt_pk_bf16_f32 v{b+4+r}, 0, v{b+r}")
        else: e(f"v_cvt_pk_bf16_f32 v{b+4+r}, v{b+r}, 0")
    e(f"ds_write_b128 v{aAw}, {vr(b+4,4)}")
    lab("L_nosenet")
    a_wc(*wcq.pop(0))
    swaps(3)
    a_wc(*wcq.pop(0))
    A.ds_all()
    stamp()

    def pre(c):
        jt = c & 1
        bs, st = (aJ1, 5120) if jt else (aJ0, 8192)
        while wcq and wcq[0][0] == c: iss()
        A.vm_wait(f"c{c}")
        e("s_barrier")
        stamp()
        for t in range(7):
            A.lds(f"ds_read_b128 {vr(RAW + 4*t, 4)}, v{bs} offset:{t*st}", "raw")
        if c == 0:
            for tl in range(2):
                for u in range(2):
                    A.lds(f"ds_read_b128 {vr(AK + tl*8 + u*4, 4)}, v{aAr[tl]} offset:{u*16}", "ak")
            e(f"v_add_u32 v{aJ0}, {R1}, v{aJ0}")
            wcq.extend((2, k) for k in range(7))
        if c == 2:
            wcq.extend((3, k) for k in range(5))
    def iss(n=1):
        for _ in range(n):
            if wcq: a_wc(*wcq.pop(0))
    def xq(ep):
        for el in (2*ep, 2*ep + 1):
            for tl in range(2):
                for qq in range(3):
                    e(f"v_dot2_f32_bf16 v{U + 2*qq}, v{xf(el, tl, qq)}, v{AK + tl*8 + 2*qq}, 0")
                    e(f"v_dot2_f32_bf16 v{U + 2*qq + 1}, v{xf(el, tl, qq)}, v{AK + tl*8 + 2*qq + 1}, 0")
                if el & 1: e(f"v_mul_f32 v{U + 6}, v{xf(el, tl, 3)}, v{AK + tl*8 + 7}")
                else: e(f"v_dot2_f32_bf16 v{U + 6}, v{xf(el, tl, 3)}, v{AK + tl*8 + 6}, 0")
                for qq in range(3):
                    e(f"v_cvt_pk_bf16_f32 v{xf(el, tl, qq)}, v{U + 2*qq}, v{U + 2*qq + 1}")
                if el & 1: e(f"v_cvt_pk_bf16_f32 v{xf(el, tl, 3)}, 0, v{U + 6}")
                else: e(f"v_cvt_pk_bf16_f32 v{xf(el, tl, 3)}, v{U + 6}, 0")
    def perms(n):
        ep = n & 3
        w = WF + (n & 1)*8
        e(f"v_mov_b32 v{w + 3}, v{RAW + 24 + ep}")
        e(f"v_mov_b32 v{w + 7}, v{RAW + 24 + ep}")
        for qq in range(3):
            e(f"v_perm_b32 v{w + qq}, v{RAW + 4*(2*qq+1) + ep}, v{RAW + 4*(2*qq) + ep}, s{sLO}")
        for qq in range(3):
            e(f"v_perm_b32 v{w + 4 + qq}, v{RAW + 4*(2*qq+1) + ep}, v{RAW + 4*(2*qq) + ep}, s{sHI}")
    def mm(n):
        ep = n & 3
        w = WF + (n & 1)*8; tb = T + (n & 1)*16
        for x in range(2):
            for tl in range(2):
                mf16(tb + x*8 + tl*4, w + 4*x, xf(2*ep + x, tl, 0))
    used = set()
    def cvts(n):
        nr = 3 if (n >> 2) & 1 else 4
        tb = T + (n & 1)*16
        for tl in range(2):
            for r in range(nr):
                e(f"v_cvt_pk_bf16_f32 v{U + tl*4 + r}, v{tb + tl*4 + r}, v{tb + 8 + tl*4 + r}")
    def dots(n):
        c, ep = n >> 2, n & 3
        jt = c & 1; part = c >> 1; nr = 3 if jt else 4
        for r in range(nr):
            for tl in range(2):
                t = 4*jt + r
                acc = ACCQ[t*2 + tl] if part else ACCP + tl*2 + (r & 1)
                if acc in used: e(f"v_dot2c_f32_bf16 v{acc}, v{U + tl*4 + r}, v{cap(t, tl) + ep}")
                else:
                    used.add(acc)
                    e(f"v_dot2_f32_bf16 v{acc}, v{U + tl*4 + r}, v{cap(t, tl) + ep}, 0")
    pre(0)
    iss()
    A.ds_wait("raw")
    perms(0)
    for n in range(16):
        c, ep = n >> 2, n & 3
        cm(f"-- chunk {c} ep {ep}")
        with Cap() as cm_: mm(n)
        with Cap() as cc:
            if n: cvts(n - 1)
        with Cap() as cp:
            if n < 15:
                if ep == 3: A.ds_wait("raw")
                perms(n + 1)
        fill = (cp.l + cc.l) if ep == 2 else (cc.l + cp.l)
        k = 0
        for i, m in enumerate(cm_.l):
            A.L.append(m)
            tgt = (i + 1) * len(fill) // 4
            while k < tgt:
                A.L.append(fill[k]); k += 1
        if ep == 2 and c < 3: pre(c + 1)
        else: iss()
        if n == SPEC:
            e(f"s_lshl_b32 s{sT0}, s{sW}, 28")
            e(f"buffer_load_dwordx2 {vr(vPo,2)}, v{vHo}, {srd(S_WS)}, s{sT0} offen sc1")
        if n: dots(n - 1)
        if c == 1:
            if ep == 0: A.ds_wait("ak")
            xq(ep)
        iss()
    cvts(15); dots(15)
    stamp()
    for tl in range(2):
        for t in range(0, 6, 2): e(f"v_lshlrev_b32 v{AK + tl*8 + t}, 16, v{AK + tl*8 + t}")
    for t in range(7):
        for tl in range(2):
            e(f"v_fmac_f32 v{ACCP + tl*2 + (t & 1)}, v{AK + tl*8 + (t if t < 6 else 7)}, v{ACCQ[t*2 + tl]}")
    for tl in range(2):
        e(f"v_add_f32 v{ACCP + tl*2}, v{ACCP + tl*2}, v{ACCP + tl*2 + 1}")
        e(f"ds_write_b32 v{aRed[tl]}, v{ACCP + tl*2}")
    e(f"v_and_b32 v1, 31, v0")
    e(f"v_mul_u32_u24 v2, 144, v1")
    e(f"v_lshrrev_b32 v3, 5, v0")
    e(f"v_lshl_add_u32 v2, v3, 6, v2")
    e(f"v_add_u32 v2, {L_RED}, v2")
    e("s_waitcnt lgkmcnt(0)")
    e("s_barrier")
    e(f"s_cmp_lg_u32 s{sW}, 0")
    e("s_cbranch_scc1 L_end")
    for k in range(4): e(f"ds_read_b128 {vr(32 + 4*k, 4)}, v2 offset:{16*k}")
    e(f"s_lshl1_add_u32 s{sT0}, s{sRG}, s{sHF}")
    e(f"s_lshl_b32 s{sT0}, s{sT0}, 6")
    e(f"v_lshlrev_b32 v5, 1, v1")
    e(f"s_lshl_b32 s{sT1}, s{sRG}, 2")
    e("s_waitcnt lgkmcnt(0)")
    for st in (8, 4, 2, 1):
        for k in range(st): e(f"v_add_f32 v{32+k}, v{32+k}, v{32+k+st}")
    stamp()
    cm("wait for both deep partials: every tag differs from the snapshot, or both arrival flags are set")
    lab("L_poll")
    e("s_waitcnt vmcnt(0)")
    e(f"v_cmp_eq_u32 vcc, v{vPo+1}, v{vTag}")
    e("s_cbranch_vccz L_got")
    e(f"buffer_load_dword v{vPo+2}, off, {srd(S_DBG)}, s{sT1} sc1")
    e(f"buffer_load_dwordx2 {vr(vPo,2)}, v{vHo}, {srd(S_WS)}, 0 offen sc1")
    e("s_waitcnt vmcnt(1)")
    e(f"v_readfirstlane_b32 s{sT2}, v{vPo+2}")
    e(f"s_cmp_lg_u32 s{sT2}, 3")
    e("s_cbranch_scc1 L_poll")
    e("s_waitcnt vmcnt(0)")
    e(f"buffer_load_dwordx2 {vr(vPo,2)}, v{vHo}, {srd(S_WS)}, 0 offen sc1")
    e("s_waitcnt vmcnt(0)")
    lab("L_got")
    e(f"v_add_f32 v32, v32, v{vPo}")
    e("v_mov_b32 v33, v32")
    e("v_permlane32_swap_b32 v32, v33")
    e("v_add_f32 v4, v32, v33")
    e("v_cvt_pk_bf16_f32 v4, v4, v4")
    e("s_mov_b32 exec_hi, 0")
    e(f"buffer_store_short v4, v5, {srd(S_OUT)}, s{sT0} offen")
    if STAMPS:
        e("s_mov_b64 exec, -1")
    e("s_branch L_end")

NWS, NGS = 8, 4
WBASE, GBASE = 0, NWS*16384
B_RED = 4*16384
LEAD = P("LEAD", 8)

BST = {}
vW, vS, vIa, vGt = 1, 2, [4, 8], [12, 13]
def b_head():
    lab("L_B")
    cm("===== role B")
    e(f"s_cmp_lt_u32 s{sW}, 4")
    e("s_cbranch_scc1 L_Bc")
    A.reset(); nst[0] = 0
    t0, t1, t2 = 14, 15, 16
    e("s_setprio 3")
    e(f"v_bfe_u32 v{t0}, v0, 4, 4")
    e(f"v_lshlrev_b32 v{t0}, 9, v{t0}")
    e(f"v_bfe_u32 v{t1}, v0, 4, 2")
    e(f"v_lshlrev_b32 v{t1}, 2, v{t1}")
    e(f"v_xor_b32 v{t1}, v{t1}, v0")
    e(f"v_and_b32 v{t1}, 15, v{t1}")
    e(f"v_lshl_add_u32 v{t0}, v{t1}, 4, v{t0}")
    e(f"s_lshl_b32 s{sT0}, s{sHF}, 8")
    e(f"v_add_u32 v{vW}, s{sT0}, v{t0}")
    e(f"s_and_b32 s{sMB}, s{sW}, 3")
    e(f"s_lshl_b32 s{sMB}, s{sMB}, 10")
    e(f"v_bfe_u32 v{t0}, v0, 3, 5")
    e(f"v_mul_u32_u24 v{t0}, 104, v{t0}")
    e(f"v_and_b32 v{t1}, 7, v0")
    e(f"v_lshl_add_u32 v{t0}, v{t1}, 4, v{t0}")
    e(f"s_mul_i32 s{sT1}, s{sRG}, {64*104}")
    e(f"s_mov_b32 m0, s{sMB}")
    e(f"s_mov_b32 s{sT0}, 0")
    e("s_waitcnt lgkmcnt(0)")
    stamp()
    A.vmem(f"buffer_load_dwordx4 {vr(vIa[0],4)}, v{t0}, {srd(S_IDX)}, s{sT1} offen", "idx")
    A.vmem(f"buffer_load_dwordx4 {vr(vIa[1],4)}, v{t0}, {srd(S_IDX)}, s{sT1} offen offset:{32*104}", "idx")
    lab("L_lead")
    for n in range(4):
        e(f"buffer_load_dwordx4 v{vW}, {srd(S_W1)}, s{sT0} offen lds")
        e("s_addk_i32 m0, 0x1000")
        e(f"s_addk_i32 s{sT0}, 0x2000")
    e(f"s_cmp_lt_u32 s{sT0}, {LEAD*32768}")
    e("s_cbranch_scc1 L_lead")
    for f in range(LEAD):
        for n in range(4): A.vm.append(f"w{f}")
    e("s_branch L_Bl2")
    BST["sv"] = (A.vm, A.ds, A.vm_done, A.ds_done, nst[0])

def role_b():
    A.vm, A.ds, A.vm_done, A.ds_done, nst[0] = BST["sv"]
    lab("L_Bl2")
    t1 = 15
    e(f"v_lshrrev_b32 v{t1}, 4, v0")
    e(f"v_xor_b32 v{t1}, v{t1}, v0")
    e(f"v_and_b32 v{t1}, 7, v{t1}")
    e(f"v_lshlrev_b32 v{vS}, 4, v{t1}")
    if STAMPS:
        rest_srds(); rest_srds2()
    if TOUCH == 2:
        for k in (4, 5, 6, 7):
            e(f"s_load_dword s{sT3}, s[{KT+2*k}:{KT+2*k+1}], 0")
    wq = [(f, n) for f in range(LEAD, 26) for n in range(4)]
    def wpiece():
        f, n = wq.pop(0)
        e(f"s_add_u32 m0, s{sMB}, {WBASE + (f % NWS)*16384 + n*4096}")
        e(f"s_mov_b32 s{sT0}, {f*32768 + n*8192}")
        A.vmem(f"buffer_load_dwordx4 v{vW}, {srd(S_W1)}, s{sT0} offen lds", f"w{f}")
    def gpiece(f):
        c = f >> 2
        for u in range(2):
            e(f"v_add_u32_dpp v{vGt[u]}, v{vIa[u] + (f & 3)}, v{vS} row_newbcast:{c} row_mask:0xf bank_mask:0x3")
        e(f"s_add_u32 m0, s{sMB}, {GBASE + (f % NGS)*8192}")
        for u in range(2):
            e(f"v_add_u32_dpp v{vGt[u]}, v{vIa[u] + (f & 3)}, v{vS} row_newbcast:{8+c} row_mask:0xf bank_mask:0xc")
        A.vmem(f"buffer_load_dwordx4 v{vGt[0]}, {srd(S_TAB)}, 0 offen lds", f"g{f}")
        e("s_addk_i32 m0, 0x1000")
        A.vmem(f"buffer_load_dwordx4 v{vGt[1]}, {srd(S_TAB)}, 0 offen lds", f"g{f}")
    A.vm_wait("idx")
    for u in range(2):
        for d in range(4): e(f"v_lshlrev_b32 v{vIa[u]+d}, 7, v{vIa[u]+d}")
    stamp()
    for f in range(NGS): gpiece(f)
    tot = len(wq); done = 0
    nsteps = 26 - NGS
    for f in range(26):
        A.vm_wait(f"w{f}"); A.vm_wait(f"g{f}")
        e("s_barrier")
        if f in (0, 6, 12, 18, 25): stamp()
        if f >= 1 and f - 1 + NGS < 26:
            tgt = f * tot // nsteps
            while done < tgt and wq and wq[0][0] <= f - 1 + NWS:
                wpiece(); done += 1
            gpiece(f - 1 + NGS)
    assert not wq
    e("s_branch L_end")
    lab("L_Bc")
    A.reset(); nst[0] = 0
    aEm = [1, 2, 3, 4]; aW = [5, 6]
    W2 = 16; ACC = 32
    EF = lambda st, tl, s: 64 + st*32 + tl*16 + s*4
    WFr = lambda st, s: 128 + st*16 + s*4
    t0, t1, t2, t3 = 7, 9, 10, 11
    rest_srds()
    consts()
    e(f"v_and_b32 v{t0}, 31, v0")
    e(f"v_bfe_u32 v{t1}, v0, 5, 1")
    e(f"v_bfe_u32 v{t2}, v0, 1, 3")
    e(f"v_xor_b32 v{t2}, v{t2}, v{t1}")
    e(f"v_lshlrev_b32 v{t2}, 4, v{t2}")
    e(f"v_lshl_add_u32 v{t2}, v{t0}, 7, v{t2}")
    e(f"v_add_u32 v{aEm[0]}, {GBASE}, v{t2}")
    for s in range(1, 4): e(f"v_xor_b32 v{aEm[s]}, {32*s}, v{aEm[0]}")
    e(f"v_bfe_u32 v{t0}, v0, 2, 2")
    e(f"v_lshl_add_u32 v{t2}, v{t1}, 3, v{t0}")
    e(f"v_lshlrev_b32 v{t2}, 8, v{t2}")
    e(f"v_xor_b32 v{t0}, s{sW}, v{t0}")
    e(f"v_lshl_add_u32 v{t2}, v{t0}, 6, v{t2}")
    e(f"v_bfe_u32 v{t0}, v0, 4, 1")
    e(f"v_lshl_add_u32 v{t2}, v{t0}, 5, v{t2}")
    e(f"v_and_b32 v{t0}, 3, v0")
    e(f"v_lshl_add_u32 v{aW[0]}, v{t0}, 3, v{t2}")
    e(f"v_add_u32 v{aW[1]}, 0x10000, v{aW[0]}")
    e(f"s_lshl_b32 s{sT0}, s{sHF}, 8")
    e(f"s_lshl_b32 s{sT1}, s{sW}, 6")
    e(f"s_add_u32 s{sT0}, s{sT0}, s{sT1}")
    e(f"v_lshlrev_b32 v{t1}, 3, v{t1}")
    e("s_waitcnt lgkmcnt(0)")
    rest_srds2()
    e(f"s_mov_b32 s{sT2}, s{sT0}")
    for i in range(32): e(f"v_mov_b32 v{ACC+i}, 0")
    W2R = 160
    vHo, vBt = 172, 175
    def late_loads():
        for q in range(4):
            A.vmem(f"buffer_load_dwordx2 {vr(W2R + 2*q, 2)}, v{t1}, {srd(S_W2)}, s{sT2} offen offset:{16*q}", "w2")
        e(f"v_lshlrev_b32 v{vHo}, 3, v0")
        e(f"s_lshl1_add_u32 s{sT3}, s{sRG}, s{sHF}")
        e(f"s_lshl_b32 s{sT3}, s{sT3}, 9")
        e(f"s_lshl_b32 s{sT0}, s{sW}, 28")
        e(f"s_add_u32 s{sT3}, s{sT3}, s{sT0}")
        A.vmem(f"buffer_load_dword v{vBt}, v{vHo}, {srd(S_WS)}, s{sT3} offen offset:4 sc1", "tag")
        if TOUCH == 1:
            e("s_mov_b64 exec, 1")
            e(f"v_mov_b32 v{t0}, 0")
            for b in (S_OUT, S_DBG, S_WS):
                A.vmem(f"buffer_load_dword v{t3}, v{t0}, {srd(b)}, 0 offen", "pf")
            e("s_mov_b64 exec, -1")
    def w2_unpack():
        A.vm_wait("w2")
        for d in range(8):
            e(f"v_lshlrev_b32 v{W2 + 2*d}, 16, v{W2R + d}")
            e(f"v_and_b32 v{W2 + 2*d + 1}, s{sMSK}, v{W2R + d}")
    stamp()
    def reads(f, s):
        st = f & 1
        ws = f % NWS
        for u in range(2):
            A.lds(f"ds_read_b64_tr_b16 {vr(WFr(st, s) + 2*u, 2)}, v{aW[ws >> 2]} offset:{(ws & 3)*16384 + s*4096 + u*1024}", f"r{f}_{s}")
        for tl in range(2):
            A.lds(f"ds_read_b128 {vr(EF(st, tl, s), 4)}, v{aEm[s]} offset:{(f % NGS)*8192 + tl*4096}", f"r{f}_{s}")
    def mms(f, s):
        st = f & 1
        for tl in range(2): mf32(ACC + 16*tl, WFr(st, s), EF(st, tl, s), ACC + 16*tl)
    for f in range(26):
        cm(f"-- B step {f}")
        e("s_barrier")
        if f in (0, 6, 12, 18, 25): stamp()
        reads(f, 0); reads(f, 1)
        if f: mms(f - 1, 2)
        reads(f, 2)
        if f: mms(f - 1, 3)
        A.ds_wait(f"r{f}_0")
        reads(f, 3)
        mms(f, 0)
        A.ds_wait(f"r{f}_1")
        mms(f, 1)
        if f == 23: late_loads()
        A.ds_all()
    mms(25, 2); mms(25, 3)
    w2_unpack()
    stamp()
    C0 = 12
    e(f"v_mov_b32 v{C0}, s{sC0}"); e(f"v_mov_b32 v{C0+1}, s{sC0}")
    e(f"v_mov_b32 v{C0+2}, s{sC1}"); e(f"v_mov_b32 v{C0+3}, s{sC1}")
    S = 168
    TT = 64
    for tl in range(2):
        ls = []
        for p in range(8):
            x = ACC + 16*tl + 2*p; t = TT + 2*p
            with Cap() as c:
                e(f"v_pk_mul_f32 {vr(t,2)}, {vr(x,2)}, {vr(x,2)}")
                e(f"v_pk_fma_f32 {vr(t,2)}, {vr(t,2)}, {vr(C0+2,2)}, {vr(C0,2)}")
                e(f"v_pk_mul_f32 {vr(t,2)}, {vr(t,2)}, {vr(x,2)}")
                e(f"v_exp_f32 v{t}, v{t}")
                e(f"v_exp_f32 v{t+1}, v{t+1}")
                e(f"v_pk_mul_f32 {vr(x,2)}, {vr(x,2)}, {vr(W2 + 2*p,2)}")
                e(f"v_pk_add_f32 {vr(t,2)}, {vr(t,2)}, 1.0 op_sel_hi:[1,0]")
                e(f"v_rcp_f32 v{t}, v{t}")
                e(f"v_rcp_f32 v{t+1}, v{t+1}")
                if p == 0: e(f"v_pk_mul_f32 {vr(S + 2*tl,2)}, {vr(x,2)}, {vr(t,2)}")
                else: e(f"v_pk_fma_f32 {vr(S + 2*tl,2)}, {vr(x,2)}, {vr(t,2)}, {vr(S + 2*tl,2)}")
            ls.append(c.l)
        zipl(ls)
    e(f"v_add_f32 v{S}, v{S}, v{S+1}")
    e(f"v_add_f32 v{S+2}, v{S+2}, v{S+3}")
    e(f"v_lshlrev_b32 v1, 2, v0")
    e(f"v_add_u32 v1, {B_RED}, v1")
    e(f"v_permlane32_swap_b32 v{S}, v{S+2}")
    e(f"v_add_f32 v{S}, v{S}, v{S+2}")
    e(f"ds_write_b32 v1, v{S}")
    e("s_waitcnt lgkmcnt(0)")
    e("s_barrier")
    stamp()
    e(f"s_cmp_lg_u32 s{sW}, 0")
    e("s_cbranch_scc1 L_end")
    for k in range(1, 4): e(f"ds_read_b32 v{16+k}, v1 offset:{256*k}")
    e(f"s_lshl_b32 s{sT1}, s{sRG}, 2")
    e(f"s_add_u32 s{sT2}, s{sHF}, 1")
    e(f"v_mov_b32 v6, s{sT2}")
    e("s_waitcnt vmcnt(0) lgkmcnt(0)")
    e(f"v_add_u32 v{vBt}, 1, v{vBt}")
    e(f"v_add_f32 v{S}, v{S}, v17")
    e(f"v_add_f32 v18, v18, v19")
    e(f"v_add_f32 v{vBt-1}, v{S}, v18")
    e(f"buffer_store_dwordx2 {vr(vBt-1,2)}, v{vHo}, {srd(S_WS)}, s{sT3} offen sc1")
    e("s_waitcnt vmcnt(0)")
    e("s_mov_b64 exec, 1")
    e(f"buffer_atomic_or v6, off, {srd(S_DBG)}, s{sT1} sc1")
    if STAMPS: e("s_mov_b64 exec, -1")

def fin():
    lab("L_end")
    if STAMPS:
        e("s_waitcnt vmcnt(0)")
        e("s_memtime s[100:101]")
        e("s_waitcnt lgkmcnt(0)")
        e(f"s_lshl3_add_u32 s{sT0}, s2, s{sW}")
        e(f"s_lshl_b32 s{sT0}, s{sT0}, 7")
        e(f"s_add_u32 s{sT0}, s{sT0}, 0x100000")
        e("s_mov_b64 exec, 1")
        e("v_mov_b32 v0, 0")
        regs_ = [4] + list(range(70, 84)) + list(range(84, 94)) + [100]
        for i, r in enumerate(regs_):
            e(f"v_mov_b32 v1, s{r}")
            e(f"buffer_store_dword v1, v0, {srd(S_WS)}, s{sT0} offen offset:{4*i}")
    lab("L_exit")
    e("s_endpgm")
    lab("L_codeend")

def main():
    A.raw("; Kernarg: in0 idx, in1 table, in2 se_w1, in3 se_w2, in4 w_bi, in5 w_cross, in6 w_deep1, in7 w_deep2, out, debug, ws")
    A.raw(f"; @launch grid=(256,1,1) block=(512,1,1) lds={LDS_TOTAL}")
    for t in ['.amdgcn_target "amdgcn-amd-amdhsa--gfx950"', ".text", f".globl {KN}", ".p2align 12", f".type {KN},@function", f"{KN}:"]: A.raw(t)
    entry()
    role_a()
    role_b()
    fin()
    for t in ['.section .rodata,"a"', ".p2align 6", f".amdhsa_kernel {KN}", "  .amdhsa_next_free_vgpr 256", "  .amdhsa_next_free_sgpr 102",
              "  .amdhsa_accum_offset 256", "  .amdhsa_group_segment_fixed_size 0", "  .amdhsa_kernarg_size 88", "  .amdhsa_user_sgpr_count 2",
              "  .amdhsa_user_sgpr_kernarg_segment_ptr 1", "  .amdhsa_system_sgpr_workgroup_id_x 1", ".end_amdhsa_kernel"]: A.raw(t)
    if "nodot" in X:
        import re
        A.L = [re.sub(r"v_dot2c?_f32_bf16 (v\d+), (v\d+), (v\d+).*", r"v_cvt_pk_bf16_f32 \1, \2, \3", x) for x in A.L]
    out = autonop([x for x in A.L if x is not None])
    open(sys.argv[1], "w").write("\n".join(out) + "\n")
main()
```

```python
import re, struct

class Asm:
    def __init__(s):
        s.L = []
        s.vm = []
        s.ds = []
        s.vm_done = -1
        s.ds_done = -1
        s.alias = {}
    def e(s, t): s.L.append("    " + t)
    def lab(s, t): s.L.append(t + ":")
    def cm(s, t): s.L.append("    ; " + t)
    def raw(s, t): s.L.append(t)
    def reset(s):
        s.vm = []; s.ds = []; s.vm_done = -1; s.ds_done = -1
    def vmem(s, t, tag):
        s.e(t); s.vm.append(tag)
    def lds(s, t, tag="x"):
        if len(s.ds) - 1 - s.ds_done >= 15:
            s.ds_done = len(s.ds) - 1 - 11
            s.e("s_waitcnt lgkmcnt(11)")
        s.e(t); s.ds.append(tag)
        assert len(s.ds) - 1 - s.ds_done <= 15, "more than 15 LDS ops outstanding: " + t
    def vm_wait(s, tag):
        last = max(i for i, t in enumerate(s.vm) if t == tag)
        if last <= s.vm_done: return
        n = len(s.vm) - 1 - last
        assert n <= 63
        s.vm_done = last
        s.e(f"s_waitcnt vmcnt({n})")
    def vm_all(s):
        s.vm_done = len(s.vm) - 1
        s.e("s_waitcnt vmcnt(0)")
    def ds_wait(s, tag):
        last = max(i for i, t in enumerate(s.ds) if t == tag or t == s.alias.get(tag))
        if last <= s.ds_done: return
        n = len(s.ds) - 1 - last
        s.ds_done = last
        s.e(f"s_waitcnt lgkmcnt({n})")
    def ds_all(s):
        s.ds_done = len(s.ds) - 1
        s.e("s_waitcnt lgkmcnt(0)")

def vr(b, n): return f"v[{b}:{b+n-1}]" if n > 1 else f"v{b}"
def sr(b, n): return f"s[{b}:{b+n-1}]" if n > 1 else f"s{b}"
def fbits(x): return "0x%08x" % struct.unpack("<I", struct.pack("<f", x))[0]

_tok = re.compile(r"^(-?)(abs\()?([vsa])(?:\[(\d+):(\d+)\]|(\d+))\)?$")
def regs(op):
    op = op.strip()
    if op == "vcc": return {("s", 106), ("s", 107)}
    if op == "vcc_lo": return {("s", 106)}
    if op == "exec": return {("s", 126), ("s", 127)}
    if op == "m0": return {("s", 124)}
    m = _tok.match(op)
    if not m: return set()
    k = m.group(3)
    if m.group(4): return {(k, i) for i in range(int(m.group(4)), int(m.group(5)) + 1)}
    return {(k, int(m.group(6)))}

TRANS = ("v_exp_f32", "v_log_f32", "v_rcp_f32", "v_rsq_f32", "v_sqrt_f32", "v_sin_f32", "v_cos_f32")
class I:
    def __init__(s, line):
        s.line = line
        t = line.strip().split(";")[0].strip()
        p = t.split(None, 1)
        s.op = p[0]
        rest = p[1] if len(p) > 1 else ""
        rest = re.sub(r"\s[a-z_]+:\[[^\]]*\]", "", rest)
        ops = [x.strip() for x in rest.split(",")] if rest else []
        if ops:
            last = ops[-1].split()
            s.mods = last[1:]; ops[-1] = last[0]
        else: s.mods = []
        s.ops = ops
        op = s.op
        s.mfma = op.startswith("v_mfma")
        s.valu = op.startswith("v_") and not s.mfma
        s.dot = op.startswith("v_dot")
        s.trans = op.replace("_e32", "").replace("_e64", "") in TRANS
        s.dpp = op.endswith("_dpp")
        s.perml = op.startswith("v_permlane")
        s.rdlane = op.startswith("v_readlane") or op.startswith("v_readfirstlane")
        s.vmem = op.startswith("buffer_") or op.startswith("global_")
        s.dma = s.vmem and ("lds" in s.mods or "_lds_" in op)
        s.dsop = op.startswith("ds_")
        s.salu = op.startswith("s_")
        s.w = set(); s.r = set(); s.srcC = set(); s.srcAB = set()
        R = [regs(x) for x in ops]
        if s.mfma:
            s.w = R[0]; s.srcAB = R[1] | R[2]; s.srcC = R[3]; s.r = s.srcAB | s.srcC
            s.passes = 8 if "32x32" in op else 4
        elif s.valu:
            if s.perml or op.startswith("v_swap"):
                s.w = R[0] | R[1]; s.r = R[0] | R[1]
            else:
                s.w = R[0]
                for x in R[1:]: s.r |= x
                if op.startswith("v_fmac") or op.startswith("v_dot2c") or s.dpp or op.startswith("v_writelane"): s.r |= R[0]
                if op.startswith(("v_add_co", "v_sub_co", "v_addc_co")): s.w |= R[1]
        elif s.dsop:
            if op.startswith(("ds_read", "ds_bpermute", "ds_swizzle", "ds_permute")):
                s.w = R[0]
                for x in R[1:]: s.r |= x
            else:
                for x in R: s.r |= x
        elif s.vmem:
            if "_load" in op and not s.dma:
                s.w = R[0]
                for x in R[1:]: s.r |= x
            else:
                for x in R: s.r |= x
                if "atomic" in op and "sc0" in s.mods: s.w = R[0]
            if s.dma: s.r |= {("s", 124)}
            s.wide = ("store_dwordx3" in op or "store_dwordx4" in op or "cmpswap_x2" in op)
        elif s.salu:
            if op.startswith(("s_cmp", "s_cbranch", "s_branch", "s_waitcnt", "s_barrier", "s_nop", "s_endpgm", "s_setprio", "s_sleep", "s_bitcmp")):
                for x in R: s.r |= x
            elif R:
                s.w = R[0]
                if op.startswith("s_addk"): s.r |= R[0]
                for x in R[1:]: s.r |= x
        s.states = int(ops[0], 0) + 1 if op == "s_nop" else 1

def need(p, c):
    n = 0
    vw = {x for x in p.w if x[0] in "va"}
    sw = {x for x in p.w if x[0] == "s"}
    if p.valu:
        if c.mfma and vw & c.r: n = max(n, 3 if p.dot else 2)
        if p.dot and c.op != p.op and (vw & (c.r | c.w)): n = max(n, 3)
        if p.dot and c.op == p.op:
            ab = set()
            for x in c.ops[1:3]: ab |= regs(x)
            if vw & ab: n = max(n, 3)
        if c.perml and vw & c.r: n = max(n, 2)
        if c.dpp and vw & regs(c.ops[1]): n = max(n, 2)
        if c.rdlane and vw & c.r: n = max(n, 1)
        if p.trans and c.valu and not c.trans and vw & c.r: n = max(n, 1)
        if p.trans and c.mfma and vw & c.r: n = max(n, 2)
        if sw:
            if (c.valu or c.mfma) and sw & c.r: n = max(n, 4 if c.rdlane else 2)
            if c.valu and c.op.startswith("v_cndmask") and len(c.ops) == 3 and sw & regs("vcc"): n = max(n, 2)
            if c.vmem and sw & c.r: n = max(n, 5)
            if c.salu and sw & c.r: n = max(n, 1)
    if p.mfma:
        big = {4: 8, 8: 12}[p.passes]
        if c.mfma:
            if vw & c.srcAB: n = max(n, big)
            if vw & c.srcC:
                if not (c.srcC == vw and c.passes == p.passes): n = max(n, {4: 6, 8: 10}[p.passes])
            if vw & c.w and not (vw & c.srcC): n = max(n, {4: 6, 8: 10}[p.passes])
        elif (c.valu or c.vmem or c.dsop) and vw & (c.r | c.w): n = max(n, big)
        if c.valu and p.srcC & c.w: n = max(n, {4: 3, 8: 7}[p.passes])
        if (c.dsop or c.vmem) and p.srcC & c.w: n = max(n, {4: 3, 8: 7}[p.passes])
    if p.salu and ("s", 124) in p.w and c.dma: n = max(n, 1)
    if p.vmem and getattr(p, "wide", False) and (c.valu or c.dsop or c.vmem) and regs(p.ops[0]) & c.w: n = max(n, 2)
    return n

def autonop(lines):
    out = []; hist = []; ins = 0
    for ln in lines:
        t = ln.strip()
        if t.endswith(":") and not ln.startswith(" "):
            for k in range(len(hist) - 1, -1, -1):
                if hist[k].op.startswith("s_cbranch") and hist[k].ops and hist[k].ops[0] == t[:-1]:
                    for p in hist[k+1:]: p.states = 0
                    break
        if not t or t.startswith((";", ".")) or t.endswith(":") or not ln.startswith("    "):
            out.append(ln); continue
        c = I(ln)
        dist = 0; pad = 0
        for p in reversed(hist):
            nd = need(p, c)
            if nd > dist: pad = max(pad, nd - dist)
            dist += p.states
            if dist >= 20: break
        while pad > 0:
            k = min(pad, 16)
            nop = I(f"    s_nop {k-1}")
            out.append(nop.line); hist.append(nop); pad -= k; ins += 1
        out.append(ln); hist.append(c)
        if c.op in ("s_branch", "s_endpgm"): hist = []
        if len(hist) > 200: hist = hist[-200:]
    return out
```

```python
import os, sys, math
sys.path.insert(0, os.path.dirname(os.path.abspath(__file__)))
from asmlib import *

STAMPS = int(os.environ.get("STAMPS", "0"))
def P(name, d): return int(os.environ.get(name, d))
KN = "standalone__deep_cross_fibinet__recsys_kernel"
A = Asm(); e = A.e; lab = A.lab; cm = A.cm

S_IDX, S_TAB, S_W1, S_WC, S_WBI, S_SW1, S_SW2, S_W2, S_OUT, S_DBG, S_WS = [8 + 4*i for i in range(11)]
SIZE = {S_IDX: 4096*104, S_TAB: 100000*128, S_W1: 1664*512, S_WC: 86528*2, S_WBI: 8192, S_SW1: 676, S_SW2: 676, S_W2: 512,
        S_OUT: 8192, S_DBG: 256, S_WS: 1 << 28}
sW, sRG, sHF, sX16 = 52, 53, 54, 55
sT0, sT1, sT2, sT3 = 56, 57, 58, 59
sMB, sMB2, sK6, sM6 = 60, 61, 62, 63
sMa, sMa3, sMb, sKa3 = 6, 7, 3, 55
sLO, sHI, sC0, sC1, sMSK, sNL = 64, 65, 66, 67, 68, 69
KT = 84
def srd(b): return f"s[{b}:{b+3}]"

nst = [0]
FS = P("FS", 6)
fst = [0]
def fstamp():
    if STAMPS != 3: return
    k = fst[0]; fst[0] += 1
    e(f"s_memtime s[{70 + 2*k}:{71 + 2*k}]")
def stamp():
    if not STAMPS or STAMPS == 3: return
    k = nst[0]; nst[0] += 1
    assert k < 24
    e("s_memtime s[100:101]")
    e("s_waitcnt lgkmcnt(0)")
    e(f"v_writelane_b32 v{VST[0]}, s100, {k + 1}")
    e("s_memrealtime s[100:101]")
    e("s_waitcnt lgkmcnt(0)")
    e(f"v_writelane_b32 v{VST[0]}, s100, {k + 33}")
    A.ds_done = len(A.ds) - 1
VST = [26]

def mf16(d, a, b, c=None):
    e(f"v_mfma_f32_16x16x32_bf16 {vr(d,4)}, {vr(a,4)}, {vr(b,4)}, {'0' if c is None else vr(c,4)}")
def mf32(d, a, b, c=None):
    e(f"v_mfma_f32_32x32x16_bf16 {vr(d,16)}, {vr(a,4)}, {vr(b,4)}, {'0' if c is None else vr(c,16)}")

def mksrd(b):
    e(f"s_mov_b32 s{b+2}, {SIZE[b]}")
    e(f"s_mov_b32 s{b+3}, 0x00020000")
def cpsrd(b, k):
    e(f"s_mov_b64 s[{b}:{b+1}], s[{KT+2*k}:{KT+2*k+1}]")

def entry():
    e("s_cmp_ge_u32 s2, 256")
    e("s_cbranch_scc1 L_exit")
    if STAMPS:
        e("s_memtime s[4:5]")
        e("s_memrealtime s[70:71]")
    e(f"s_load_dwordx2 s[{S_IDX}:{S_IDX+1}], s[0:1], 0")
    e(f"s_load_dwordx2 s[{S_W1}:{S_W1+1}], s[0:1], 48")
    e(f"s_load_dwordx2 s[{S_TAB}:{S_TAB+1}], s[0:1], 8")
    e(f"s_load_dwordx8 s[{KT}:{KT+7}], s[0:1], 16")
    e(f"s_load_dwordx8 s[{KT+8}:{KT+15}], s[0:1], 56")
    e("v_lshrrev_b32 v1, 6, v0")
    e(f"s_lshr_b32 s{sT0}, s2, 5")
    e(f"v_readfirstlane_b32 s{sW}, v1")
    e(f"s_and_b32 s{sT1}, s2, 7")
    e(f"s_lshl3_add_u32 s{sRG}, s{sT0}, s{sT1}")
    e(f"s_bfe_u32 s{sHF}, s2, 0x10003")
    if CPF:
        cm("pull the kernel's code into L2: one 128-byte line per wave")
        e(f"s_getpc_b64 s[{S_WC}:{S_WC+1}]")
        lab("L_pc")
        e(f"s_mov_b32 s{S_WC+2}, L_codeend-L_pc")
        e(f"s_mov_b32 s{S_WC+3}, 0x00020000")
        e(f"s_andn2_b32 s{sT0}, s2, 7")
        e(f"s_add_u32 s{sT0}, s{sT0}, s{sW}")
        e(f"s_lshl_b32 s{sT0}, s{sT0}, 7")
        e("s_mov_b64 exec, 1")
        e(f"buffer_load_dword v8, off, {srd(S_WC)}, s{sT0}")
        e("s_mov_b64 exec, -1")
    mksrd(S_IDX); mksrd(S_W1); mksrd(S_TAB)
    e("s_bitcmp1_b32 s2, 4")
    e("s_cbranch_scc1 L_B")

def rest_srds():
    for b in (S_SW1, S_SW2, S_WBI, S_WC, S_W2, S_OUT, S_DBG, S_WS): mksrd(b)
def rest_srds2():
    for k, b in enumerate((S_SW1, S_SW2, S_WBI, S_WC, S_W2, S_OUT, S_DBG, S_WS)): cpsrd(b, k)

def consts():
    c0 = -2.0 * math.sqrt(2.0 / math.pi) * math.log2(math.e)
    e(f"s_mov_b32 s{sLO}, 0x05040100")
    e(f"s_mov_b32 s{sHI}, 0x07060302")
    e(f"s_mov_b32 s{sC0}, {fbits(c0)}")
    e(f"s_mov_b32 s{sC1}, {fbits(c0 * 0.044715)}")
    e(f"s_mov_b32 s{sMSK}, 0xffff0000")
    e(f"s_mov_b32 s{sNL}, {fbits(-math.log2(math.e))}")

R0, R1, R2 = 0, 53248, 106496
MISC = 147456
L_WBI, L_SE1, L_SE2, L_AV, L_RED = MISC, MISC + 8192, MISC + 9216, MISC + 10240, MISC
LDS_TOTAL = 163840
vSw, vI, vG, vPf, vDum = 1, 2, [5, 6], 7, 8
aE = [[10, 11], [12, 13]]
aC, aC6, aC2 = [14, 15], [16, 17], [22, 23]
vJ = [18, 19]
vFl, vPw = 22, 23
WFB = 0x40000
L_PST = R2
aAw = 28; aAr = [29, 30]; aRed = 31
vHo, vTag, vPo = 20, 21, 24
XF, CAP, RAW, WF, T = 32, 96, 152, 180, 196
AF, DD, WB, ZF, SE1F, SE2F = T, WF, RAW, RAW + 8, RAW + 12, RAW + 16
RING = [96, 100, 104, 108, 112, 116, RAW + 20, RAW + 24]
UH, XQ, AJ = 120, RAW, WF
TS = [[T + 4*i for i in range(8)], [228, 232, 236, 240, 244, 248, 252, RAW + 16]]
ACC = [2, 10]
AKL = [[1, 6, 7], [8, 9, 27]]
LF = [[[2, 3], [4, 5]], [[10, 11], [12, 13]]]
def xf(el, t, q): return XF + el*8 + t*4 + q
GAHEAD = P("GAHEAD", 6)
TOUCH = P("TOUCH", 0)
CPF = P("CPF", 1)
X = os.environ.get("X", "").split(",")
NPF0 = P("NPF0", 2)
PFAT = P("PFAT", 1)
SPEC = P("SPEC", 14)
NPB = P("NPB", 0)
FLD = P("FLD", 9)
FSIG = P("FSIG", 4)
FCHK = P("FCHK", 12)
ABAR = P("ABAR", 3)
PEARLY = P("PEARLY", 1)
DBLST = P("DBLST", 0)
PFB = [(S_W1, 512 + 1024*k) for k in range(6)] + [(S_WC, 0), (S_WC, 1024)]

def a_gaddr(s, h):
    g = vG[s & 1]
    c = s >> 1; r = vI + 2*(s & 1)
    if h == 0: e(f"v_add_u32_dpp v{g}, v{r}, v{vSw} row_newbcast:{c} row_mask:0xf bank_mask:0x3")
    else: e(f"v_add_u32_dpp v{g}, v{r}, v{vSw} row_newbcast:{8+c} row_mask:0xf bank_mask:0xc")
def a_gissue(s):
    A.vmem(f"buffer_load_dwordx4 v{vG[s & 1]}, {srd(S_TAB)}, 0 offen lds", f"g{s}")
def a_gather(s):
    a_gaddr(s, 0)
    e(f"s_add_u32 m0, s{sMB}, {s*8192}")
    a_gaddr(s, 1)
    a_gissue(s)

def gelu(dst, x, t0, vc0):
    e(f"v_mul_f32 v{t0}, v{x}, v{x}")
    e(f"v_fma_f32 v{t0}, v{t0}, s{sC1}, v{vc0}")
    e(f"v_mul_f32 v{t0}, v{t0}, v{x}")
    e(f"v_exp_f32 v{t0}, v{t0}")
    e(f"v_add_f32 v{t0}, 1.0, v{t0}")
    e(f"v_rcp_f32 v{t0}, v{t0}")
    e(f"v_mul_f32 v{dst}, v{x}, v{t0}")

def zipl(lists):
    n = max(len(x) for x in lists)
    for i in range(n):
        for x in lists:
            if i < len(x): A.L.append(x[i])
class Cap:
    def __enter__(s): s.sv = A.L; A.L = []; s.l = A.L; return s
    def __exit__(s, *a): A.L = s.sv

def setexec(m32):
    e(f"s_mov_b32 exec_lo, {m32:#x}")
    e(f"s_mov_b32 exec_hi, {m32:#x}")

def role_a():
    A.reset()
    U, AK, ACCP = 228, 236, 252
    t0, t1, t2, t3, t4, t5 = U, U+1, U+2, U+3, U+4, U+5
    L15, G, aS2, aS1, aS1t, aWb = AK, AK+1, AK+2, AK+3, AK+4, AK+5
    TM = T
    cm("===== role A")
    e(f"v_bfe_u32 v{t0}, v0, 3, 5")
    e(f"v_mul_u32_u24 v{t0}, 104, v{t0}")
    e(f"v_and_b32 v{t1}, 7, v0")
    e(f"v_lshl_add_u32 v{t0}, v{t1}, 4, v{t0}")
    e(f"v_lshrrev_b32 v{t1}, 8, v0")
    e(f"v_lshl_add_u32 v{t0}, v{t1}, 2, v{t0}")
    e(f"s_lshl1_add_u32 s{sT2}, s{sRG}, s{sHF}")
    e(f"s_mul_i32 s{sT2}, s{sT2}, {32*104}")
    e(f"s_lshl_b32 s{sMB}, s{sW}, 10")
    e(f"s_lshr_b32 s{sT0}, s2, 5")
    e(f"s_lshl1_add_u32 s{sT0}, s{sT0}, s{sHF}")
    e(f"s_lshl_b32 s{sT0}, s{sT0}, 13")
    e(f"v_and_b32 v{t2}, 63, v0")
    e(f"v_lshl_add_u32 v{vPf}, v{t2}, 7, s{sT0}")
    e(f"v_lshlrev_b32 v{t3}, 4, v0")
    e(f"s_cmp_lt_u32 s{sW}, 2")
    e(f"s_cselect_b32 s{sT3}, 4, 7")
    e(f"s_cselect_b32 s{sT0}, 0, s{sT0}")
    e(f"v_lshlrev_b32 v{t4}, s{sT3}, v{t2}")
    e(f"s_cselect_b32 s{S_SW1+2}, 676, s{S_W1+2}")
    e(f"s_mov_b32 s{S_SW1+3}, 0x00020000")
    e(f"s_sub_u32 s{sT1}, s{sW}, {8 - NPF0}")
    e(f"s_lshl_b32 s{sT1}, s{sT1}, 17")
    e(f"s_add_u32 s{sT1}, s{sT1}, 65536")
    e(f"s_min_u32 s{sT1}, s{sT1}, 0x7f000000")
    e(f"s_cmp_lt_u32 s{sW}, 2")
    e(f"s_cselect_b32 s{sT1}, 0, s{sT1}")
    e(f"s_add_u32 s{sT1}, s{sT1}, s{sT0}")
    e(f"s_min_u32 s{sT3}, s{sMB}, 2048")
    mksrd(S_WBI)
    e(f"s_add_u32 m0, s{sMB}, {L_WBI}")
    e("s_waitcnt lgkmcnt(0)")
    A.vmem(f"buffer_load_dwordx3 {vr(vI,3)}, v{t0}, {srd(S_IDX)}, s{sT2} offen", "idx")
    cpsrd(S_WBI, 2)
    e(f"s_cmp_eq_u32 s{sW}, 0")
    e(f"s_cselect_b64 s[{S_SW1}:{S_SW1+1}], s[{KT}:{KT+1}], s[{KT+2}:{KT+3}]")
    e(f"s_cmp_lt_u32 s{sW}, 2")
    e(f"s_cselect_b64 s[{S_SW1}:{S_SW1+1}], s[{S_SW1}:{S_SW1+1}], s[{S_W1}:{S_W1+1}]")
    if STAMPS == 2: stamp()
    e("s_barrier")
    A.vmem(f"buffer_load_dwordx4 v{t3}, {srd(S_WBI)}, 0 offen lds", "sm")
    e(f"s_add_u32 m0, s{sT3}, {L_SE1}")
    A.vmem(f"buffer_load_dwordx4 v{t4}, {srd(S_SW1)}, s{sT1} offen lds", "se")
    e("s_branch L_A2")
    sv = (A.vm, A.ds, A.vm_done, A.ds_done, nst[0])
    b_head()
    A.vm, A.ds, A.vm_done, A.ds_done, nst[0] = sv
    lab("L_A2")
    cm("this workgroup's piece of w_cross: task x16 = (part, jt, kb); wave t loads the 16 lines (i(t), j(jl))")
    sKb, sJt, sPt, sWF = sM6, 55, 3, sK6
    e(f"s_lshr_b32 s{sT3}, s2, 5")
    e(f"s_lshl1_add_u32 s{sT3}, s{sT3}, s{sHF}")
    e(f"s_and_b32 s{sKb}, s{sT3}, 3")
    e(f"s_bfe_u32 s{sJt}, s{sT3}, 0x10002")
    e(f"s_lshr_b32 s{sPt}, s{sT3}, 3")
    e(f"v_bfe_u32 v{t1}, v0, 4, 1")
    e(f"v_bfe_u32 v{t2}, v0, 3, 1")
    e(f"v_lshl_add_u32 v{t1}, v{t1}, 3, v{t2}")
    e(f"v_bfe_u32 v{t2}, v0, 5, 1")
    e(f"v_lshl_add_u32 v{t1}, v{t2}, 1, v{t1}")
    e(f"s_lshl_b32 s{sT0}, s{sJt}, 4")
    e(f"v_add_u32 v{t1}, s{sT0}, v{t1}")
    e(f"v_add_u32 v{t2}, 24, v{t2}")
    e(f"v_add_u32 v{t5}, 4, v{t1}")
    e(f"v_min_u32 v{t5}, 25, v{t5}")
    e(f"v_min_u32 v{t1}, v{t2}, v{t1}")
    e(f"v_lshrrev_b32 v{t2}, 3, v0")
    e(f"v_xor_b32 v{t2}, v{t2}, v0")
    e(f"v_and_b32 v{t2}, 7, v{t2}")
    e(f"v_lshlrev_b32 v{t2}, 4, v{t2}")
    e(f"v_lshl_add_u32 v{t1}, v{t1}, 7, v{t2}")
    e(f"v_lshl_add_u32 v{t5}, v{t5}, 7, v{t2}")
    e(f"s_lshr_b32 s{sT0}, s{sW}, 1")
    e(f"s_lshl2_add_u32 s{sT0}, s{sT0}, s{sKb}")
    e(f"s_and_b32 s{sT1}, s{sW}, 1")
    e(f"s_lshl1_add_u32 s{sT0}, s{sT0}, s{sT1}")
    e(f"s_add_u32 s{sT1}, s{sT1}, 24")
    e(f"s_min_u32 s{sT0}, s{sT0}, s{sT1}")
    e(f"s_mul_i32 s{sT1}, s{sPt}, 26")
    e(f"s_add_u32 s{sT0}, s{sT0}, s{sT1}")
    e(f"s_mul_i32 s{sT0}, s{sT0}, 3328")
    mksrd(S_WC); cpsrd(S_WC, 3)
    e(f"s_lshl_b32 s{sT1}, s{sMB}, 1")
    e(f"s_add_u32 m0, s{sT1}, {L_PST}")
    e(f"s_and_b32 s{sWF}, s2, 7")
    A.vmem(f"buffer_load_dwordx4 v{t1}, {srd(S_WC)}, s{sT0} offen lds", "pc")
    e("s_addk_i32 m0, 0x400")
    e(f"s_lshl3_add_u32 s{sWF}, s{sWF}, s{sW}")
    A.vmem(f"buffer_load_dwordx4 v{t5}, {srd(S_WC)}, s{sT0} offen lds", "pc")
    e(f"s_lshl_b32 s{sWF}, s{sWF}, 15")
    e(f"s_add_u32 s{sMB2}, s{sWF}, {WFB}")
    e(f"s_lshl_b32 s{sT3}, s{sT3}, 8")
    e(f"s_add_u32 s{sWF}, s{sMB2}, s{sT3}")
    e(f"v_lshrrev_b32 v{t1}, 4, v0")
    e(f"v_xor_b32 v{t1}, v{t1}, v0")
    e(f"v_and_b32 v{t1}, 7, v{t1}")
    e(f"v_lshlrev_b32 v{vSw}, 4, v{t1}")
    e(f"v_and_b32 v{L15}, 15, v0")
    e(f"v_bfe_u32 v{G}, v0, 4, 2")
    e(f"v_lshrrev_b32 v{t0}, 1, v{L15}")
    e(f"s_and_b32 s{sT0}, s{sW}, 1")
    e(f"s_lshl_b32 s{sT0}, s{sT0}, 11")
    e(f"v_lshl_add_u32 v{t1}, v{L15}, 7, s{sT0}")
    e(f"v_xor_b32 v{t2}, v{G}, v{t0}")
    e(f"v_lshl_add_u32 v{aE[0][0]}, v{t2}, 4, v{t1}")
    e(f"v_xor_b32 v{aE[1][0]}, 64, v{aE[0][0]}")
    e(f"v_xor_b32 v{aE[0][1]}, 0x800, v{aE[0][0]}")
    e(f"v_xor_b32 v{aE[1][1]}, 0x800, v{aE[1][0]}")
    e(f"v_xor_b32 v{t2}, s{sW}, v{t0}")
    e(f"v_lshlrev_b32 v{t2}, 4, v{t2}")
    e(f"v_add_u32 v{t3}, v{t2}, v{t1}")
    e(f"v_lshl_add_u32 v{aC[0]}, v{G}, 13, v{t3}")
    e(f"v_xor_b32 v{aC[1]}, 0x800, v{aC[0]}")
    e(f"v_min_u32 v{t4}, 1, v{G}")
    e(f"v_lshl_add_u32 v{aC6[0]}, v{t4}, 12, v{t3}")
    e(f"v_add_u32 v{aC6[0]}, {24*4096}, v{aC6[0]}")
    e(f"v_xor_b32 v{aC6[1]}, 0x800, v{aC6[0]}")
    e(f"v_lshrrev_b32 v{t0}, 2, v{L15}")
    e(f"v_and_b32 v{t1}, 1, v{L15}")
    e(f"v_lshl_add_u32 v{t2}, v{t0}, 1, v{t1}")
    e(f"v_lshlrev_b32 v{t3}, 1, v{t2}")
    e(f"v_lshl_add_u32 v{t3}, v{G}, 10, v{t3}")
    e(f"s_lshl_b32 s{sT0}, s{sW}, 4")
    e(f"s_add_u32 s{sT0}, s{sT0}, {L_WBI}")
    e(f"v_add_u32 v{aWb}, s{sT0}, v{t3}")
    e(f"s_bfe_u32 s{sT0}, s{sW}, 0x10001")
    e(f"v_bfe_u32 v{t3}, v{L15}, 1, 1")
    e(f"v_lshl_add_u32 v{t3}, v{t3}, 3, v{t2}")
    e(f"s_lshl_b32 s{sT1}, s{sT0}, 4")
    e(f"v_add_u32 v{t3}, s{sT1}, v{t3}")
    e(f"v_add_u32 v{t4}, 24, v{t0}")
    e(f"v_min_u32 v{t3}, v{t3}, v{t4}")
    e(f"s_mov_b32 s{sT2}, {L_SE1}")
    e(f"v_mov_b32 v{t5}, s{sT2}")
    e(f"s_movk_i32 s{sT3}, 208")
    e(f"v_mad_u32_u24 v{t4}, v{G}, s{sT3}, v{t5}")
    e(f"v_lshl_add_u32 v{aS2}, v{t3}, 1, v{t4}")
    e(f"v_lshl_add_u32 v{t5}, v{L15}, 1, v{t5}")
    e(f"v_mad_u32_u24 v{aS1t}, v{G}, 26, v{t5}")
    e(f"v_mad_u32_u24 v{aS1}, v{G}, 52, v{t5}")
    e(f"v_mov_b32 v{t5}, 0")
    setexec(0x44444444)
    e(f"v_mov_b32 v{t5}, 0x3c803c80")
    e("s_mov_b64 exec, -1")
    for d in range(8): e(f"v_mov_b32 v{WB + d}, v{t5}")
    def setup2():
        e(f"v_and_b32 v{t3}, 63, v0")
        e(f"v_lshlrev_b32 v{vJ[0]}, 4, v{t3}")
        e(f"v_bfrev_b32 v{vJ[1]}, 2")
        setexec(0x33773377)
        e(f"v_mov_b32 v{vJ[1]}, v{vJ[0]}")
        e("s_mov_b64 exec, -1")
        e(f"s_and_b32 s{sT0}, s{sW}, 1")
        e(f"s_mul_i32 s{sT2}, s{sT0}, {16*144}")
        e(f"s_sub_u32 s{sT3}, {16*144 + L_AV}, s{sT2}")
        e(f"s_add_u32 s{sT2}, s{sT2}, {L_AV}")
        e(f"v_mul_u32_u24 v{t3}, 144, v{L15}")
        e(f"v_lshl_add_u32 v{t5}, v{G}, 5, v{t3}")
        e(f"v_add_u32 v{aAr[0]}, s{sT2}, v{t5}")
        e(f"v_add_u32 v{aAr[1]}, s{sT3}, v{t5}")
        e(f"v_add_u32 v{aAw}, s{sT1}, v{aAr[0]}")
        e(f"s_lshl1_add_u32 s{sT0}, s{sW}, s{sT0}")
        e(f"s_lshl_b32 s{sT0}, s{sT0}, 10")
        e(f"s_add_u32 s{sT0}, s{sT0}, {R2}")
        e(f"v_add_u32 v{aRed}, s{sT0}, v{vJ[0]}")
    def setup4():
        for b in (S_OUT, S_DBG, S_WS): mksrd(b)
        for k, b in enumerate((S_OUT, S_DBG, S_WS)): cpsrd(b, k + 5)
        consts()
        e(f"v_mov_b32 v{ZF+3}, 0")
        e(f"v_mov_b32 v{PA + 7}, 0")
        e(f"v_mov_b32 v{PA + 11}, 0")
    def produce1():
        e(f"v_and_b32 v{t3}, 7, v0")
        e(f"v_xor_b32 v{t3}, s{sW}, v{t3}")
        e(f"v_lshlrev_b32 v{t3}, 4, v{t3}")
        e(f"v_lshl_add_u32 v{t3}, v{L15}, 7, v{t3}")
        e(f"v_lshl_add_u32 v{t3}, v{G}, 2, v{t3}")
        e(f"v_add_u32 v{PA}, {L_PST}, v{t3}")
        e(f"v_lshlrev_b32 v{t3}, 13, v{G}")
        e(f"v_lshl_add_u32 v{PA+1}, v{L15}, 4, v{t3}")
        e(f"v_lshrrev_b32 v{t3}, 1, v{L15}")
        e(f"v_and_b32 v{t4}, 1, v0")
        e(f"v_lshlrev_b32 v{t4}, 7, v{t4}")
        e(f"v_lshl_add_u32 v{vPw}, v{t3}, 12, v{t4}")
    PA = CAP
    setup2()
    stamp()
    A.vm_wait("idx")
    stamp()
    fs0 = (lambda: fstamp()) if FS == -1 else (lambda: None)
    fs0()
    e(f"v_lshlrev_b32 v{vI}, 7, v{vI}")
    e(f"v_lshlrev_b32 v{vI+2}, 7, v{vI+2}")
    for s in range(GAHEAD - 1): a_gather(s)
    fs0()
    def pfbatch():
        if NPF0 + NPB >= 6: return
        e(f"s_lshl_b32 s{sT1}, s{sW}, 17")
        e(f"s_add_u32 s{sT1}, s{sT1}, {65536 + (NPF0 + NPB)*131072}")
        A.vmem(f"buffer_load_dword v{vDum}, v{vPf}, {srd(S_W1)}, s{sT1} offen", "pf")
    produce1()
    setup4()
    e(f"v_and_b32 v{t0}, 31, v0")
    e(f"v_bfe_u32 v{t1}, v0, 5, 1")
    e(f"v_lshlrev_b32 v{t0}, 3, v{t0}")
    e(f"v_lshl_add_u32 v{t0}, v{t1}, 9, v{t0}")
    e(f"s_lshl_b32 s{sT0}, s{sRG}, 2")
    e(f"s_add_u32 s{sT0}, s{sT0}, s{sHF}")
    e(f"s_lshl_b32 s{sT0}, s{sT0}, 8")
    e(f"v_add_u32 v{vHo}, s{sT0}, v{t0}")
    A.vm_wait("pc" if PEARLY else "sm")
    fs0()
    e("s_barrier")
    fs0()
    def produce2():
        for t in range(8):
            A.lds(f"ds_read_b32 v{PA + 12 + t}, v{PA} offset:{t*2048}", "pr")
    def produce3():
        A.ds_wait("pr")
        for q in range(3):
            e(f"v_perm_b32 v{PA + 4 + q}, v{PA + 13 + 2*q}, v{PA + 12 + 2*q}, s{sLO}")
            e(f"v_perm_b32 v{PA + 8 + q}, v{PA + 13 + 2*q}, v{PA + 12 + 2*q}, s{sHI}")
        cm("fields 24,25 sit in the k-block that equals the e pair index")
        e(f"s_lshl_b32 s{sT0}, s{sKb}, 4")
        e(f"s_lshl_b64 exec, 0xffff, s{sT0}")
        e(f"v_perm_b32 v{PA + 7}, v{PA + 19}, v{PA + 18}, s{sLO}")
        e(f"v_perm_b32 v{PA + 11}, v{PA + 19}, v{PA + 18}, s{sHI}")
        e("s_mov_b64 exec, -1")
        e(f"s_add_u32 s{sT0}, s{sWF}, 4096")
        A.vmem(f"buffer_store_dwordx4 {vr(PA + 4, 4)}, v{PA + 1}, {srd(S_WS)}, s{sWF} offen sc1", "st")
        A.vmem(f"buffer_store_dwordx4 {vr(PA + 8, 4)}, v{PA + 1}, {srd(S_WS)}, s{sT0} offen sc1", "st")
        if DBLST:
            A.vmem(f"buffer_store_dwordx4 {vr(PA + 4, 4)}, v{PA + 1}, {srd(S_WS)}, s{sWF} offen", "st2")
            A.vmem(f"buffer_store_dwordx4 {vr(PA + 8, 4)}, v{PA + 1}, {srd(S_WS)}, s{sT0} offen", "st2")
    if PEARLY: produce2()
    for k in range(16):
        A.lds(f"ds_read_u16 v{TM + k}, v{aWb} offset:{(32*(k >> 3) + (k & 7))*128}", f"wb{k >> 3}")
    fs0()
    if PEARLY: produce3()
    A.ds_all()
    setexec(0x33333333)
    for d in range(8):
        e(f"v_lshl_or_b32 v{WB + d}, v{TM + 2*d + 1}, 16, v{TM + 2*d}")
    e("s_mov_b64 exec, -1")
    SEA = [aS1, aS1t, aS2]
    for k in range(3): e(f"v_mov_b32 v{CAP + 48 + k}, v{SEA[k]}")
    def se_frags():
        TM2 = CAP + 20
        for t in range(6):
            A.lds(f"ds_read_u16 v{TM2 + t}, v{CAP + 48} offset:{(8*(t >> 1) + (t & 1))*26}", "se")
        A.lds(f"ds_read_u16 v{SE1F + 3}, v{CAP + 49} offset:{24*26}", "se")
    def se_frags2():
        TM2 = CAP + 20
        A.ds_wait("se")
        for kk in range(4):
            A.lds(f"ds_read_u16 v{TM2 + 8 + kk}, v{CAP + 50} offset:{1024 + kk*52}", "se")
    def se_frags3():
        TM2 = CAP + 20
        A.ds_wait("se")
        for q in range(3): e(f"v_lshl_or_b32 v{SE1F + q}, v{TM2 + 2*q + 1}, 16, v{TM2 + 2*q}")
        for q in range(2): e(f"v_lshl_or_b32 v{SE2F + q}, v{TM2 + 8 + 2*q + 1}, 16, v{TM2 + 8 + 2*q}")
    deferred = []
    stamp()
    def swaps(q, tls=(0, 1)):
        for tl in tls:
            for r in range(2):
                R = [xf(2*g + r, tl, q) for g in range(4)]
                e(f"v_permlane32_swap_b32 v{R[0]}, v{R[2]}")
                e(f"v_permlane32_swap_b32 v{R[1]}, v{R[3]}")
        for tl in tls:
            for r in range(2):
                R = [xf(2*g + r, tl, q) for g in range(4)]
                e(f"v_permlane16_swap_b32 v{R[0]}, v{R[1]}")
                e(f"v_permlane16_swap_b32 v{R[2]}, v{R[3]}")
    DDS = [DD, CAP + 32]
    def pack(s, tl):
        q, Gq = s >> 2, s & 3
        d = DDS[s & 1]
        for r in range(2):
            e(f"v_cvt_pk_bf16_f32 v{xf(2*Gq + r, tl, q)}, v{d + tl*4 + r}, v{d + 8 + tl*4 + r}")
    def packz(s):
        q, Gq = s >> 2, s & 3
        d = DDS[s & 1]
        lo = 0xffff << (16*Gq)
        e(f"s_mov_b32 exec_lo, {lo & 0xffffffff}")
        e(f"s_mov_b32 exec_hi, {lo >> 32}")
        e(f"v_cvt_pk_bf16_f32 v{ZF + q}, v{d + 2}, v{d + 8 + 2}")
        e("s_mov_b64 exec, -1")
    wl = [0]
    def wload():
        k = wl[0]
        if k >= 32: return
        wl[0] += 1
        u, part, x = k >> 2, (k >> 1) & 1, k & 1
        ep, jt = u >> 1, u & 1
        e(f"s_add_u32 s{sT0}, s{sMB2}, {(2*ep + x)*4096}")
        A.vmem(f"buffer_load_dwordx4 {vr(RING[k % 8], 4)}, v{vJ[jt]}, {srd(S_WS)}, s{sT0} offen offset:{part*2048 + jt*1024} sc1", f"w{k >> 1}")
    QB = [[AF + 4*i for i in range(8)], [AK, AK+4, AK+8, AK+12, U, U+4, ACCP, RAW+20]]
    def rd(s, i):
        tl, fi, ks = i >> 2, (i >> 1) & 1, i & 1
        f = 2*s + fi
        A.lds(f"ds_read_b128 {vr(QB[s & 1][i], 4)}, v{aE[ks][tl]} offset:{(f & 15)*4096}", f"e{s}_{i >> 1}")
    def mmi(s, i):
        tl, fi = i >> 2, (i >> 1) & 1
        d = DDS[s & 1] + fi*8 + tl*4
        if i & 1: mf16(d, WB + 4, QB[s & 1][i], d)
        else:
            A.ds_wait(f"e{s}_{i >> 1}")
            mf16(d, WB, QB[s & 1][i])
    def issue(s):
        if s + GAHEAD < 13:
            e(f"s_add_u32 m0, s{sMB}, {(s + GAHEAD)*8192}")
            a_gissue(s + GAHEAD)
    swq = []
    def take(lst, n):
        for _ in range(n):
            if lst: A.L.append(lst.pop(0))
    a_gather(GAHEAD - 1)
    for h in range(2): a_gaddr(GAHEAD, h)
    def flagcheck():
        cm("wave 0: every producer of this group's W-fragment image has signalled")
        A.vm_wait("fl")
        e(f"s_cmp_lg_u32 s{sW}, 0")
        e("s_cbranch_scc1 L_flok")
        lab("L_flp")
        e(f"v_and_b32 v{vFl}, 0x01000100, v{vFl}")
        e(f"v_cmp_ne_u32 vcc, 0x01000100, v{vFl}")
        e("s_and_b32 vcc_lo, vcc_lo, 0xff")
        e("s_cbranch_scc0 L_flok")
        e("s_sleep 8")
        e(f"v_lshlrev_b32 v{vFl}, 1, v{vJ[0]}")
        e(f"s_and_b32 s{sT0}, s2, 7")
        e(f"s_lshl_b32 s{sT0}, s{sT0}, 2")
        e(f"buffer_load_dword v{vFl}, v{vFl}, {srd(S_DBG)}, s{sT0} offen sc1")
        e("s_waitcnt vmcnt(0)")
        e("s_branch L_flp")
        lab("L_flok")
    for s in range(13):
        cm(f"-- A step {s}")
        if s % 2 == 0:
            if s < 12 or FCHK == 12:
                A.vm_wait(f"g{min(s + 1, 12) if s != 10 or FCHK == 12 else 12}")
                if s == FSIG: A.vm_wait("st")
                if s == FCHK: flagcheck()
                e("s_barrier")
            if s in (0, 4, 8, 12): stamp()
            if s == 0 and not PEARLY: produce2()
            with Cap() as cf:
                if s == 12:
                    for tl in range(2): e(f"v_add_u32 v{aC2[tl]}, 0x10000, v{aC[tl]}")
            fill = list(cf.l)
            for i in range(8):
                if s: mmi(s - 1, i)
                rd(s, i)
                if s == 12:
                    take(fill, 1)
                    if i == 7: packz(11)
            issue(s)
            if s == 0 and not PEARLY: produce3()
            if s == FSIG:
                cm("signal: this workgroup's fragments are stored (only wave 0 stays in range); pull them into L2")
                e(f"s_lshl_b32 s{sT0}, s{sHF}, 4")
                e(f"s_lshl_b32 s{sT0}, 0x100, s{sT0}")
                e(f"v_mov_b32 v{vFl}, s{sT0}")
                e(f"s_lshl_b32 s{sT0}, s{sW}, 6")
                e(f"s_add_u32 s{sT0}, s{sT0}, s{sRG}")
                e(f"s_lshl_b32 s{sT0}, s{sT0}, 2")
                e("s_mov_b64 exec, 1")
                A.vmem(f"buffer_atomic_or v{vFl}, off, {srd(S_DBG)}, s{sT0} sc1", "sig")
                e("s_mov_b64 exec, 0xffff")
                if not DBLST: A.vmem(f"buffer_load_dword v{vDum}, v{vPw}, {srd(S_WS)}, s{sWF} offen sc1", "pf")
                e("s_mov_b64 exec, -1")
            if s >= FCHK and s < 12:
                wload(); wload()
            if s == 2: se_frags()
            continue
        with Cap() as cf:
            if s >= 3:
                pack(s - 2, 0); pack(s - 2, 1)
            for ss in (s, s + 1):
                if ss + GAHEAD < 13:
                    for h in range(2): a_gaddr(ss + GAHEAD, h)
            if s in (5, 9): swaps((s >> 2) - 1, (0,))
            if s in (7, 11): swaps((s >> 2) - 1, (1,))
        fill = list(cf.l)
        for i in range(8):
            mmi(s - 1, i)
            rd(s, i)
            if i < 6: take(fill, -(-len(fill) // (6 - i)))
            if i == 5 and s >= 3: packz(s - 2)
            if i == 6: pack(s - 1, 0)
            if i == 7: packz(s - 1)
        issue(s)
        if s == PFAT:
            pfbatch()
            e(f"s_lshl_b32 s{sT0}, s{sW}, 28")
            A.vmem(f"buffer_load_dword v{vTag}, v{vHo}, {srd(S_WS)}, s{sT0} offen offset:4 sc1", "snap")
        if s == FLD:
            e(f"v_lshlrev_b32 v{vFl}, 1, v{vJ[0]}")
            e(f"s_and_b32 s{sT0}, s2, 7")
            e(f"s_lshl_b32 s{sT1}, s{sW}, 6")
            e(f"s_add_u32 s{sT0}, s{sT0}, s{sT1}")
            e(f"s_lshl_b32 s{sT0}, s{sT0}, 2")
            A.vmem(f"buffer_load_dword v{vFl}, v{vFl}, {srd(S_DBG)}, s{sT0} offen sc1", "fl")
        if s > FCHK:
            wload(); wload()
        if s == 3: se_frags2()
        if s == 5: se_frags3()
        if s == 7:
            for r in aE[0] + aE[1]: e(f"v_add_u32 v{r}, 0x10000, v{r}")
        pack(s - 1, 1)
    for i in range(8): mmi(12, i)
    SL = [[RAW + 16, RAW + 17]]
    def tailwork():
        pack(11, 0); pack(11, 1)
        while wl[0] < 8: wload()
        for tl in range(2):
            for el in range(8):
                e(f"v_cvt_pk_bf16_f32 v{xf(el, tl, 3)}, v{DD + tl*4 + (el & 1)}, v{DD + 8 + tl*4 + (el & 1)}")
            for fi in range(2):
                for r in range(2): e(f"v_mov_b32 v{LF[tl][fi][r]}, v{DD + fi*8 + tl*4 + r}")
        swaps(2)
        for tl in range(2):
            for p in range(2): e(f"v_mov_b32 v{UH + tl*16 + 14 + p}, 0")
    e(f"s_cmp_ge_u32 s{sW}, 4")
    e("s_cbranch_scc1 L_nosenet")
    cm("waves 0..3: SENET first")
    sv = (list(A.vm), A.vm_done, wl[0])
    e("s_mov_b64 exec, 0xffff")
    e(f"v_cvt_pk_bf16_f32 v{ZF + 3}, v{DD + 2}, 0")
    e("s_mov_b32 exec_lo, 0xffff0000")
    e(f"v_cvt_pk_bf16_f32 v{ZF + 3}, v{DD + 8 + 2}, 0")
    e("s_mov_b64 exec, -1")
    b = 228
    mf16(b, SE1F, ZF)
    e(f"v_mov_b32 v{b+20}, s{sC0}")
    e(f"v_cvt_pk_bf16_f32 v{b+8}, v{b+0}, v{b+1}")
    e(f"v_cvt_pk_bf16_f32 v{b+9}, v{b+2}, v{b+3}")
    for d in range(2):
        e(f"v_lshlrev_b32 v{b+2*d}, 16, v{b+8+d}")
        e(f"v_and_b32 v{b+2*d+1}, s{sMSK}, v{b+8+d}")
    ls = []
    for r in range(4):
        with Cap() as c: gelu(b + 4 + r, b + r, b + 12 + r, b + 20)
        ls.append(c.l)
    zipl(ls)
    e(f"v_cvt_pk_bf16_f32 v{b+10}, v{b+4}, v{b+5}")
    e(f"v_cvt_pk_bf16_f32 v{b+11}, v{b+6}, v{b+7}")
    e(f"v_mfma_f32_16x16x16_bf16 {vr(b+16,4)}, {vr(SE2F,2)}, {vr(b+10,2)}, 0")
    e(f"v_cvt_pk_bf16_f32 v{b+8}, v{b+16}, v{b+17}")
    e(f"v_cvt_pk_bf16_f32 v{b+9}, v{b+18}, v{b+19}")
    for d in range(2):
        e(f"v_lshlrev_b32 v{b+2*d}, 16, v{b+8+d}")
        e(f"v_and_b32 v{b+2*d+1}, s{sMSK}, v{b+8+d}")
    for r in range(4): e(f"v_mul_f32 v{b+r}, s{sNL}, v{b+r}")
    for r in range(4): e(f"v_exp_f32 v{b+r}, v{b+r}")
    for r in range(4): e(f"v_add_f32 v{b+r}, 1.0, v{b+r}")
    for r in range(4): e(f"v_rcp_f32 v{b+r}, v{b+r}")
    for r in range(4): e(f"v_cvt_pk_bf16_f32 v{b+4+r}, 0, v{b+r}")
    e(f"ds_write_b128 v{aAw}, {vr(b+4,4)}")
    e("s_waitcnt lgkmcnt(0)")
    stamp()
    e("s_barrier")
    tailwork()
    e("s_branch L_post")
    lab("L_nosenet")
    e("s_nop 7")
    A.vm, A.vm_done, wl[0] = list(sv[0]), sv[1], sv[2]
    tailwork()
    e("s_barrier")
    lab("L_post")
    A.ds_done = len(A.ds) - 1
    for tl in range(2):
        for u in range(2):
            A.lds(f"ds_read_b128 {vr(AJ + tl*8 + u*4, 4)}, v{aAr[tl]} offset:{u*16}", "ak")
    e(f"v_bfe_u32 v{XQ}, v0, 4, 2")
    e(f"v_lshlrev_b32 v{XQ}, 5, v{XQ}")
    for tl in range(2):
        e(f"v_sub_u32 v{aAr[tl]}, v{aAr[tl]}, v{XQ}")
        A.lds(f"ds_read2_b32 {vr(XQ + 4 + 2*tl, 2)}, v{aAr[tl]} offset0:6 offset1:14", "ak")
    def mms(u, part):
        ep = u >> 1
        A.vm_wait(f"w{2*u + part}")
        for x in range(2):
            for tl in range(2):
                mf16(TS[u & 1][part*4 + x*2 + tl], RING[(4*u + 2*part + x) % 8], XQ + x*8 + tl*4 if part else xf(2*ep + x, tl, 0))
    def xq(ep):
        tmp = TS[0][4]
        for x in range(2):
            for tl in range(2):
                src = xf(2*ep + x, tl, 0)
                for qq in range(3):
                    e(f"v_dot2_f32_bf16 v{tmp + tl*6 + 2*qq}, v{src + qq}, v{AKL[tl][qq]}, 0")
                    e(f"v_dot2_f32_bf16 v{tmp + tl*6 + 2*qq + 1}, v{src + qq}, v{AJ + tl*8 + 2*qq + 1}, 0")
            for tl in range(2):
                dst = XQ + x*8 + tl*4
                if ep == 0: e(f"v_cvt_pk_bf16_f32 v{dst + 3}, v{LF[tl][0][x]}, v{LF[tl][1][x]}")
                for qq in range(3):
                    e(f"v_cvt_pk_bf16_f32 v{dst + qq}, v{tmp + tl*6 + 2*qq}, v{tmp + tl*6 + 2*qq + 1}")
    def fin(u):
        ep, jt = u >> 1, u & 1
        S_ = TS[u & 1]
        for tl in range(2):
            for x in range(2):
                p, q_, a = S_[x*2 + tl], S_[4 + x*2 + tl], AJ + tl*8 + 4*jt
                for r in range(3 if jt else 4): e(f"v_fmac_f32 v{p+r}, v{q_+r}, v{a+r}")
            for r in range(3 if jt else 4):
                e(f"v_cvt_pk_bf16_f32 v{UH + tl*16 + (4*jt + r)*2 + (ep & 1)}, v{S_[tl] + r}, v{S_[2 + tl] + r}")
    def cq(hf):
        for tl in range(2):
            for t in range(7):
                base = aC6[tl] if t == 6 else (aC2[tl] if t >= 4 else aC[tl])
                off = 0 if t == 6 else ((t >> 1) & 1)*32768 + (t & 1)*4096
                A.lds(f"ds_read_b64 {vr(XF + tl*16 + 2*t, 2)}, v{base} offset:{off + 8*hf}", "cq")
    def diag(hf):
        A.ds_wait("cq")
        for k in range(4):
            for tl in range(2):
                mf16(ACC[tl], UH + tl*16 + 4*k, XF + tl*16 + 4*k, ACC[tl] if (hf or k) else None)
    def weave(ml, fl):
        k = 0; nm = sum(1 for m in ml if "v_mfma" in m); i = 0
        for m in ml:
            A.L.append(m)
            if "v_mfma" in m:
                i += 1
                tgt = i * len(fl) // nm
                while k < tgt:
                    A.L.append(fl[k]); k += 1
    mms(0, 0)
    A.ds_wait("ak")
    for tl in range(2):
        for qq in range(3): e(f"v_lshrrev_b32 v{AKL[tl][qq]}, 16, v{AJ + tl*8 + 2*qq}")
        for fi in range(2):
            for r in range(2): e(f"v_mul_f32 v{LF[tl][fi][r]}, v{LF[tl][fi][r]}, v{XQ + 4 + 2*tl + fi}")
    for u in range(8):
        ep, jt = u >> 1, u & 1
        cm(f"-- block ep {ep} jt {jt}")
        if jt == 0:
            stamp()
            xq(ep)
        with Cap() as c1:
            if u: mms(u, 0)
            mms(u, 1)
        with Cap() as c2:
            if u: fin(u - 1)
        weave(c1.l, c2.l)
        for _ in range(4): wload()
        if u == 3: cq(0)
        if u == 4: diag(0)
        if u == 5: cq(1)
    fin(7)
    diag(1)
    stamp()
    e(f"v_xor_b32 v{aAr[0]}, 0x400, v{aRed}")
    e(f"v_and_b32 v1, 31, v0")
    e(f"v_and_b32 v6, 15, v0")
    e(f"v_lshrrev_b32 v7, 2, v6")
    e(f"v_lshl_add_u32 v7, v7, 4, v6")
    e(f"v_lshlrev_b32 v7, 4, v7")
    e(f"v_and_b32 v6, 3, v0")
    e(f"v_lshl_add_u32 v7, v6, 2, v7")
    e(f"ds_write_b128 v{aRed}, {vr(ACC[0], 4)}")
    e(f"ds_write_b128 v{aAr[0]}, {vr(ACC[1], 4)}")
    e(f"v_bfe_u32 v6, v0, 4, 1")
    e(f"v_lshl_add_u32 v7, v6, 10, v7")
    e(f"v_bfe_u32 v6, v0, 5, 1")
    e(f"v_lshl_add_u32 v7, v6, 13, v7")
    e(f"v_add_u32 v7, {R2}, v7")
    e(f"s_lshl_b32 s{sT0}, s{sW}, 28")
    e(f"buffer_load_dwordx2 {vr(vPo,2)}, v{vHo}, {srd(S_WS)}, s{sT0} offen sc1")
    e("s_waitcnt lgkmcnt(0)")
    e("s_barrier")
    e(f"s_cmp_lg_u32 s{sW}, 0")
    e("s_cbranch_scc1 L_end")
    for k in range(4): e(f"ds_read_b32 v{32 + k}, v7 offset:{2048*k}")
    e(f"s_lshl1_add_u32 s{sT0}, s{sRG}, s{sHF}")
    e(f"s_lshl_b32 s{sT0}, s{sT0}, 6")
    e(f"v_lshlrev_b32 v5, 1, v1")
    e(f"s_lshl_b32 s{sT1}, s{sRG}, 2")
    e("s_waitcnt lgkmcnt(0)")
    for st in (2, 1):
        for k in range(st): e(f"v_add_f32 v{32+k}, v{32+k}, v{32+k+st}")
    stamp()
    cm("wait for both deep partials: every tag differs from the snapshot, or both arrival flags are set")
    e(f"s_mov_b32 s{sT3}, 0")
    lab("L_poll")
    e("s_waitcnt vmcnt(0)")
    e(f"v_cmp_eq_u32 vcc, v{vPo+1}, v{vTag}")
    e("s_cbranch_vccz L_got")
    e(f"buffer_load_dwordx2 {vr(vPo,2)}, v{vHo}, {srd(S_WS)}, 0 offen sc1")
    e(f"s_add_u32 s{sT3}, s{sT3}, 1")
    e(f"s_and_b32 s{sT2}, s{sT3}, 31")
    e("s_cbranch_scc1 L_poll")
    cm("rarely: the flags (needed only when a partial was already there at the snapshot)")
    e("s_mov_b64 exec, 1")
    e(f"buffer_load_dword v{vPo+3}, off, {srd(S_DBG)}, s{sT1} sc1")
    e("s_waitcnt vmcnt(0)")
    e(f"v_readfirstlane_b32 s{sT2}, v{vPo+3}")
    e("s_mov_b64 exec, -1")
    e(f"s_and_b32 s{sT2}, s{sT2}, 0x00020002")
    e(f"s_cmp_lg_u32 s{sT2}, 0x00020002")
    e("s_cbranch_scc1 L_poll")
    e(f"buffer_load_dwordx2 {vr(vPo,2)}, v{vHo}, {srd(S_WS)}, 0 offen sc1")
    e("s_waitcnt vmcnt(0)")
    lab("L_got")
    e(f"v_add_f32 v32, v32, v{vPo}")
    e("v_mov_b32 v33, v32")
    e("v_permlane32_swap_b32 v32, v33")
    e("v_add_f32 v4, v32, v33")
    e("v_cvt_pk_bf16_f32 v4, v4, v4")
    e("s_mov_b32 exec_hi, 0")
    e(f"buffer_store_short v4, v5, {srd(S_OUT)}, s{sT0} offen")
    if STAMPS:
        e("s_mov_b64 exec, -1")
    e("s_branch L_end")

NWS, NGS = 8, 4
WBASE, GBASE = 0, NWS*16384
B_RED = 4*16384
LEAD = P("LEAD", 8)

BST = {}
vW, vS, vIa, vGt = 1, 2, [4, 8], [12, 13]
def b_head():
    lab("L_B")
    cm("===== role B")
    e(f"s_cmp_lt_u32 s{sW}, 4")
    e("s_cbranch_scc1 L_Bc")
    A.reset(); nst[0] = 0
    t0, t1, t2 = 14, 15, 16
    e("s_setprio 3")
    e(f"v_bfe_u32 v{t0}, v0, 4, 4")
    e(f"v_lshlrev_b32 v{t0}, 9, v{t0}")
    e(f"v_bfe_u32 v{t1}, v0, 4, 2")
    e(f"v_lshlrev_b32 v{t1}, 2, v{t1}")
    e(f"s_and_b32 s{sT0}, s{sW}, 2")
    e(f"v_xor_b32 v{t1}, v{t1}, v0")
    e(f"v_xor_b32 v{t1}, s{sT0}, v{t1}")
    e(f"v_and_b32 v{t1}, 15, v{t1}")
    e(f"v_lshl_add_u32 v{t0}, v{t1}, 4, v{t0}")
    e(f"s_lshl_b32 s{sT0}, s{sHF}, 8")
    e(f"v_add_u32 v{vW}, s{sT0}, v{t0}")
    e(f"s_and_b32 s{sMB}, s{sW}, 3")
    e(f"s_lshl_b32 s{sMB}, s{sMB}, 10")
    e(f"v_bfe_u32 v{t0}, v0, 3, 5")
    e(f"v_mul_u32_u24 v{t0}, 104, v{t0}")
    e(f"v_and_b32 v{t1}, 7, v0")
    e(f"v_lshl_add_u32 v{t0}, v{t1}, 4, v{t0}")
    e(f"s_mul_i32 s{sT1}, s{sRG}, {64*104}")
    e(f"s_mov_b32 m0, s{sMB}")
    e(f"s_mov_b32 s{sT0}, 0")
    e("s_waitcnt lgkmcnt(0)")
    stamp()
    A.vmem(f"buffer_load_dwordx4 {vr(vIa[0],4)}, v{t0}, {srd(S_IDX)}, s{sT1} offen", "idx")
    A.vmem(f"buffer_load_dwordx4 {vr(vIa[1],4)}, v{t0}, {srd(S_IDX)}, s{sT1} offen offset:{32*104}", "idx")
    lab("L_lead")
    for n in range(4):
        e(f"buffer_load_dwordx4 v{vW}, {srd(S_W1)}, s{sT0} offen lds")
        e("s_addk_i32 m0, 0x1000")
        e(f"s_addk_i32 s{sT0}, 0x2000")
    e(f"s_cmp_lt_u32 s{sT0}, {LEAD*32768}")
    e("s_cbranch_scc1 L_lead")
    for f in range(LEAD):
        for n in range(4): A.vm.append(f"w{f}")
    e("s_branch L_Bl2")
    BST["sv"] = (A.vm, A.ds, A.vm_done, A.ds_done, nst[0])

def role_b():
    A.vm, A.ds, A.vm_done, A.ds_done, nst[0] = BST["sv"]
    lab("L_Bl2")
    t1 = 15
    e(f"v_lshrrev_b32 v{t1}, 4, v0")
    e(f"v_xor_b32 v{t1}, v{t1}, v0")
    e(f"v_and_b32 v{t1}, 7, v{t1}")
    e(f"v_lshlrev_b32 v{vS}, 4, v{t1}")
    if STAMPS:
        rest_srds(); rest_srds2()
    if TOUCH == 2:
        for k in (4, 5, 6, 7):
            e(f"s_load_dword s{sT3}, s[{KT+2*k}:{KT+2*k+1}], 0")
    wq = [(f, n) for f in range(LEAD, 26) for n in range(4)]
    def wpiece():
        f, n = wq.pop(0)
        e(f"s_add_u32 m0, s{sMB}, {WBASE + (f % NWS)*16384 + n*4096}")
        e(f"s_mov_b32 s{sT0}, {f*32768 + n*8192}")
        A.vmem(f"buffer_load_dwordx4 v{vW}, {srd(S_W1)}, s{sT0} offen lds", f"w{f}")
    def gpiece(f):
        c = f >> 2
        for u in range(2):
            e(f"v_add_u32_dpp v{vGt[u]}, v{vIa[u] + (f & 3)}, v{vS} row_newbcast:{c} row_mask:0xf bank_mask:0x3")
        e(f"s_add_u32 m0, s{sMB}, {GBASE + (f % NGS)*8192}")
        for u in range(2):
            e(f"v_add_u32_dpp v{vGt[u]}, v{vIa[u] + (f & 3)}, v{vS} row_newbcast:{8+c} row_mask:0xf bank_mask:0xc")
        A.vmem(f"buffer_load_dwordx4 v{vGt[0]}, {srd(S_TAB)}, 0 offen lds", f"g{f}")
        e("s_addk_i32 m0, 0x1000")
        A.vmem(f"buffer_load_dwordx4 v{vGt[1]}, {srd(S_TAB)}, 0 offen lds", f"g{f}")
    A.vm_wait("idx")
    for u in range(2):
        for d in range(4): e(f"v_lshlrev_b32 v{vIa[u]+d}, 7, v{vIa[u]+d}")
    stamp()
    for f in range(NGS): gpiece(f)
    tot = len(wq); done = 0
    nsteps = 26 - NGS
    for f in range(26):
        A.vm_wait(f"w{f}"); A.vm_wait(f"g{f}")
        e("s_barrier")
        if f in (0, 6, 12, 18, 25): stamp()
        if f >= 1 and f - 1 + NGS < 26:
            tgt = f * tot // nsteps
            while done < tgt and wq and wq[0][0] <= f - 1 + NWS:
                wpiece(); done += 1
            gpiece(f - 1 + NGS)
    assert not wq
    e("s_branch L_end")
    lab("L_Bc")
    A.reset(); nst[0] = 0
    aEm = [1, 2]; aW = [[3, 4], [5, 6]]
    W2 = 176; ACC = 32
    EF = lambda st, ks, rt: 64 + st*32 + ks*16 + rt*4
    WFr = lambda st, ks, ct: 128 + st*16 + ks*8 + ct*4
    t0, t1, t2, t3 = 7, 9, 10, 11
    rest_srds()
    consts()
    e(f"v_and_b32 v{t0}, 15, v0")
    e(f"v_bfe_u32 v{t1}, v0, 4, 2")
    e(f"v_bfe_u32 v{t2}, v0, 1, 3")
    e(f"v_xor_b32 v{t2}, v{t2}, v{t1}")
    e(f"v_lshlrev_b32 v{t2}, 4, v{t2}")
    e(f"v_lshl_add_u32 v{t2}, v{t0}, 7, v{t2}")
    e(f"v_add_u32 v{aEm[0]}, {GBASE}, v{t2}")
    e(f"v_xor_b32 v{aEm[1]}, 64, v{aEm[0]}")
    e(f"v_bfe_u32 v{t0}, v0, 2, 2")
    e(f"v_lshl_add_u32 v{t2}, v{t1}, 3, v{t0}")
    e(f"v_lshlrev_b32 v{t2}, 8, v{t2}")
    e(f"v_xor_b32 v{t0}, s{sW}, v{t0}")
    e(f"v_lshl_add_u32 v{t2}, v{t0}, 6, v{t2}")
    e(f"v_bfe_u32 v{t0}, v0, 4, 1")
    e(f"v_lshl_add_u32 v{t2}, v{t0}, 5, v{t2}")
    e(f"v_and_b32 v{t0}, 3, v0")
    e(f"v_lshl_add_u32 v{aW[0][0]}, v{t0}, 3, v{t2}")
    e(f"v_xor_b32 v{aW[0][1]}, 32, v{aW[0][0]}")
    for ct in range(2): e(f"v_add_u32 v{aW[1][ct]}, 0x10000, v{aW[0][ct]}")
    e(f"s_lshl_b32 s{sT0}, s{sHF}, 8")
    e(f"s_lshl_b32 s{sT1}, s{sW}, 6")
    e(f"s_add_u32 s{sT0}, s{sT0}, s{sT1}")
    e(f"v_lshlrev_b32 v{t1}, 3, v{t1}")
    e("s_waitcnt lgkmcnt(0)")
    rest_srds2()
    e(f"s_mov_b32 s{sT2}, s{sT0}")
    if NPB:
        cm("weight prefetch into L2: 16 lines per wave and block")
        e(f"s_lshr_b32 s{sT0}, s2, 5")
        e(f"s_lshl1_add_u32 s{sT0}, s{sT0}, s{sHF}")
        e(f"s_lshl2_add_u32 s{sT0}, s{sT0}, s{sW}")
        e(f"s_lshl_b32 s{sT0}, s{sT0}, 11")
        e(f"v_and_b32 v{t0}, 15, v0")
        e(f"v_lshl_add_u32 v{t0}, v{t0}, 7, s{sT0}")
        e(f"v_bfe_u32 v{t2}, v0, 4, 2")
        e(f"v_lshl_add_u32 v{t0}, v{t2}, 17, v{t0}")
        nw1 = min(NPB, 6 - NPF0)
        for b0 in range(0, nw1, 4):
            n = min(4, nw1 - b0)
            if n < 4: e(f"s_mov_b64 exec, {hex((1 << (16*n)) - 1) if n < 3 else '-1'}")
            if n == 3: e("s_mov_b32 exec_hi, 0xffff")
            if n == 2: e("s_mov_b32 exec_lo, -1"); e("s_mov_b32 exec_hi, 0")
            e(f"s_mov_b32 s{sT0}, {65536 + (NPF0 + b0)*131072}")
            e(f"buffer_load_dword v{t3}, v{t0}, {srd(S_W1)}, s{sT0} offen")
            e("s_mov_b64 exec, -1")
    for i in range(32): e(f"v_mov_b32 v{ACC+i}, 0")
    C0 = 12
    e(f"v_mov_b32 v{C0}, s{sC0}"); e(f"v_mov_b32 v{C0+1}, s{sC0}")
    e(f"v_mov_b32 v{C0+2}, s{sC1}"); e(f"v_mov_b32 v{C0+3}, s{sC1}")
    W2R = 160
    vHo, vBt = 172, 175
    e(f"v_lshlrev_b32 v{vHo}, 3, v0")
    e(f"s_lshl1_add_u32 s{sT3}, s{sRG}, s{sHF}")
    e(f"s_lshl_b32 s{sT3}, s{sT3}, 9")
    e(f"s_lshl_b32 s{sT0}, s{sW}, 28")
    e(f"s_add_u32 s{sT3}, s{sT3}, s{sT0}")
    def late_loads():
        for q in range(2):
            A.vmem(f"buffer_load_dwordx2 {vr(W2R + 2*q, 2)}, v{t1}, {srd(S_W2)}, s{sT2} offen offset:{32*q}", "w2")
        A.vmem(f"buffer_load_dword v{vBt}, v{vHo}, {srd(S_WS)}, s{sT3} offen offset:4 sc1", "tag")
    def w2_unpack():
        A.vm_wait("w2")
        for d in range(4):
            e(f"v_lshlrev_b32 v{W2 + 2*d}, 16, v{W2R + d}")
            e(f"v_and_b32 v{W2 + 2*d + 1}, s{sMSK}, v{W2R + d}")
    stamp()
    def rdl(f, ks):
        st = f & 1; ws = f % NWS
        out = []
        def w(ct, u): out.append((f"ds_read_b64_tr_b16 {vr(WFr(st, ks, ct) + 2*u, 2)}, v{aW[ws >> 2][ct]} offset:{(ws & 3)*16384 + ks*8192 + u*1024}", f"r{f}_{ks}a"))
        def em(rt, tag): out.append((f"ds_read_b128 {vr(EF(st, ks, rt), 4)}, v{aEm[ks]} offset:{(f % NGS)*8192 + rt*2048}", tag))
        w(0, 0); w(0, 1); w(1, 0); w(1, 1); em(0, f"r{f}_{ks}a"); em(1, f"r{f}_{ks}b"); em(2, f"r{f}_{ks}c"); em(3, f"r{f}_{ks}d")
        return out
    def mm1(f, ks, rt, ct):
        st = f & 1
        if "bnomm" in X: return
        d = ACC + rt*8 + ct*4
        mf16(d, WFr(st, ks, ct), EF(st, ks, rt), d)
    for f in range(26):
        cm(f"-- B step {f}")
        e("s_barrier")
        if f in (0, 6, 12, 18, 25): stamp()
        r0, r1 = rdl(f, 0), rdl(f, 1)
        for k in range(8):
            A.lds(*r0[k])
            if k >= 4 and f: mm1(f - 1, 1, (k - 4) >> 1, k & 1)
        for k in range(4):
            if f: mm1(f - 1, 1, 2 + (k >> 1), k & 1)
            A.lds(*r1[k])
        for k in range(8):
            if not k & 1: A.ds_wait(f"r{f}_0" + "abcd"[k >> 1])
            mm1(f, 0, k >> 1, k & 1)
            if k < 4: A.lds(*r1[4 + k])
        if f == 23: late_loads()
        A.ds_all()
    for k in range(8): mm1(25, 1, k >> 1, k & 1)
    w2_unpack()
    stamp()
    S = 164
    TT = 64
    for hf in range(2):
        ls = []
        for p in range(8):
            rt = 2*hf + (p >> 2); pp = p & 3
            x = ACC + rt*8 + 2*pp; t = TT + 2*p
            with Cap() as c:
                e(f"v_pk_mul_f32 {vr(t,2)}, {vr(x,2)}, {vr(x,2)}")
                e(f"v_pk_fma_f32 {vr(t,2)}, {vr(t,2)}, {vr(C0+2,2)}, {vr(C0,2)}")
                e(f"v_pk_mul_f32 {vr(t,2)}, {vr(t,2)}, {vr(x,2)}")
                e(f"v_exp_f32 v{t}, v{t}")
                e(f"v_exp_f32 v{t+1}, v{t+1}")
                e(f"v_pk_mul_f32 {vr(x,2)}, {vr(x,2)}, {vr(W2 + 2*pp,2)}")
                e(f"v_pk_add_f32 {vr(t,2)}, {vr(t,2)}, 1.0 op_sel_hi:[1,0]")
                e(f"v_rcp_f32 v{t}, v{t}")
                e(f"v_rcp_f32 v{t+1}, v{t+1}")
                if pp == 0: e(f"v_pk_mul_f32 {vr(S + 2*rt,2)}, {vr(x,2)}, {vr(t,2)}")
                else: e(f"v_pk_fma_f32 {vr(S + 2*rt,2)}, {vr(x,2)}, {vr(t,2)}, {vr(S + 2*rt,2)}")
            ls.append(c.l)
        zipl(ls)
    for rt in range(4): e(f"v_add_f32 v{S + 2*rt}, v{S + 2*rt}, v{S + 2*rt + 1}")
    e(f"v_lshlrev_b32 v1, 2, v0")
    e(f"v_add_u32 v1, {B_RED}, v1")
    e(f"v_permlane32_swap_b32 v{S}, v{S+4}")
    e(f"v_permlane32_swap_b32 v{S+2}, v{S+6}")
    e(f"v_add_f32 v{S}, v{S}, v{S+4}")
    e(f"v_add_f32 v{S+2}, v{S+2}, v{S+6}")
    e(f"v_permlane16_swap_b32 v{S}, v{S+2}")
    e(f"v_add_f32 v{S}, v{S}, v{S+2}")
    e(f"ds_write_b32 v1, v{S}")
    e("s_waitcnt lgkmcnt(0)")
    e("s_barrier")
    stamp()
    e(f"s_cmp_lg_u32 s{sW}, 0")
    e("s_cbranch_scc1 L_end")
    for k in range(1, 4): e(f"ds_read_b32 v{16+k}, v1 offset:{256*k}")
    e(f"s_lshl_b32 s{sT1}, s{sRG}, 2")
    e(f"s_lshl_b32 s{sT2}, s{sHF}, 4")
    e(f"s_lshl_b32 s{sT2}, 2, s{sT2}")
    e(f"v_mov_b32 v6, s{sT2}")
    e("s_waitcnt vmcnt(0) lgkmcnt(0)")
    e(f"v_add_u32 v{vBt}, 1, v{vBt}")
    e(f"v_add_f32 v{S}, v{S}, v17")
    e(f"v_add_f32 v18, v18, v19")
    e(f"v_add_f32 v{vBt-1}, v{S}, v18")
    e(f"buffer_store_dwordx2 {vr(vBt-1,2)}, v{vHo}, {srd(S_WS)}, s{sT3} offen sc1")
    e("s_waitcnt vmcnt(0)")
    e("s_mov_b64 exec, 1")
    e(f"buffer_atomic_or v6, off, {srd(S_DBG)}, s{sT1} sc1")
    if STAMPS: e("s_mov_b64 exec, -1")

def fin():
    lab("L_end")
    if STAMPS:
        e("s_waitcnt vmcnt(0)")
        e("s_memtime s[100:101]")
        e("s_memrealtime s[72:73]")
        e("s_waitcnt lgkmcnt(0)")
        e(f"v_writelane_b32 v{VST[0]}, s4, 0")
        e(f"v_writelane_b32 v{VST[0]}, s70, 32")
        e(f"v_writelane_b32 v{VST[0]}, s100, 25")
        e(f"v_writelane_b32 v{VST[0]}, s72, 57")
        e(f"s_lshl3_add_u32 s{sT0}, s2, s{sW}")
        e(f"s_lshl_b32 s{sT0}, s{sT0}, 8")
        e(f"s_add_u32 s{sT0}, s{sT0}, 0x400000")
        e("v_and_b32 v0, 63, v0")
        e("v_lshlrev_b32 v0, 2, v0")
        e(f"buffer_store_dword v{VST[0]}, v0, {srd(S_WS)}, s{sT0} offen")
    lab("L_exit")
    e("s_endpgm")
    lab("L_codeend")

def main():
    A.raw("; Kernarg: in0 idx, in1 table, in2 se_w1, in3 se_w2, in4 w_bi, in5 w_cross, in6 w_deep1, in7 w_deep2, out, debug, ws")
    A.raw(f"; @launch grid=(256,1,1) block=(512,1,1) lds={LDS_TOTAL}")
    for t in ['.amdgcn_target "amdgcn-amd-amdhsa--gfx950"', ".text", f".globl {KN}", ".p2align 12", f".type {KN},@function", f"{KN}:"]: A.raw(t)
    entry()
    role_a()
    role_b()
    fin()
    for t in ['.section .rodata,"a"', ".p2align 6", f".amdhsa_kernel {KN}", "  .amdhsa_next_free_vgpr 256", "  .amdhsa_next_free_sgpr 102",
              "  .amdhsa_accum_offset 256", "  .amdhsa_group_segment_fixed_size 0", "  .amdhsa_kernarg_size 88", "  .amdhsa_user_sgpr_count 2",
              "  .amdhsa_user_sgpr_kernarg_segment_ptr 1", "  .amdhsa_system_sgpr_workgroup_id_x 1", ".end_amdhsa_kernel"]: A.raw(t)
    if "nodot" in X:
        import re
        A.L = [re.sub(r"v_dot2c?_f32_bf16 (v\d+), (v\d+), (v\d+).*", r"v_cvt_pk_bf16_f32 \1, \2, \3", x) for x in A.L]
    out = autonop([x for x in A.L if x is not None])
    open(sys.argv[1], "w").write("\n".join(out) + "\n")
main()
```

```python
import os, sys, math
sys.path.insert(0, os.path.dirname(os.path.abspath(__file__)))
from asmlib import *

STAMPS = int(os.environ.get("STAMPS", "0"))
def P(name, d): return int(os.environ.get(name, d))
KN = "standalone__deep_cross_fibinet__recsys_kernel"
A = Asm(); e = A.e; lab = A.lab; cm = A.cm

S_IDX, S_TAB, S_W1, S_WC, S_WBI, S_SW1, S_SW2, S_W2, S_OUT, S_DBG, S_WS = [8 + 4*i for i in range(11)]
SIZE = {S_IDX: 4096*104, S_TAB: 100000*128, S_W1: 1664*512, S_WC: 86528*2, S_WBI: 8192, S_SW1: 676, S_SW2: 676, S_W2: 512,
        S_OUT: 8192, S_DBG: 256, S_WS: 1 << 28}
sW, sRG, sHF, sX16 = 52, 53, 54, 55
sT0, sT1, sT2, sT3 = 56, 57, 58, 59
sMB, sMB2, sK6, sM6 = 60, 61, 62, 63
sMa, sMa3, sMb, sKa3 = 6, 7, 3, 55
sLO, sHI, sC0, sC1, sMSK, sNL = 64, 65, 66, 67, 68, 69
KT = 84
def srd(b): return f"s[{b}:{b+3}]"

nst = [0]
FS = P("FS", 6)
fst = [0]
def fstamp():
    if STAMPS != 3: return
    k = fst[0]; fst[0] += 1
    e(f"s_memtime s[{70 + 2*k}:{71 + 2*k}]")
def stamp():
    if not STAMPS or STAMPS == 3: return
    k = nst[0]; nst[0] += 1
    assert k < 24
    e("s_memtime s[100:101]")
    e("s_waitcnt lgkmcnt(0)")
    e(f"v_writelane_b32 v{VST[0]}, s100, {k + 1}")
    e("s_memrealtime s[100:101]")
    e("s_waitcnt lgkmcnt(0)")
    e(f"v_writelane_b32 v{VST[0]}, s100, {k + 33}")
    A.ds_done = len(A.ds) - 1
VST = [26]

def mf16(d, a, b, c=None):
    e(f"v_mfma_f32_16x16x32_bf16 {vr(d,4)}, {vr(a,4)}, {vr(b,4)}, {'0' if c is None else vr(c,4)}")
def mf32(d, a, b, c=None):
    e(f"v_mfma_f32_32x32x16_bf16 {vr(d,16)}, {vr(a,4)}, {vr(b,4)}, {'0' if c is None else vr(c,16)}")

def mksrd(b):
    e(f"s_mov_b32 s{b+2}, {SIZE[b]}")
    e(f"s_mov_b32 s{b+3}, 0x00020000")
def cpsrd(b, k):
    e(f"s_mov_b64 s[{b}:{b+1}], s[{KT+2*k}:{KT+2*k+1}]")

def entry():
    e("s_cmp_ge_u32 s2, 256")
    e("s_cbranch_scc1 L_exit")
    if STAMPS:
        e("s_memtime s[4:5]")
        e("s_memrealtime s[70:71]")
    e(f"s_load_dwordx2 s[{S_IDX}:{S_IDX+1}], s[0:1], 0")
    e(f"s_load_dwordx2 s[{S_W1}:{S_W1+1}], s[0:1], 48")
    e(f"s_load_dwordx2 s[{S_TAB}:{S_TAB+1}], s[0:1], 8")
    e(f"s_load_dwordx8 s[{KT}:{KT+7}], s[0:1], 16")
    e(f"s_load_dwordx8 s[{KT+8}:{KT+15}], s[0:1], 56")
    e("v_lshrrev_b32 v1, 6, v0")
    e(f"s_lshr_b32 s{sT0}, s2, 5")
    e(f"v_readfirstlane_b32 s{sW}, v1")
    e(f"s_and_b32 s{sT1}, s2, 7")
    e(f"s_lshl3_add_u32 s{sRG}, s{sT0}, s{sT1}")
    e(f"s_bfe_u32 s{sHF}, s2, 0x10003")
    if CPF:
        cm("pull the kernel's code into L2: one 128-byte line per wave")
        e(f"s_getpc_b64 s[{S_WC}:{S_WC+1}]")
        lab("L_pc")
        e(f"s_mov_b32 s{S_WC+2}, L_codeend-L_pc")
        e(f"s_mov_b32 s{S_WC+3}, 0x00020000")
        e(f"s_andn2_b32 s{sT0}, s2, 7")
        e(f"s_add_u32 s{sT0}, s{sT0}, s{sW}")
        e(f"s_lshl_b32 s{sT0}, s{sT0}, 7")
        e("s_mov_b64 exec, 1")
        e(f"buffer_load_dword v8, off, {srd(S_WC)}, s{sT0}")
        e("s_mov_b64 exec, -1")
    mksrd(S_IDX); mksrd(S_W1); mksrd(S_TAB)
    e("s_bitcmp1_b32 s2, 4")
    e("s_cbranch_scc1 L_B")

def rest_srds():
    for b in (S_SW1, S_SW2, S_WBI, S_WC, S_W2, S_OUT, S_DBG, S_WS): mksrd(b)
def rest_srds2():
    for k, b in enumerate((S_SW1, S_SW2, S_WBI, S_WC, S_W2, S_OUT, S_DBG, S_WS)): cpsrd(b, k)

def consts():
    c0 = -2.0 * math.sqrt(2.0 / math.pi) * math.log2(math.e)
    e(f"s_mov_b32 s{sLO}, 0x05040100")
    e(f"s_mov_b32 s{sHI}, 0x07060302")
    e(f"s_mov_b32 s{sC0}, {fbits(c0)}")
    e(f"s_mov_b32 s{sC1}, {fbits(c0 * 0.044715)}")
    e(f"s_mov_b32 s{sMSK}, 0xffff0000")
    e(f"s_mov_b32 s{sNL}, {fbits(-math.log2(math.e))}")

R0, R1, R2 = 0, 53248, 106496
MISC = 147456
L_WBI, L_SE1, L_SE2, L_AV, L_RED = MISC, MISC + 8192, MISC + 9216, MISC + 10240, MISC
LDS_TOTAL = 163840
vSw, vI, vG, vPf, vDum = 1, 2, [5, 6], 7, 8
aE = [[10, 11], [12, 13]]
aC, aC6, aC2 = [14, 15], [16, 17], [22, 23]
vJ = [18, 19]
vFl, vPw = 22, 23
WFB = 0x40000
L_PST = R2
aAw = 28; aAr = [29, 30]; aRed = 31
vHo, vTag, vPo = 20, 21, 24
XF, CAP, RAW, WF, T = 32, 96, 152, 180, 196
AF, DD, WB, ZF, SE1F, SE2F = T, WF, RAW, RAW + 8, RAW + 12, RAW + 16
RING = [96, 100, 104, 108, 112, 116, RAW + 20, RAW + 24]
UH, XQ, AJ = 120, RAW, WF
TS = [[T + 4*i for i in range(8)], [228, 232, 236, 240, 244, 248, 252, RAW + 16]]
ACC = [2, 10]
AKL = [[1, 6, 7], [8, 9, 27]]
LF = [[[2, 3], [4, 5]], [[10, 11], [12, 13]]]
def xf(el, t, q): return XF + el*8 + t*4 + q
GAHEAD = P("GAHEAD", 6)
TOUCH = P("TOUCH", 0)
CPF = P("CPF", 1)
X = os.environ.get("X", "").split(",")
NPF0 = P("NPF0", 3)
PFAT = P("PFAT", 7)
SPEC = P("SPEC", 14)
NPB = P("NPB", 0)
FLD = P("FLD", 9)
FSIG = P("FSIG", 4)
FCHK = P("FCHK", 12)
ABAR = P("ABAR", 3)
PEARLY = P("PEARLY", 1)
DBLST = P("DBLST", 0)
PFB = [(S_W1, 512 + 1024*k) for k in range(6)] + [(S_WC, 0), (S_WC, 1024)]

def a_gaddr(s, h):
    g = vG[s & 1]
    c = s >> 1; r = vI + 2*(s & 1)
    if h == 0: e(f"v_add_u32_dpp v{g}, v{r}, v{vSw} row_newbcast:{c} row_mask:0xf bank_mask:0x3")
    else: e(f"v_add_u32_dpp v{g}, v{r}, v{vSw} row_newbcast:{8+c} row_mask:0xf bank_mask:0xc")
def a_gissue(s):
    A.vmem(f"buffer_load_dwordx4 v{vG[s & 1]}, {srd(S_TAB)}, 0 offen lds", f"g{s}")
def a_gather(s):
    a_gaddr(s, 0)
    e(f"s_add_u32 m0, s{sMB}, {s*8192}")
    a_gaddr(s, 1)
    a_gissue(s)

def gelu(dst, x, t0, vc0):
    e(f"v_mul_f32 v{t0}, v{x}, v{x}")
    e(f"v_fma_f32 v{t0}, v{t0}, s{sC1}, v{vc0}")
    e(f"v_mul_f32 v{t0}, v{t0}, v{x}")
    e(f"v_exp_f32 v{t0}, v{t0}")
    e(f"v_add_f32 v{t0}, 1.0, v{t0}")
    e(f"v_rcp_f32 v{t0}, v{t0}")
    e(f"v_mul_f32 v{dst}, v{x}, v{t0}")

def zipl(lists):
    n = max(len(x) for x in lists)
    for i in range(n):
        for x in lists:
            if i < len(x): A.L.append(x[i])
class Cap:
    def __enter__(s): s.sv = A.L; A.L = []; s.l = A.L; return s
    def __exit__(s, *a): A.L = s.sv

def setexec(m32):
    e(f"s_mov_b32 exec_lo, {m32:#x}")
    e(f"s_mov_b32 exec_hi, {m32:#x}")

def role_a():
    A.reset()
    U, AK, ACCP = 228, 236, 252
    t0, t1, t2, t3, t4, t5 = U, U+1, U+2, U+3, U+4, U+5
    L15, G, aS2, aS1, aS1t, aWb = AK, AK+1, AK+2, AK+3, AK+4, AK+5
    TM = T
    cm("===== role A")
    e(f"v_bfe_u32 v{t0}, v0, 3, 5")
    e(f"v_mul_u32_u24 v{t0}, 104, v{t0}")
    e(f"v_and_b32 v{t1}, 7, v0")
    e(f"v_lshl_add_u32 v{t0}, v{t1}, 4, v{t0}")
    e(f"v_lshrrev_b32 v{t1}, 8, v0")
    e(f"v_lshl_add_u32 v{t0}, v{t1}, 2, v{t0}")
    e(f"s_lshl1_add_u32 s{sT2}, s{sRG}, s{sHF}")
    e(f"s_mul_i32 s{sT2}, s{sT2}, {32*104}")
    e(f"s_lshl_b32 s{sMB}, s{sW}, 10")
    e(f"s_lshr_b32 s{sT0}, s2, 5")
    e(f"s_lshl1_add_u32 s{sT0}, s{sT0}, s{sHF}")
    e(f"s_lshl_b32 s{sT0}, s{sT0}, 13")
    e(f"v_and_b32 v{t2}, 63, v0")
    e(f"v_lshl_add_u32 v{vPf}, v{t2}, 7, s{sT0}")
    e(f"v_lshlrev_b32 v{t3}, 4, v0")
    e(f"s_cmp_lt_u32 s{sW}, 2")
    e(f"s_cselect_b32 s{sT3}, 4, 7")
    e(f"s_cselect_b32 s{sT0}, 0, s{sT0}")
    e(f"v_lshlrev_b32 v{t4}, s{sT3}, v{t2}")
    e(f"s_cselect_b32 s{S_SW1+2}, 676, s{S_W1+2}")
    e(f"s_mov_b32 s{S_SW1+3}, 0x00020000")
    e(f"s_sub_u32 s{sT1}, s{sW}, {8 - NPF0}")
    e(f"s_lshl_b32 s{sT1}, s{sT1}, 17")
    e(f"s_add_u32 s{sT1}, s{sT1}, 65536")
    e(f"s_min_u32 s{sT1}, s{sT1}, 0x7f000000")
    e(f"s_cmp_lt_u32 s{sW}, 2")
    e(f"s_cselect_b32 s{sT1}, 0, s{sT1}")
    e(f"s_add_u32 s{sT1}, s{sT1}, s{sT0}")
    e(f"s_min_u32 s{sT3}, s{sMB}, 2048")
    mksrd(S_WBI)
    e(f"s_add_u32 m0, s{sMB}, {L_WBI}")
    e("s_waitcnt lgkmcnt(0)")
    A.vmem(f"buffer_load_dwordx3 {vr(vI,3)}, v{t0}, {srd(S_IDX)}, s{sT2} offen", "idx")
    cpsrd(S_WBI, 2)
    e(f"s_cmp_eq_u32 s{sW}, 0")
    e(f"s_cselect_b64 s[{S_SW1}:{S_SW1+1}], s[{KT}:{KT+1}], s[{KT+2}:{KT+3}]")
    e(f"s_cmp_lt_u32 s{sW}, 2")
    e(f"s_cselect_b64 s[{S_SW1}:{S_SW1+1}], s[{S_SW1}:{S_SW1+1}], s[{S_W1}:{S_W1+1}]")
    if STAMPS == 2: stamp()
    e("s_barrier")
    A.vmem(f"buffer_load_dwordx4 v{t3}, {srd(S_WBI)}, 0 offen lds", "sm")
    e(f"s_add_u32 m0, s{sT3}, {L_SE1}")
    A.vmem(f"buffer_load_dwordx4 v{t4}, {srd(S_SW1)}, s{sT1} offen lds", "se")
    e("s_branch L_A2")
    sv = (A.vm, A.ds, A.vm_done, A.ds_done, nst[0])
    b_head()
    A.vm, A.ds, A.vm_done, A.ds_done, nst[0] = sv
    lab("L_A2")
    cm("this workgroup's piece of w_cross: task x16 = (part, jt, kb); wave t loads the 16 lines (i(t), j(jl))")
    sKb, sJt, sPt, sWF = sM6, 55, 3, sK6
    e(f"s_lshr_b32 s{sT3}, s2, 5")
    e(f"s_lshl1_add_u32 s{sT3}, s{sT3}, s{sHF}")
    e(f"s_and_b32 s{sKb}, s{sT3}, 3")
    e(f"s_bfe_u32 s{sJt}, s{sT3}, 0x10002")
    e(f"s_lshr_b32 s{sPt}, s{sT3}, 3")
    e(f"v_bfe_u32 v{t1}, v0, 4, 1")
    e(f"v_bfe_u32 v{t2}, v0, 3, 1")
    e(f"v_lshl_add_u32 v{t1}, v{t1}, 3, v{t2}")
    e(f"v_bfe_u32 v{t2}, v0, 5, 1")
    e(f"v_lshl_add_u32 v{t1}, v{t2}, 1, v{t1}")
    e(f"s_lshl_b32 s{sT0}, s{sJt}, 4")
    e(f"v_add_u32 v{t1}, s{sT0}, v{t1}")
    e(f"v_add_u32 v{t2}, 24, v{t2}")
    e(f"v_add_u32 v{t5}, 4, v{t1}")
    e(f"v_min_u32 v{t5}, 25, v{t5}")
    e(f"v_min_u32 v{t1}, v{t2}, v{t1}")
    e(f"v_lshrrev_b32 v{t2}, 3, v0")
    e(f"v_xor_b32 v{t2}, v{t2}, v0")
    e(f"v_and_b32 v{t2}, 7, v{t2}")
    e(f"v_lshlrev_b32 v{t2}, 4, v{t2}")
    e(f"v_lshl_add_u32 v{t1}, v{t1}, 7, v{t2}")
    e(f"v_lshl_add_u32 v{t5}, v{t5}, 7, v{t2}")
    e(f"s_lshr_b32 s{sT0}, s{sW}, 1")
    e(f"s_lshl2_add_u32 s{sT0}, s{sT0}, s{sKb}")
    e(f"s_and_b32 s{sT1}, s{sW}, 1")
    e(f"s_lshl1_add_u32 s{sT0}, s{sT0}, s{sT1}")
    e(f"s_add_u32 s{sT1}, s{sT1}, 24")
    e(f"s_min_u32 s{sT0}, s{sT0}, s{sT1}")
    e(f"s_mul_i32 s{sT1}, s{sPt}, 26")
    e(f"s_add_u32 s{sT0}, s{sT0}, s{sT1}")
    e(f"s_mul_i32 s{sT0}, s{sT0}, 3328")
    mksrd(S_WC); cpsrd(S_WC, 3)
    e(f"s_lshl_b32 s{sT1}, s{sMB}, 1")
    e(f"s_add_u32 m0, s{sT1}, {L_PST}")
    e(f"s_and_b32 s{sWF}, s2, 7")
    A.vmem(f"buffer_load_dwordx4 v{t1}, {srd(S_WC)}, s{sT0} offen lds", "pc")
    e("s_addk_i32 m0, 0x400")
    e(f"s_lshl3_add_u32 s{sWF}, s{sWF}, s{sW}")
    A.vmem(f"buffer_load_dwordx4 v{t5}, {srd(S_WC)}, s{sT0} offen lds", "pc")
    e(f"s_lshl_b32 s{sWF}, s{sWF}, 15")
    e(f"s_add_u32 s{sMB2}, s{sWF}, {WFB}")
    e(f"s_lshl_b32 s{sT3}, s{sT3}, 8")
    e(f"s_add_u32 s{sWF}, s{sMB2}, s{sT3}")
    e(f"v_lshrrev_b32 v{t1}, 4, v0")
    e(f"v_xor_b32 v{t1}, v{t1}, v0")
    e(f"v_and_b32 v{t1}, 7, v{t1}")
    e(f"v_lshlrev_b32 v{vSw}, 4, v{t1}")
    e(f"v_and_b32 v{L15}, 15, v0")
    e(f"v_bfe_u32 v{G}, v0, 4, 2")
    e(f"v_lshrrev_b32 v{t0}, 1, v{L15}")
    e(f"s_and_b32 s{sT0}, s{sW}, 1")
    e(f"s_lshl_b32 s{sT0}, s{sT0}, 11")
    e(f"v_lshl_add_u32 v{t1}, v{L15}, 7, s{sT0}")
    e(f"v_xor_b32 v{t2}, v{G}, v{t0}")
    e(f"v_lshl_add_u32 v{aE[0][0]}, v{t2}, 4, v{t1}")
    e(f"v_xor_b32 v{aE[1][0]}, 64, v{aE[0][0]}")
    e(f"v_xor_b32 v{aE[0][1]}, 0x800, v{aE[0][0]}")
    e(f"v_xor_b32 v{aE[1][1]}, 0x800, v{aE[1][0]}")
    e(f"v_xor_b32 v{t2}, s{sW}, v{t0}")
    e(f"v_lshlrev_b32 v{t2}, 4, v{t2}")
    e(f"v_add_u32 v{t3}, v{t2}, v{t1}")
    e(f"v_lshl_add_u32 v{aC[0]}, v{G}, 13, v{t3}")
    e(f"v_xor_b32 v{aC[1]}, 0x800, v{aC[0]}")
    e(f"v_min_u32 v{t4}, 1, v{G}")
    e(f"v_lshl_add_u32 v{aC6[0]}, v{t4}, 12, v{t3}")
    e(f"v_add_u32 v{aC6[0]}, {24*4096}, v{aC6[0]}")
    e(f"v_xor_b32 v{aC6[1]}, 0x800, v{aC6[0]}")
    e(f"v_lshrrev_b32 v{t0}, 2, v{L15}")
    e(f"v_and_b32 v{t1}, 1, v{L15}")
    e(f"v_lshl_add_u32 v{t2}, v{t0}, 1, v{t1}")
    e(f"v_lshlrev_b32 v{t3}, 1, v{t2}")
    e(f"v_lshl_add_u32 v{t3}, v{G}, 10, v{t3}")
    e(f"s_lshl_b32 s{sT0}, s{sW}, 4")
    e(f"s_add_u32 s{sT0}, s{sT0}, {L_WBI}")
    e(f"v_add_u32 v{aWb}, s{sT0}, v{t3}")
    e(f"s_bfe_u32 s{sT0}, s{sW}, 0x10001")
    e(f"v_bfe_u32 v{t3}, v{L15}, 1, 1")
    e(f"v_lshl_add_u32 v{t3}, v{t3}, 3, v{t2}")
    e(f"s_lshl_b32 s{sT1}, s{sT0}, 4")
    e(f"v_add_u32 v{t3}, s{sT1}, v{t3}")
    e(f"v_add_u32 v{t4}, 24, v{t0}")
    e(f"v_min_u32 v{t3}, v{t3}, v{t4}")
    e(f"s_mov_b32 s{sT2}, {L_SE1}")
    e(f"v_mov_b32 v{t5}, s{sT2}")
    e(f"s_movk_i32 s{sT3}, 208")
    e(f"v_mad_u32_u24 v{t4}, v{G}, s{sT3}, v{t5}")
    e(f"v_lshl_add_u32 v{aS2}, v{t3}, 1, v{t4}")
    e(f"v_lshl_add_u32 v{t5}, v{L15}, 1, v{t5}")
    e(f"v_mad_u32_u24 v{aS1t}, v{G}, 26, v{t5}")
    e(f"v_mad_u32_u24 v{aS1}, v{G}, 52, v{t5}")
    e(f"v_mov_b32 v{t5}, 0")
    setexec(0x44444444)
    e(f"v_mov_b32 v{t5}, 0x3c803c80")
    e("s_mov_b64 exec, -1")
    for d in range(8): e(f"v_mov_b32 v{WB + d}, v{t5}")
    def setup2():
        e(f"v_and_b32 v{t3}, 63, v0")
        e(f"v_lshlrev_b32 v{vJ[0]}, 4, v{t3}")
        e(f"v_bfrev_b32 v{vJ[1]}, 2")
        setexec(0x33773377)
        e(f"v_mov_b32 v{vJ[1]}, v{vJ[0]}")
        e("s_mov_b64 exec, -1")
        e(f"s_and_b32 s{sT0}, s{sW}, 1")
        e(f"s_mul_i32 s{sT2}, s{sT0}, {16*144}")
        e(f"s_sub_u32 s{sT3}, {16*144 + L_AV}, s{sT2}")
        e(f"s_add_u32 s{sT2}, s{sT2}, {L_AV}")
        e(f"v_mul_u32_u24 v{t3}, 144, v{L15}")
        e(f"v_lshl_add_u32 v{t5}, v{G}, 5, v{t3}")
        e(f"v_add_u32 v{aAr[0]}, s{sT2}, v{t5}")
        e(f"v_add_u32 v{aAr[1]}, s{sT3}, v{t5}")
        e(f"v_add_u32 v{aAw}, s{sT1}, v{aAr[0]}")
        e(f"s_lshl1_add_u32 s{sT0}, s{sW}, s{sT0}")
        e(f"s_lshl_b32 s{sT0}, s{sT0}, 10")
        e(f"s_add_u32 s{sT0}, s{sT0}, {R2}")
        e(f"v_add_u32 v{aRed}, s{sT0}, v{vJ[0]}")
    def setup4():
        for b in (S_OUT, S_DBG, S_WS): mksrd(b)
        for k, b in enumerate((S_OUT, S_DBG, S_WS)): cpsrd(b, k + 5)
        consts()
        e(f"v_mov_b32 v{ZF+3}, 0")
        e(f"v_mov_b32 v{PA + 7}, 0")
        e(f"v_mov_b32 v{PA + 11}, 0")
    def produce1():
        e(f"v_and_b32 v{t3}, 7, v0")
        e(f"v_xor_b32 v{t3}, s{sW}, v{t3}")
        e(f"v_lshlrev_b32 v{t3}, 4, v{t3}")
        e(f"v_lshl_add_u32 v{t3}, v{L15}, 7, v{t3}")
        e(f"v_lshl_add_u32 v{t3}, v{G}, 2, v{t3}")
        e(f"v_add_u32 v{PA}, {L_PST}, v{t3}")
        e(f"v_lshlrev_b32 v{t3}, 13, v{G}")
        e(f"v_lshl_add_u32 v{PA+1}, v{L15}, 4, v{t3}")
        e(f"v_lshrrev_b32 v{t3}, 1, v{L15}")
        e(f"v_and_b32 v{t4}, 1, v0")
        e(f"v_lshlrev_b32 v{t4}, 7, v{t4}")
        e(f"v_lshl_add_u32 v{vPw}, v{t3}, 12, v{t4}")
    PA = CAP
    setup2()
    stamp()
    A.vm_wait("idx")
    stamp()
    fs0 = (lambda: fstamp()) if FS == -1 else (lambda: None)
    fs0()
    e(f"v_lshlrev_b32 v{vI}, 7, v{vI}")
    e(f"v_lshlrev_b32 v{vI+2}, 7, v{vI+2}")
    for s in range(min(5, GAHEAD)): a_gather(s)
    fs0()
    def pfbatch():
        if NPF0 + NPB >= 6: return
        e(f"s_lshl_b32 s{sT1}, s{sW}, 17")
        e(f"s_add_u32 s{sT1}, s{sT1}, {65536 + (NPF0 + NPB)*131072}")
        A.vmem(f"buffer_load_dword v{vDum}, v{vPf}, {srd(S_W1)}, s{sT1} offen", "pf")
    produce1()
    setup4()
    e(f"v_and_b32 v{t0}, 31, v0")
    e(f"v_bfe_u32 v{t1}, v0, 5, 1")
    e(f"v_lshlrev_b32 v{t0}, 3, v{t0}")
    e(f"v_lshl_add_u32 v{t0}, v{t1}, 9, v{t0}")
    e(f"s_lshl_b32 s{sT0}, s{sRG}, 2")
    e(f"s_add_u32 s{sT0}, s{sT0}, s{sHF}")
    e(f"s_lshl_b32 s{sT0}, s{sT0}, 8")
    e(f"v_add_u32 v{vHo}, s{sT0}, v{t0}")
    A.vm_wait("pc" if PEARLY else "sm")
    fs0()
    e("s_barrier")
    fs0()
    def produce2():
        for t in range(8):
            A.lds(f"ds_read_b32 v{PA + 12 + t}, v{PA} offset:{t*2048}", "pr")
    def produce3():
        A.ds_wait("pr")
        for q in range(3):
            e(f"v_perm_b32 v{PA + 4 + q}, v{PA + 13 + 2*q}, v{PA + 12 + 2*q}, s{sLO}")
            e(f"v_perm_b32 v{PA + 8 + q}, v{PA + 13 + 2*q}, v{PA + 12 + 2*q}, s{sHI}")
        cm("fields 24,25 sit in the k-block that equals the e pair index")
        e(f"s_lshl_b32 s{sT0}, s{sKb}, 4")
        e(f"s_lshl_b64 exec, 0xffff, s{sT0}")
        e(f"v_perm_b32 v{PA + 7}, v{PA + 19}, v{PA + 18}, s{sLO}")
        e(f"v_perm_b32 v{PA + 11}, v{PA + 19}, v{PA + 18}, s{sHI}")
        e("s_mov_b64 exec, -1")
        e(f"s_add_u32 s{sT0}, s{sWF}, 4096")
        A.vmem(f"buffer_store_dwordx4 {vr(PA + 4, 4)}, v{PA + 1}, {srd(S_WS)}, s{sWF} offen sc1", "st")
        A.vmem(f"buffer_store_dwordx4 {vr(PA + 8, 4)}, v{PA + 1}, {srd(S_WS)}, s{sT0} offen sc1", "st")
        if DBLST:
            A.vmem(f"buffer_store_dwordx4 {vr(PA + 4, 4)}, v{PA + 1}, {srd(S_WS)}, s{sWF} offen", "st2")
            A.vmem(f"buffer_store_dwordx4 {vr(PA + 8, 4)}, v{PA + 1}, {srd(S_WS)}, s{sT0} offen", "st2")
    if PEARLY: produce2()
    for k in range(16):
        A.lds(f"ds_read_u16 v{TM + k}, v{aWb} offset:{(32*(k >> 3) + (k & 7))*128}", f"wb{k >> 3}")
    fs0()
    if PEARLY: produce3()
    A.ds_all()
    setexec(0x33333333)
    for d in range(8):
        e(f"v_lshl_or_b32 v{WB + d}, v{TM + 2*d + 1}, 16, v{TM + 2*d}")
    e("s_mov_b64 exec, -1")
    SEA = [aS1, aS1t, aS2]
    for k in range(3): e(f"v_mov_b32 v{CAP + 48 + k}, v{SEA[k]}")
    def se_frags():
        TM2 = CAP + 20
        for t in range(6):
            A.lds(f"ds_read_u16 v{TM2 + t}, v{CAP + 48} offset:{(8*(t >> 1) + (t & 1))*26}", "se")
        A.lds(f"ds_read_u16 v{SE1F + 3}, v{CAP + 49} offset:{24*26}", "se")
    def se_frags2():
        TM2 = CAP + 20
        A.ds_wait("se")
        for kk in range(4):
            A.lds(f"ds_read_u16 v{TM2 + 8 + kk}, v{CAP + 50} offset:{1024 + kk*52}", "se")
    def se_frags3():
        TM2 = CAP + 20
        A.ds_wait("se")
        for q in range(3): e(f"v_lshl_or_b32 v{SE1F + q}, v{TM2 + 2*q + 1}, 16, v{TM2 + 2*q}")
        for q in range(2): e(f"v_lshl_or_b32 v{SE2F + q}, v{TM2 + 8 + 2*q + 1}, 16, v{TM2 + 8 + 2*q}")
    deferred = []
    stamp()
    def swaps(q, tls=(0, 1)):
        for tl in tls:
            for r in range(2):
                R = [xf(2*g + r, tl, q) for g in range(4)]
                e(f"v_permlane32_swap_b32 v{R[0]}, v{R[2]}")
                e(f"v_permlane32_swap_b32 v{R[1]}, v{R[3]}")
        for tl in tls:
            for r in range(2):
                R = [xf(2*g + r, tl, q) for g in range(4)]
                e(f"v_permlane16_swap_b32 v{R[0]}, v{R[1]}")
                e(f"v_permlane16_swap_b32 v{R[2]}, v{R[3]}")
    DDS = [DD, CAP + 32]
    def pack(s, tl):
        q, Gq = s >> 2, s & 3
        d = DDS[s & 1]
        for r in range(2):
            e(f"v_cvt_pk_bf16_f32 v{xf(2*Gq + r, tl, q)}, v{d + tl*4 + r}, v{d + 8 + tl*4 + r}")
    def packz(s):
        q, Gq = s >> 2, s & 3
        d = DDS[s & 1]
        lo = 0xffff << (16*Gq)
        e(f"s_mov_b32 exec_lo, {lo & 0xffffffff}")
        e(f"s_mov_b32 exec_hi, {lo >> 32}")
        e(f"v_cvt_pk_bf16_f32 v{ZF + q}, v{d + 2}, v{d + 8 + 2}")
        e("s_mov_b64 exec, -1")
    wl = [0]
    def wload():
        k = wl[0]
        if k >= 32: return
        wl[0] += 1
        u, part, x = k >> 2, (k >> 1) & 1, k & 1
        ep, jt = u >> 1, u & 1
        e(f"s_add_u32 s{sT0}, s{sMB2}, {(2*ep + x)*4096}")
        A.vmem(f"buffer_load_dwordx4 {vr(RING[k % 8], 4)}, v{vJ[jt]}, {srd(S_WS)}, s{sT0} offen offset:{part*2048 + jt*1024} sc1", f"w{k >> 1}")
    QB = [[AF + 4*i for i in range(8)], [AK, AK+4, AK+8, AK+12, U, U+4, ACCP, RAW+20]]
    def rd(s, i):
        if "anord" in X and i & 1: return
        tl, fi, ks = i >> 2, (i >> 1) & 1, i & 1
        f = 2*s + fi
        A.lds(f"ds_read_b128 {vr(QB[s & 1][i], 4)}, v{aE[ks][tl]} offset:{(f & 15)*4096}", f"e{s}_{i >> 1}")
    def mmi(s, i):
        if "anomm" in X:
            if not i & 1: A.ds_wait(f"e{s}_{i >> 1}")
            return
        tl, fi = i >> 2, (i >> 1) & 1
        d = DDS[s & 1] + fi*8 + tl*4
        if i & 1: mf16(d, WB + 4, QB[s & 1][i], d)
        else:
            A.ds_wait(f"e{s}_{i >> 1}")
            mf16(d, WB, QB[s & 1][i])
    def issue(s):
        if s + GAHEAD < 13:
            e(f"s_add_u32 m0, s{sMB}, {(s + GAHEAD)*8192}")
            a_gissue(s + GAHEAD)
    swq = []
    def take(lst, n):
        for _ in range(n):
            if lst: A.L.append(lst.pop(0))
    for s in range(5, GAHEAD): a_gather(s)
    if GAHEAD < 13:
        for h in range(2): a_gaddr(GAHEAD, h)
    def flagcheck():
        cm("wave 0: every producer of this group's W-fragment image has signalled")
        A.vm_wait("fl")
        e(f"s_cmp_lg_u32 s{sW}, 0")
        e("s_cbranch_scc1 L_flok")
        lab("L_flp")
        e(f"v_and_b32 v{vFl}, 0x01000100, v{vFl}")
        e(f"v_cmp_ne_u32 vcc, 0x01000100, v{vFl}")
        e("s_and_b32 vcc_lo, vcc_lo, 0xff")
        e("s_cbranch_scc0 L_flok")
        e("s_sleep 8")
        e(f"v_lshlrev_b32 v{vFl}, 1, v{vJ[0]}")
        e(f"s_and_b32 s{sT0}, s2, 7")
        e(f"s_lshl_b32 s{sT0}, s{sT0}, 2")
        e(f"buffer_load_dword v{vFl}, v{vFl}, {srd(S_DBG)}, s{sT0} offen sc1")
        e("s_waitcnt vmcnt(0)")
        e("s_branch L_flp")
        lab("L_flok")
    for s in range(13):
        cm(f"-- A step {s}")
        if s % 2 == 0:
            if s < 12 or FCHK == 12:
                A.vm_wait(f"g{min(s + 1, 12) if s != 10 or FCHK == 12 else 12}")
                if s == FSIG: A.vm_wait("st")
                if s == FCHK: flagcheck()
                e("s_barrier")
            if s in (0, 4, 8, 12): stamp()
            if s == 0 and not PEARLY: produce2()
            with Cap() as cf:
                if s == 12:
                    for tl in range(2): e(f"v_add_u32 v{aC2[tl]}, 0x10000, v{aC[tl]}")
            fill = list(cf.l)
            for i in range(8):
                if s: mmi(s - 1, i)
                rd(s, i)
                if s == 12:
                    take(fill, 1)
                    if i == 7: packz(11)
            issue(s)
            if s == 0 and not PEARLY: produce3()
            if s == FSIG:
                cm("signal: this workgroup's fragments are stored (only wave 0 stays in range); pull them into L2")
                e(f"s_lshl_b32 s{sT0}, s{sHF}, 4")
                e(f"s_lshl_b32 s{sT0}, 0x100, s{sT0}")
                e(f"v_mov_b32 v{vFl}, s{sT0}")
                e(f"s_lshl_b32 s{sT0}, s{sW}, 6")
                e(f"s_add_u32 s{sT0}, s{sT0}, s{sRG}")
                e(f"s_lshl_b32 s{sT0}, s{sT0}, 2")
                e("s_mov_b64 exec, 1")
                A.vmem(f"buffer_atomic_or v{vFl}, off, {srd(S_DBG)}, s{sT0} sc1", "sig")
                e("s_mov_b64 exec, 0xffff")
                if not DBLST: A.vmem(f"buffer_load_dword v{vDum}, v{vPw}, {srd(S_WS)}, s{sWF} offen sc1", "pf")
                e("s_mov_b64 exec, -1")
            if s >= FCHK and s < 12:
                wload(); wload()
            if s == 2: se_frags()
            continue
        with Cap() as cf:
            if s >= 3:
                pack(s - 2, 0); pack(s - 2, 1)
            for ss in (s, s + 1):
                if ss + GAHEAD < 13:
                    for h in range(2): a_gaddr(ss + GAHEAD, h)
            if s in (5, 9): swaps((s >> 2) - 1, (0,))
            if s in (7, 11): swaps((s >> 2) - 1, (1,))
        fill = list(cf.l)
        for i in range(8):
            mmi(s - 1, i)
            rd(s, i)
            if i < 6: take(fill, -(-len(fill) // (6 - i)))
            if i == 5 and s >= 3: packz(s - 2)
            if i == 6: pack(s - 1, 0)
            if i == 7: packz(s - 1)
        issue(s)
        if s == PFAT:
            pfbatch()
            e(f"s_lshl_b32 s{sT0}, s{sW}, 28")
            A.vmem(f"buffer_load_dword v{vTag}, v{vHo}, {srd(S_WS)}, s{sT0} offen offset:4 sc1", "snap")
        if s == FLD:
            e(f"v_lshlrev_b32 v{vFl}, 1, v{vJ[0]}")
            e(f"s_and_b32 s{sT0}, s2, 7")
            e(f"s_lshl_b32 s{sT1}, s{sW}, 6")
            e(f"s_add_u32 s{sT0}, s{sT0}, s{sT1}")
            e(f"s_lshl_b32 s{sT0}, s{sT0}, 2")
            A.vmem(f"buffer_load_dword v{vFl}, v{vFl}, {srd(S_DBG)}, s{sT0} offen sc1", "fl")
        if s > FCHK:
            wload(); wload()
        if s == 3: se_frags2()
        if s == 5: se_frags3()
        if s == 7:
            for r in aE[0] + aE[1]: e(f"v_add_u32 v{r}, 0x10000, v{r}")
        pack(s - 1, 1)
    for i in range(8): mmi(12, i)
    SL = [[RAW + 16, RAW + 17]]
    def tailwork():
        pack(11, 0); pack(11, 1)
        while wl[0] < 8: wload()
        for tl in range(2):
            for el in range(8):
                e(f"v_cvt_pk_bf16_f32 v{xf(el, tl, 3)}, v{DD + tl*4 + (el & 1)}, v{DD + 8 + tl*4 + (el & 1)}")
            for fi in range(2):
                for r in range(2): e(f"v_mov_b32 v{LF[tl][fi][r]}, v{DD + fi*8 + tl*4 + r}")
        swaps(2)
        for tl in range(2):
            for p in range(2): e(f"v_mov_b32 v{UH + tl*16 + 14 + p}, 0")
    e(f"s_cmp_ge_u32 s{sW}, 4")
    e("s_cbranch_scc1 L_nosenet")
    cm("waves 0..3: SENET first")
    sv = (list(A.vm), A.vm_done, wl[0])
    e("s_mov_b64 exec, 0xffff")
    e(f"v_cvt_pk_bf16_f32 v{ZF + 3}, v{DD + 2}, 0")
    e("s_mov_b32 exec_lo, 0xffff0000")
    e(f"v_cvt_pk_bf16_f32 v{ZF + 3}, v{DD + 8 + 2}, 0")
    e("s_mov_b64 exec, -1")
    b = 228
    mf16(b, SE1F, ZF)
    e(f"v_mov_b32 v{b+20}, s{sC0}")
    e(f"v_cvt_pk_bf16_f32 v{b+8}, v{b+0}, v{b+1}")
    e(f"v_cvt_pk_bf16_f32 v{b+9}, v{b+2}, v{b+3}")
    for d in range(2):
        e(f"v_lshlrev_b32 v{b+2*d}, 16, v{b+8+d}")
        e(f"v_and_b32 v{b+2*d+1}, s{sMSK}, v{b+8+d}")
    ls = []
    for r in range(4):
        with Cap() as c: gelu(b + 4 + r, b + r, b + 12 + r, b + 20)
        ls.append(c.l)
    zipl(ls)
    e(f"v_cvt_pk_bf16_f32 v{b+10}, v{b+4}, v{b+5}")
    e(f"v_cvt_pk_bf16_f32 v{b+11}, v{b+6}, v{b+7}")
    e(f"v_mfma_f32_16x16x16_bf16 {vr(b+16,4)}, {vr(SE2F,2)}, {vr(b+10,2)}, 0")
    e(f"v_cvt_pk_bf16_f32 v{b+8}, v{b+16}, v{b+17}")
    e(f"v_cvt_pk_bf16_f32 v{b+9}, v{b+18}, v{b+19}")
    for d in range(2):
        e(f"v_lshlrev_b32 v{b+2*d}, 16, v{b+8+d}")
        e(f"v_and_b32 v{b+2*d+1}, s{sMSK}, v{b+8+d}")
    for r in range(4): e(f"v_mul_f32 v{b+r}, s{sNL}, v{b+r}")
    for r in range(4): e(f"v_exp_f32 v{b+r}, v{b+r}")
    for r in range(4): e(f"v_add_f32 v{b+r}, 1.0, v{b+r}")
    for r in range(4): e(f"v_rcp_f32 v{b+r}, v{b+r}")
    for r in range(4): e(f"v_cvt_pk_bf16_f32 v{b+4+r}, 0, v{b+r}")
    e(f"ds_write_b128 v{aAw}, {vr(b+4,4)}")
    e("s_waitcnt lgkmcnt(0)")
    stamp()
    e("s_barrier")
    tailwork()
    e("s_branch L_post")
    lab("L_nosenet")
    e("s_nop 7")
    A.vm, A.vm_done, wl[0] = list(sv[0]), sv[1], sv[2]
    tailwork()
    e("s_barrier")
    lab("L_post")
    A.ds_done = len(A.ds) - 1
    for tl in range(2):
        for u in range(2):
            A.lds(f"ds_read_b128 {vr(AJ + tl*8 + u*4, 4)}, v{aAr[tl]} offset:{u*16}", "ak")
    e(f"v_bfe_u32 v{XQ}, v0, 4, 2")
    e(f"v_lshlrev_b32 v{XQ}, 5, v{XQ}")
    for tl in range(2):
        e(f"v_sub_u32 v{aAr[tl]}, v{aAr[tl]}, v{XQ}")
        A.lds(f"ds_read2_b32 {vr(XQ + 4 + 2*tl, 2)}, v{aAr[tl]} offset0:6 offset1:14", "ak")
    def mms(u, part):
        ep = u >> 1
        A.vm_wait(f"w{2*u + part}")
        for x in range(2):
            for tl in range(2):
                mf16(TS[u & 1][part*4 + x*2 + tl], RING[(4*u + 2*part + x) % 8], XQ + x*8 + tl*4 if part else xf(2*ep + x, tl, 0))
    def xq(ep):
        tmp = TS[0][4]
        for x in range(2):
            for tl in range(2):
                src = xf(2*ep + x, tl, 0)
                for qq in range(3):
                    e(f"v_dot2_f32_bf16 v{tmp + tl*6 + 2*qq}, v{src + qq}, v{AKL[tl][qq]}, 0")
                    e(f"v_dot2_f32_bf16 v{tmp + tl*6 + 2*qq + 1}, v{src + qq}, v{AJ + tl*8 + 2*qq + 1}, 0")
            for tl in range(2):
                dst = XQ + x*8 + tl*4
                if ep == 0: e(f"v_cvt_pk_bf16_f32 v{dst + 3}, v{LF[tl][0][x]}, v{LF[tl][1][x]}")
                for qq in range(3):
                    e(f"v_cvt_pk_bf16_f32 v{dst + qq}, v{tmp + tl*6 + 2*qq}, v{tmp + tl*6 + 2*qq + 1}")
    def fin(u):
        ep, jt = u >> 1, u & 1
        S_ = TS[u & 1]
        for tl in range(2):
            for x in range(2):
                p, q_, a = S_[x*2 + tl], S_[4 + x*2 + tl], AJ + tl*8 + 4*jt
                for r in range(3 if jt else 4): e(f"v_fmac_f32 v{p+r}, v{q_+r}, v{a+r}")
            for r in range(3 if jt else 4):
                e(f"v_cvt_pk_bf16_f32 v{UH + tl*16 + (4*jt + r)*2 + (ep & 1)}, v{S_[tl] + r}, v{S_[2 + tl] + r}")
    def cq(hf):
        for tl in range(2):
            for t in range(7):
                base = aC6[tl] if t == 6 else (aC2[tl] if t >= 4 else aC[tl])
                off = 0 if t == 6 else ((t >> 1) & 1)*32768 + (t & 1)*4096
                A.lds(f"ds_read_b64 {vr(XF + tl*16 + 2*t, 2)}, v{base} offset:{off + 8*hf}", "cq")
    def diag(hf):
        A.ds_wait("cq")
        for k in range(4):
            for tl in range(2):
                mf16(ACC[tl], UH + tl*16 + 4*k, XF + tl*16 + 4*k, ACC[tl] if (hf or k) else None)
    def weave(ml, fl):
        k = 0; nm = sum(1 for m in ml if "v_mfma" in m); i = 0
        for m in ml:
            A.L.append(m)
            if "v_mfma" in m:
                i += 1
                tgt = i * len(fl) // nm
                while k < tgt:
                    A.L.append(fl[k]); k += 1
    mms(0, 0)
    A.ds_wait("ak")
    for tl in range(2):
        for qq in range(3): e(f"v_lshrrev_b32 v{AKL[tl][qq]}, 16, v{AJ + tl*8 + 2*qq}")
        for fi in range(2):
            for r in range(2): e(f"v_mul_f32 v{LF[tl][fi][r]}, v{LF[tl][fi][r]}, v{XQ + 4 + 2*tl + fi}")
    for u in range(8):
        ep, jt = u >> 1, u & 1
        cm(f"-- block ep {ep} jt {jt}")
        if jt == 0:
            stamp()
            xq(ep)
        with Cap() as c1:
            if u: mms(u, 0)
            mms(u, 1)
        with Cap() as c2:
            if u: fin(u - 1)
        weave(c1.l, c2.l)
        for _ in range(4): wload()
        if u == 3: cq(0)
        if u == 4: diag(0)
        if u == 5: cq(1)
    fin(7)
    diag(1)
    stamp()
    e(f"v_xor_b32 v{aAr[0]}, 0x400, v{aRed}")
    e(f"v_and_b32 v1, 31, v0")
    e(f"v_and_b32 v6, 15, v0")
    e(f"v_lshrrev_b32 v7, 2, v6")
    e(f"v_lshl_add_u32 v7, v7, 4, v6")
    e(f"v_lshlrev_b32 v7, 4, v7")
    e(f"v_and_b32 v6, 3, v0")
    e(f"v_lshl_add_u32 v7, v6, 2, v7")
    e(f"ds_write_b128 v{aRed}, {vr(ACC[0], 4)}")
    e(f"ds_write_b128 v{aAr[0]}, {vr(ACC[1], 4)}")
    e(f"v_bfe_u32 v6, v0, 4, 1")
    e(f"v_lshl_add_u32 v7, v6, 10, v7")
    e(f"v_bfe_u32 v6, v0, 5, 1")
    e(f"v_lshl_add_u32 v7, v6, 13, v7")
    e(f"v_add_u32 v7, {R2}, v7")
    e(f"s_lshl_b32 s{sT0}, s{sW}, 28")
    e(f"buffer_load_dwordx2 {vr(vPo,2)}, v{vHo}, {srd(S_WS)}, s{sT0} offen sc1")
    e("s_waitcnt lgkmcnt(0)")
    e("s_barrier")
    e(f"s_cmp_lg_u32 s{sW}, 0")
    e("s_cbranch_scc1 L_end")
    for k in range(4): e(f"ds_read_b32 v{32 + k}, v7 offset:{2048*k}")
    e(f"s_lshl1_add_u32 s{sT0}, s{sRG}, s{sHF}")
    e(f"s_lshl_b32 s{sT0}, s{sT0}, 6")
    e(f"v_lshlrev_b32 v5, 1, v1")
    e(f"s_lshl_b32 s{sT1}, s{sRG}, 2")
    e("s_waitcnt lgkmcnt(0)")
    for st in (2, 1):
        for k in range(st): e(f"v_add_f32 v{32+k}, v{32+k}, v{32+k+st}")
    stamp()
    cm("wait for both deep partials: every tag differs from the snapshot, or both arrival flags are set")
    e(f"s_mov_b32 s{sT3}, 0")
    lab("L_poll")
    e("s_waitcnt vmcnt(0)")
    e(f"v_cmp_eq_u32 vcc, v{vPo+1}, v{vTag}")
    e("s_cbranch_vccz L_got")
    if "noB" in X: e("s_branch L_got")
    e(f"buffer_load_dwordx2 {vr(vPo,2)}, v{vHo}, {srd(S_WS)}, 0 offen sc1")
    e(f"s_add_u32 s{sT3}, s{sT3}, 1")
    e(f"s_and_b32 s{sT2}, s{sT3}, 31")
    e("s_cbranch_scc1 L_poll")
    cm("rarely: the flags (needed only when a partial was already there at the snapshot)")
    e("s_mov_b64 exec, 1")
    e(f"buffer_load_dword v{vPo+3}, off, {srd(S_DBG)}, s{sT1} sc1")
    e("s_waitcnt vmcnt(0)")
    e(f"v_readfirstlane_b32 s{sT2}, v{vPo+3}")
    e("s_mov_b64 exec, -1")
    e(f"s_and_b32 s{sT2}, s{sT2}, 0x00020002")
    e(f"s_cmp_lg_u32 s{sT2}, 0x00020002")
    e("s_cbranch_scc1 L_poll")
    e(f"buffer_load_dwordx2 {vr(vPo,2)}, v{vHo}, {srd(S_WS)}, 0 offen sc1")
    e("s_waitcnt vmcnt(0)")
    lab("L_got")
    e(f"v_add_f32 v32, v32, v{vPo}")
    e("v_mov_b32 v33, v32")
    e("v_permlane32_swap_b32 v32, v33")
    e("v_add_f32 v4, v32, v33")
    e("v_cvt_pk_bf16_f32 v4, v4, v4")
    e("s_mov_b32 exec_hi, 0")
    e(f"buffer_store_short v4, v5, {srd(S_OUT)}, s{sT0} offen")
    if STAMPS:
        e("s_mov_b64 exec, -1")
    e("s_branch L_end")

NWS, NGS = 8, 4
WBASE, GBASE = 0, NWS*16384
B_RED = 4*16384
LEAD = P("LEAD", 8)

BST = {}
vW, vS, vIa, vGt = 1, 2, [4, 8], [12, 13]
def b_head():
    lab("L_B")
    cm("===== role B")
    if "noB" in X: e("s_branch L_exit")
    e(f"s_cmp_lt_u32 s{sW}, 4")
    e("s_cbranch_scc1 L_Bc")
    A.reset(); nst[0] = 0
    t0, t1, t2 = 14, 15, 16
    e("s_setprio 3")
    e(f"v_bfe_u32 v{t0}, v0, 4, 4")
    e(f"v_lshlrev_b32 v{t0}, 9, v{t0}")
    e(f"v_bfe_u32 v{t1}, v0, 4, 2")
    e(f"v_lshlrev_b32 v{t1}, 2, v{t1}")
    e(f"s_and_b32 s{sT0}, s{sW}, 2")
    e(f"v_xor_b32 v{t1}, v{t1}, v0")
    e(f"v_xor_b32 v{t1}, s{sT0}, v{t1}")
    e(f"v_and_b32 v{t1}, 15, v{t1}")
    e(f"v_lshl_add_u32 v{t0}, v{t1}, 4, v{t0}")
    e(f"s_lshl_b32 s{sT0}, s{sHF}, 8")
    e(f"v_add_u32 v{vW}, s{sT0}, v{t0}")
    e(f"s_and_b32 s{sMB}, s{sW}, 3")
    e(f"s_lshl_b32 s{sMB}, s{sMB}, 10")
    e(f"v_bfe_u32 v{t0}, v0, 3, 5")
    e(f"v_mul_u32_u24 v{t0}, 104, v{t0}")
    e(f"v_and_b32 v{t1}, 7, v0")
    e(f"v_lshl_add_u32 v{t0}, v{t1}, 4, v{t0}")
    e(f"s_mul_i32 s{sT1}, s{sRG}, {64*104}")
    e(f"s_mov_b32 m0, s{sMB}")
    e(f"s_mov_b32 s{sT0}, 0")
    e("s_waitcnt lgkmcnt(0)")
    stamp()
    A.vmem(f"buffer_load_dwordx4 {vr(vIa[0],4)}, v{t0}, {srd(S_IDX)}, s{sT1} offen", "idx")
    A.vmem(f"buffer_load_dwordx4 {vr(vIa[1],4)}, v{t0}, {srd(S_IDX)}, s{sT1} offen offset:{32*104}", "idx")
    lab("L_lead")
    for n in range(4):
        e(f"buffer_load_dwordx4 v{vW}, {srd(S_W1)}, s{sT0} offen lds")
        e("s_addk_i32 m0, 0x1000")
        e(f"s_addk_i32 s{sT0}, 0x2000")
    e(f"s_cmp_lt_u32 s{sT0}, {LEAD*32768}")
    e("s_cbranch_scc1 L_lead")
    for f in range(LEAD):
        for n in range(4): A.vm.append(f"w{f}")
    e("s_branch L_Bl2")
    BST["sv"] = (A.vm, A.ds, A.vm_done, A.ds_done, nst[0])

def role_b():
    A.vm, A.ds, A.vm_done, A.ds_done, nst[0] = BST["sv"]
    lab("L_Bl2")
    t1 = 15
    e(f"v_lshrrev_b32 v{t1}, 4, v0")
    e(f"v_xor_b32 v{t1}, v{t1}, v0")
    e(f"v_and_b32 v{t1}, 7, v{t1}")
    e(f"v_lshlrev_b32 v{vS}, 4, v{t1}")
    if STAMPS:
        rest_srds(); rest_srds2()
    if TOUCH == 2:
        for k in (4, 5, 6, 7):
            e(f"s_load_dword s{sT3}, s[{KT+2*k}:{KT+2*k+1}], 0")
    wq = [(f, n) for f in range(LEAD, 26) for n in range(4)]
    def wpiece():
        f, n = wq.pop(0)
        e(f"s_add_u32 m0, s{sMB}, {WBASE + (f % NWS)*16384 + n*4096}")
        e(f"s_mov_b32 s{sT0}, {f*32768 + n*8192}")
        A.vmem(f"buffer_load_dwordx4 v{vW}, {srd(S_W1)}, s{sT0} offen lds", f"w{f}")
    def gpiece(f):
        c = f >> 2
        for u in range(2):
            e(f"v_add_u32_dpp v{vGt[u]}, v{vIa[u] + (f & 3)}, v{vS} row_newbcast:{c} row_mask:0xf bank_mask:0x3")
        e(f"s_add_u32 m0, s{sMB}, {GBASE + (f % NGS)*8192}")
        for u in range(2):
            e(f"v_add_u32_dpp v{vGt[u]}, v{vIa[u] + (f & 3)}, v{vS} row_newbcast:{8+c} row_mask:0xf bank_mask:0xc")
        A.vmem(f"buffer_load_dwordx4 v{vGt[0]}, {srd(S_TAB)}, 0 offen lds", f"g{f}")
        e("s_addk_i32 m0, 0x1000")
        A.vmem(f"buffer_load_dwordx4 v{vGt[1]}, {srd(S_TAB)}, 0 offen lds", f"g{f}")
    A.vm_wait("idx")
    for u in range(2):
        for d in range(4): e(f"v_lshlrev_b32 v{vIa[u]+d}, 7, v{vIa[u]+d}")
    stamp()
    for f in range(NGS): gpiece(f)
    tot = len(wq); done = 0
    nsteps = 26 - NGS
    for f in range(26):
        A.vm_wait(f"w{f}"); A.vm_wait(f"g{f}")
        e("s_barrier")
        if f in (0, 6, 12, 18, 25): stamp()
        if f >= 1 and f - 1 + NGS < 26:
            tgt = f * tot // nsteps
            while done < tgt and wq and wq[0][0] <= f - 1 + NWS:
                wpiece(); done += 1
            gpiece(f - 1 + NGS)
    assert not wq
    e("s_branch L_end")
    lab("L_Bc")
    A.reset(); nst[0] = 0
    aEm = [1, 2]; aW = [[3, 4], [5, 6]]
    W2 = 176; ACC = 32
    EF = lambda st, ks, rt: 64 + st*32 + ks*16 + rt*4
    WFr = lambda st, ks, ct: 128 + st*16 + ks*8 + ct*4
    t0, t1, t2, t3 = 7, 9, 10, 11
    rest_srds()
    consts()
    e(f"v_and_b32 v{t0}, 15, v0")
    e(f"v_bfe_u32 v{t1}, v0, 4, 2")
    e(f"v_bfe_u32 v{t2}, v0, 1, 3")
    e(f"v_xor_b32 v{t2}, v{t2}, v{t1}")
    e(f"v_lshlrev_b32 v{t2}, 4, v{t2}")
    e(f"v_lshl_add_u32 v{t2}, v{t0}, 7, v{t2}")
    e(f"v_add_u32 v{aEm[0]}, {GBASE}, v{t2}")
    e(f"v_xor_b32 v{aEm[1]}, 64, v{aEm[0]}")
    e(f"v_bfe_u32 v{t0}, v0, 2, 2")
    e(f"v_lshl_add_u32 v{t2}, v{t1}, 3, v{t0}")
    e(f"v_lshlrev_b32 v{t2}, 8, v{t2}")
    e(f"v_xor_b32 v{t0}, s{sW}, v{t0}")
    e(f"v_lshl_add_u32 v{t2}, v{t0}, 6, v{t2}")
    e(f"v_bfe_u32 v{t0}, v0, 4, 1")
    e(f"v_lshl_add_u32 v{t2}, v{t0}, 5, v{t2}")
    e(f"v_and_b32 v{t0}, 3, v0")
    e(f"v_lshl_add_u32 v{aW[0][0]}, v{t0}, 3, v{t2}")
    e(f"v_xor_b32 v{aW[0][1]}, 32, v{aW[0][0]}")
    for ct in range(2): e(f"v_add_u32 v{aW[1][ct]}, 0x10000, v{aW[0][ct]}")
    e(f"s_lshl_b32 s{sT0}, s{sHF}, 8")
    e(f"s_lshl_b32 s{sT1}, s{sW}, 6")
    e(f"s_add_u32 s{sT0}, s{sT0}, s{sT1}")
    e(f"v_lshlrev_b32 v{t1}, 3, v{t1}")
    e("s_waitcnt lgkmcnt(0)")
    rest_srds2()
    e(f"s_mov_b32 s{sT2}, s{sT0}")
    if NPB:
        cm("weight prefetch into L2: 16 lines per wave and block")
        e(f"s_lshr_b32 s{sT0}, s2, 5")
        e(f"s_lshl1_add_u32 s{sT0}, s{sT0}, s{sHF}")
        e(f"s_lshl2_add_u32 s{sT0}, s{sT0}, s{sW}")
        e(f"s_lshl_b32 s{sT0}, s{sT0}, 11")
        e(f"v_and_b32 v{t0}, 15, v0")
        e(f"v_lshl_add_u32 v{t0}, v{t0}, 7, s{sT0}")
        e(f"v_bfe_u32 v{t2}, v0, 4, 2")
        e(f"v_lshl_add_u32 v{t0}, v{t2}, 17, v{t0}")
        nw1 = min(NPB, 6 - NPF0)
        for b0 in range(0, nw1, 4):
            n = min(4, nw1 - b0)
            if n < 4: e(f"s_mov_b64 exec, {hex((1 << (16*n)) - 1) if n < 3 else '-1'}")
            if n == 3: e("s_mov_b32 exec_hi, 0xffff")
            if n == 2: e("s_mov_b32 exec_lo, -1"); e("s_mov_b32 exec_hi, 0")
            e(f"s_mov_b32 s{sT0}, {65536 + (NPF0 + b0)*131072}")
            e(f"buffer_load_dword v{t3}, v{t0}, {srd(S_W1)}, s{sT0} offen")
            e("s_mov_b64 exec, -1")
    for i in range(32): e(f"v_mov_b32 v{ACC+i}, 0")
    C0 = 12
    e(f"v_mov_b32 v{C0}, s{sC0}"); e(f"v_mov_b32 v{C0+1}, s{sC0}")
    e(f"v_mov_b32 v{C0+2}, s{sC1}"); e(f"v_mov_b32 v{C0+3}, s{sC1}")
    W2R = 160
    vHo, vBt = 172, 175
    e(f"v_lshlrev_b32 v{vHo}, 3, v0")
    e(f"s_lshl1_add_u32 s{sT3}, s{sRG}, s{sHF}")
    e(f"s_lshl_b32 s{sT3}, s{sT3}, 9")
    e(f"s_lshl_b32 s{sT0}, s{sW}, 28")
    e(f"s_add_u32 s{sT3}, s{sT3}, s{sT0}")
    def late_loads():
        for q in range(2):
            A.vmem(f"buffer_load_dwordx2 {vr(W2R + 2*q, 2)}, v{t1}, {srd(S_W2)}, s{sT2} offen offset:{32*q}", "w2")
        A.vmem(f"buffer_load_dword v{vBt}, v{vHo}, {srd(S_WS)}, s{sT3} offen offset:4 sc1", "tag")
    def w2_unpack():
        A.vm_wait("w2")
        for d in range(4):
            e(f"v_lshlrev_b32 v{W2 + 2*d}, 16, v{W2R + d}")
            e(f"v_and_b32 v{W2 + 2*d + 1}, s{sMSK}, v{W2R + d}")
    stamp()
    def rdl(f, ks):
        st = f & 1; ws = f % NWS
        out = []
        def w(ct, u): out.append((f"ds_read_b64_tr_b16 {vr(WFr(st, ks, ct) + 2*u, 2)}, v{aW[ws >> 2][ct]} offset:{(ws & 3)*16384 + ks*8192 + u*1024}", f"r{f}_{ks}a"))
        def em(rt, tag): out.append((f"ds_read_b128 {vr(EF(st, ks, rt), 4)}, v{aEm[ks]} offset:{(f % NGS)*8192 + rt*2048}", tag))
        w(0, 0); w(0, 1); w(1, 0); w(1, 1); em(0, f"r{f}_{ks}a"); em(1, f"r{f}_{ks}b"); em(2, f"r{f}_{ks}c"); em(3, f"r{f}_{ks}d")
        return out
    def mm1(f, ks, rt, ct):
        st = f & 1
        if "bnomm" in X: return
        if "snake" in X and rt & 1: ct ^= 1
        if "rtin" in X:
            k_ = rt*2 + ct; rt, ct = (k_ & 3) if k_ < 4 else 3 - (k_ & 3), k_ >> 2
        d = ACC + rt*8 + ct*4
        if "swapab" in X: mf16(d, EF(st, ks, rt), WFr(st, ks, ct), d)
        else: mf16(d, WFr(st, ks, ct), EF(st, ks, rt), d)
    for f in range(26):
        cm(f"-- B step {f}")
        e("s_barrier")
        if f in (0, 6, 12, 18, 25): stamp()
        if "bidle" in X:
            if f == 23: late_loads()
            continue
        r0, r1 = rdl(f, 0), rdl(f, 1)
        for k in range(8):
            A.lds(*r0[k])
            if k >= 4 and f: mm1(f - 1, 1, (k - 4) >> 1, k & 1)
        for k in range(4):
            if f: mm1(f - 1, 1, 2 + (k >> 1), k & 1)
            A.lds(*r1[k])
        for k in range(8):
            if "rtin" in X:
                if k < 4: A.ds_wait(f"r{f}_0" + "abcd"[k])
            elif not k & 1: A.ds_wait(f"r{f}_0" + "abcd"[k >> 1])
            mm1(f, 0, k >> 1, k & 1)
            if k < 4: A.lds(*r1[4 + k])
        if f == 23: late_loads()
        A.ds_all()
    for k in range(8): mm1(25, 1, k >> 1, k & 1)
    w2_unpack()
    stamp()
    S = 164
    TT = 64
    for hf in range(2):
        ls = []
        for p in range(8):
            rt = 2*hf + (p >> 2); pp = p & 3
            x = ACC + rt*8 + 2*pp; t = TT + 2*p
            with Cap() as c:
                e(f"v_pk_mul_f32 {vr(t,2)}, {vr(x,2)}, {vr(x,2)}")
                e(f"v_pk_fma_f32 {vr(t,2)}, {vr(t,2)}, {vr(C0+2,2)}, {vr(C0,2)}")
                e(f"v_pk_mul_f32 {vr(t,2)}, {vr(t,2)}, {vr(x,2)}")
                e(f"v_exp_f32 v{t}, v{t}")
                e(f"v_exp_f32 v{t+1}, v{t+1}")
                e(f"v_pk_mul_f32 {vr(x,2)}, {vr(x,2)}, {vr(W2 + 2*pp,2)}")
                e(f"v_pk_add_f32 {vr(t,2)}, {vr(t,2)}, 1.0 op_sel_hi:[1,0]")
                e(f"v_rcp_f32 v{t}, v{t}")
                e(f"v_rcp_f32 v{t+1}, v{t+1}")
                if pp == 0: e(f"v_pk_mul_f32 {vr(S + 2*rt,2)}, {vr(x,2)}, {vr(t,2)}")
                else: e(f"v_pk_fma_f32 {vr(S + 2*rt,2)}, {vr(x,2)}, {vr(t,2)}, {vr(S + 2*rt,2)}")
            ls.append(c.l)
        zipl(ls)
    for rt in range(4): e(f"v_add_f32 v{S + 2*rt}, v{S + 2*rt}, v{S + 2*rt + 1}")
    e(f"v_lshlrev_b32 v1, 2, v0")
    e(f"v_add_u32 v1, {B_RED}, v1")
    e(f"v_permlane32_swap_b32 v{S}, v{S+4}")
    e(f"v_permlane32_swap_b32 v{S+2}, v{S+6}")
    e(f"v_add_f32 v{S}, v{S}, v{S+4}")
    e(f"v_add_f32 v{S+2}, v{S+2}, v{S+6}")
    e(f"v_permlane16_swap_b32 v{S}, v{S+2}")
    e(f"v_add_f32 v{S}, v{S}, v{S+2}")
    e(f"ds_write_b32 v1, v{S}")
    e("s_waitcnt lgkmcnt(0)")
    e("s_barrier")
    stamp()
    e(f"s_cmp_lg_u32 s{sW}, 0")
    e("s_cbranch_scc1 L_end")
    for k in range(1, 4): e(f"ds_read_b32 v{16+k}, v1 offset:{256*k}")
    e(f"s_lshl_b32 s{sT1}, s{sRG}, 2")
    e(f"s_lshl_b32 s{sT2}, s{sHF}, 4")
    e(f"s_lshl_b32 s{sT2}, 2, s{sT2}")
    e(f"v_mov_b32 v6, s{sT2}")
    e("s_waitcnt vmcnt(0) lgkmcnt(0)")
    e(f"v_add_u32 v{vBt}, 1, v{vBt}")
    e(f"v_add_f32 v{S}, v{S}, v17")
    e(f"v_add_f32 v18, v18, v19")
    e(f"v_add_f32 v{vBt-1}, v{S}, v18")
    e(f"buffer_store_dwordx2 {vr(vBt-1,2)}, v{vHo}, {srd(S_WS)}, s{sT3} offen sc1")
    e("s_waitcnt vmcnt(0)")
    e("s_mov_b64 exec, 1")
    e(f"buffer_atomic_or v6, off, {srd(S_DBG)}, s{sT1} sc1")
    if STAMPS: e("s_mov_b64 exec, -1")

def fin():
    lab("L_end")
    if STAMPS:
        e("s_waitcnt vmcnt(0)")
        e("s_memtime s[100:101]")
        e("s_memrealtime s[72:73]")
        e("s_waitcnt lgkmcnt(0)")
        e(f"v_writelane_b32 v{VST[0]}, s4, 0")
        e(f"v_writelane_b32 v{VST[0]}, s70, 32")
        e(f"v_writelane_b32 v{VST[0]}, s100, 25")
        e(f"v_writelane_b32 v{VST[0]}, s72, 57")
        e(f"s_lshl3_add_u32 s{sT0}, s2, s{sW}")
        e(f"s_lshl_b32 s{sT0}, s{sT0}, 8")
        e(f"s_add_u32 s{sT0}, s{sT0}, 0x400000")
        e("v_and_b32 v0, 63, v0")
        e("v_lshlrev_b32 v0, 2, v0")
        e(f"buffer_store_dword v{VST[0]}, v0, {srd(S_WS)}, s{sT0} offen")
    lab("L_exit")
    e("s_endpgm")
    lab("L_codeend")

def main():
    A.raw("; Kernarg: in0 idx, in1 table, in2 se_w1, in3 se_w2, in4 w_bi, in5 w_cross, in6 w_deep1, in7 w_deep2, out, debug, ws")
    A.raw(f"; @launch grid=(256,1,1) block=(512,1,1) lds={LDS_TOTAL}")
    for t in ['.amdgcn_target "amdgcn-amd-amdhsa--gfx950"', ".text", f".globl {KN}", ".p2align 12", f".type {KN},@function", f"{KN}:"]: A.raw(t)
    entry()
    role_a()
    role_b()
    fin()
    for t in ['.section .rodata,"a"', ".p2align 6", f".amdhsa_kernel {KN}", "  .amdhsa_next_free_vgpr 256", "  .amdhsa_next_free_sgpr 102",
              "  .amdhsa_accum_offset 256", "  .amdhsa_group_segment_fixed_size 0", "  .amdhsa_kernarg_size 88", "  .amdhsa_user_sgpr_count 2",
              "  .amdhsa_user_sgpr_kernarg_segment_ptr 1", "  .amdhsa_system_sgpr_workgroup_id_x 1", ".end_amdhsa_kernel"]: A.raw(t)
    if "nodot" in X:
        import re
        A.L = [re.sub(r"v_dot2c?_f32_bf16 (v\d+), (v\d+), (v\d+).*", r"v_cvt_pk_bf16_f32 \1, \2, \3", x) for x in A.L]
    out = autonop([x for x in A.L if x is not None])
    open(sys.argv[1], "w").write("\n".join(out) + "\n")
main()
```

```python
import os, sys, math
sys.path.insert(0, os.path.dirname(os.path.abspath(__file__)))
from asmlib import *

STAMPS = int(os.environ.get("STAMPS", "0"))
def P(name, d): return int(os.environ.get(name, d))
KN = "standalone__deep_cross_fibinet__recsys_kernel"
A = Asm(); e = A.e; lab = A.lab; cm = A.cm

S_IDX, S_TAB, S_W1, S_WC, S_WBI, S_SW1, S_SW2, S_W2, S_OUT, S_DBG, S_WS = [8 + 4*i for i in range(11)]
SIZE = {S_IDX: 4096*104, S_TAB: 100000*128, S_W1: 1664*512, S_WC: 86528*2, S_WBI: 8192, S_SW1: 676, S_SW2: 676, S_W2: 512,
        S_OUT: 8192, S_DBG: 256, S_WS: 1 << 28}
sW, sRG, sHF, sX16 = 52, 53, 54, 55
sT0, sT1, sT2, sT3 = 56, 57, 58, 59
sMB, sMB2, sK6, sM6 = 60, 61, 62, 63
sMa, sMa3, sMb, sKa3 = 6, 7, 3, 55
sLO, sHI, sC0, sC1, sMSK, sNL = 64, 65, 66, 67, 68, 69
KT = 84
def srd(b): return f"s[{b}:{b+3}]"

nst = [0]
FS = P("FS", 6)
fst = [0]
def fstamp():
    if STAMPS != 3: return
    k = fst[0]; fst[0] += 1
    e("s_memtime s[100:101]")
    e("s_waitcnt lgkmcnt(0)")
    e(f"v_writelane_b32 v{VST[0]}, s100, {k + 1}")
    A.ds_done = len(A.ds) - 1
def stamp():
    if not STAMPS or STAMPS == 3: return
    k = nst[0]; nst[0] += 1
    assert k < 24
    e("s_memtime s[100:101]")
    e("s_waitcnt lgkmcnt(0)")
    e(f"v_writelane_b32 v{VST[0]}, s100, {k + 1}")
    e("s_memrealtime s[100:101]")
    e("s_waitcnt lgkmcnt(0)")
    e(f"v_writelane_b32 v{VST[0]}, s100, {k + 33}")
    A.ds_done = len(A.ds) - 1
VST = [26]

def mf16(d, a, b, c=None):
    e(f"v_mfma_f32_16x16x32_bf16 {vr(d,4)}, {vr(a,4)}, {vr(b,4)}, {'0' if c is None else vr(c,4)}")
def mf32(d, a, b, c=None):
    e(f"v_mfma_f32_32x32x16_bf16 {vr(d,16)}, {vr(a,4)}, {vr(b,4)}, {'0' if c is None else vr(c,16)}")

def mksrd(b):
    e(f"s_mov_b32 s{b+2}, {SIZE[b]}")
    e(f"s_mov_b32 s{b+3}, 0x00020000")
def cpsrd(b, k):
    e(f"s_mov_b64 s[{b}:{b+1}], s[{KT+2*k}:{KT+2*k+1}]")

def entry():
    e("s_cmp_ge_u32 s2, 256")
    e("s_cbranch_scc1 L_exit")
    if STAMPS:
        e("s_memtime s[4:5]")
        e("s_memrealtime s[70:71]")
    e(f"s_load_dwordx2 s[{S_IDX}:{S_IDX+1}], s[0:1], 0")
    e(f"s_load_dwordx2 s[{S_W1}:{S_W1+1}], s[0:1], 48")
    e(f"s_load_dwordx2 s[{S_TAB}:{S_TAB+1}], s[0:1], 8")
    e(f"s_load_dwordx8 s[{KT}:{KT+7}], s[0:1], 16")
    e(f"s_load_dwordx8 s[{KT+8}:{KT+15}], s[0:1], 56")
    e("v_lshrrev_b32 v1, 6, v0")
    e(f"s_lshr_b32 s{sT0}, s2, 5")
    e(f"v_readfirstlane_b32 s{sW}, v1")
    e(f"s_and_b32 s{sT1}, s2, 7")
    e(f"s_lshl3_add_u32 s{sRG}, s{sT0}, s{sT1}")
    e(f"s_bfe_u32 s{sHF}, s2, 0x10003")
    if CPF:
        cm("pull the kernel's code into L2: one 128-byte line per wave")
        e(f"s_getpc_b64 s[{S_WC}:{S_WC+1}]")
        lab("L_pc")
        e(f"s_mov_b32 s{S_WC+2}, L_codeend-L_pc")
        e(f"s_mov_b32 s{S_WC+3}, 0x00020000")
        e(f"s_andn2_b32 s{sT0}, s2, 7")
        e(f"s_add_u32 s{sT0}, s{sT0}, s{sW}")
        e(f"s_lshl_b32 s{sT0}, s{sT0}, 7")
        e("s_mov_b64 exec, 1")
        e(f"buffer_load_dword v8, off, {srd(S_WC)}, s{sT0}")
        e("s_mov_b64 exec, -1")
    mksrd(S_IDX); mksrd(S_W1); mksrd(S_TAB)
    e("s_bitcmp1_b32 s2, 4")
    e("s_cbranch_scc1 L_B")

def rest_srds():
    for b in (S_SW1, S_SW2, S_WBI, S_WC, S_W2, S_OUT, S_DBG, S_WS): mksrd(b)
def rest_srds2():
    for k, b in enumerate((S_SW1, S_SW2, S_WBI, S_WC, S_W2, S_OUT, S_DBG, S_WS)): cpsrd(b, k)

def consts():
    c0 = -2.0 * math.sqrt(2.0 / math.pi) * math.log2(math.e)
    e(f"s_mov_b32 s{sLO}, 0x05040100")
    e(f"s_mov_b32 s{sHI}, 0x07060302")
    e(f"s_mov_b32 s{sC0}, {fbits(c0)}")
    e(f"s_mov_b32 s{sC1}, {fbits(c0 * 0.044715)}")
    e(f"s_mov_b32 s{sMSK}, 0xffff0000")
    e(f"s_mov_b32 s{sNL}, {fbits(-math.log2(math.e))}")

R0, R1, R2 = 0, 53248, 106496
MISC = 147456
L_WBI, L_SE1, L_SE2, L_AV = MISC - 8192, MISC + 8192, MISC + 9216, MISC + 10240
LDS_TOTAL = 163840
vSw, vI, vG, vPf, vDum = 1, 2, [6, 9], 7, 8
sMG = 78
aE = [[10, 11], [12, 13]]
aC, aC6, aC2 = [14, 15], [16, 17], [22, 23]
vJ = [18, 19]
vFl, vPw = 22, 23
WFB = 0x40000
L_PST = R2
aAw = 28; aAr = [29, 30]; aRed = 31; sSt = 7
vTag2 = 26 if not STAMPS else 28
vHo, vTag, vPo = 20, 21, 24
XF, CAP, RAW, WF, T = 32, 96, 152, 180, 196
AF, DD, WB, ZF, SE1F, SE2F = T, WF, RAW, RAW + 8, RAW + 12, RAW + 16
RING = [96, 100, 104, 108, 112, 116, RAW + 20, RAW + 24]
UH, XQ, AJ = 120, RAW, WF
TS = [[T + 4*i for i in range(8)], [228, 232, 236, 240, 244, 248, 252, RAW + 16]]
ACC = [2, 10]
AKL = [[1, 6, 7], [8, 9, 27]]
LF = [[[2, 3], [4, 5]], [[10, 11], [12, 13]]]
def xf(el, t, q): return XF + el*8 + t*4 + q
GAHEAD = P("GAHEAD", 6)
G0 = P("G0", 5)
TOUCH = P("TOUCH", 0)
CPF = P("CPF", 1)
X = os.environ.get("X", "").split(",")
NPF0 = P("NPF0", 2)
PFAT = P("PFAT", 7)
SPEC = P("SPEC", 14)
NPB = 0
BPF = P("BPF", 0)
PF0 = 16 if BPF else 8
FLD = P("FLD", 9)
FSIG = P("FSIG", 2)
FCHK = P("FCHK", 12)
ABAR = P("ABAR", 3)
LATE0 = P("LATE0", 1)
DBLST = P("DBLST", 0)
NST = P("NST", 0)
NPS = P("NPS", 3)
SPF = P("SPF", -1)
PFB = [(S_W1, 512 + 1024*k) for k in range(6)] + [(S_WC, 0), (S_WC, 1024)]

def a_gaddr(k, h):
    g = vG[k & 1]
    def one(c, r):
        if h == 0: e(f"v_add_u32_dpp v{g}, v{r}, v{vSw} row_newbcast:{c} row_mask:0xf bank_mask:0x3")
        else: e(f"v_add_u32_dpp v{g}, v{r}, v{vSw} row_newbcast:{8+c} row_mask:0xf bank_mask:0xc")
    if k < 12: one(2*(k >> 2), vI + (k & 3))
    else: one(6, vI)
def a_gm0(k):
    if k < 12: e(f"s_add_u32 m0, s{sMG}, {(8*(k >> 2) + (k & 3))*4096}")
    else: e(f"s_add_u32 m0, s{sMB}, {24*4096}")
def a_gissue(k):
    A.vmem(f"buffer_load_dwordx4 v{vG[k & 1]}, {srd(S_TAB)}, 0 offen lds", f"g{k}")
def a_gather(k):
    a_gaddr(k, 0)
    a_gm0(k)
    a_gaddr(k, 1)
    a_gissue(k)

def gelu(dst, x, t0, vc0):
    e(f"v_mul_f32 v{t0}, v{x}, v{x}")
    e(f"v_fma_f32 v{t0}, v{t0}, s{sC1}, v{vc0}")
    e(f"v_mul_f32 v{t0}, v{t0}, v{x}")
    e(f"v_exp_f32 v{t0}, v{t0}")
    e(f"v_add_f32 v{t0}, 1.0, v{t0}")
    e(f"v_rcp_f32 v{t0}, v{t0}")
    e(f"v_mul_f32 v{dst}, v{x}, v{t0}")

def zipl(lists):
    n = max(len(x) for x in lists)
    for i in range(n):
        for x in lists:
            if i < len(x): A.L.append(x[i])
class Cap:
    def __enter__(s): s.sv = A.L; A.L = []; s.l = A.L; return s
    def __exit__(s, *a): A.L = s.sv

def setexec(m32):
    e(f"s_mov_b32 exec_lo, {m32:#x}")
    e(f"s_mov_b32 exec_hi, {m32:#x}")

def role_a():
    A.reset()
    U, AK, ACCP = 228, 236, 252
    t0, t1, t2, t3, t4, t5 = U, U+1, U+2, U+3, U+4, U+5
    L15, G, aWb, GP, R01 = CAP + 51, CAP + 52, CAP + 53, CAP + 54, CAP + 55
    aS1, aS1t, aS2 = CAP + 48, CAP + 49, CAP + 50
    PA = CAP
    sKb, sJt, sWF, sPc = sM6, 55, sK6, 3
    cm("===== role A")
    e(f"v_bfe_u32 v{t0}, v0, 3, 5")
    e(f"v_mul_u32_u24 v{t0}, 104, v{t0}")
    e(f"v_and_b32 v{t1}, 7, v0")
    e(f"v_lshl_add_u32 v{t0}, v{t1}, 4, v{t0}")
    e(f"v_lshrrev_b32 v{t2}, 8, v0")
    e(f"v_lshl_add_u32 v{t0}, v{t2}, 4, v{t0}")
    cm("waves 4..7 read 16 bytes further; their lane 6 reads from field 25 instead")
    e(f"v_mul_u32_u24 v{t2}, 12, v{t2}")
    setexec(0x40404040)
    e(f"v_sub_u32 v{t0}, v{t0}, v{t2}")
    e("s_mov_b64 exec, -1")
    e(f"s_lshl1_add_u32 s{sT2}, s{sRG}, s{sHF}")
    e(f"s_mul_i32 s{sT2}, s{sT2}, {32*104}")
    e(f"s_lshl_b32 s{sMB}, s{sW}, 10")
    cm("this workgroup's piece of w_cross: task rg = (part, jt, kb, g'), e half = half; wave t loads line i(t) for 4 columns (lanes 0..15)")
    sG = 79
    e(f"s_and_b32 s{sG}, s{sRG}, 3")
    e(f"s_bfe_u32 s{sKb}, s{sRG}, 0x20002")
    e(f"s_bfe_u32 s{sJt}, s{sRG}, 0x10004")
    e(f"v_bfe_u32 v{t1}, v0, 3, 1")
    e(f"v_bfe_u32 v{t2}, v0, 2, 1")
    e(f"v_lshl_add_u32 v{t1}, v{t1}, 3, v{t2}")
    e(f"s_lshl3_add_u32 s{sT0}, s{sJt}, s{sG}")
    e(f"s_lshl_b32 s{sT0}, s{sT0}, 1")
    e(f"v_add_u32 v{t1}, s{sT0}, v{t1}")
    e(f"s_add_u32 s{sT0}, s{sG}, 24")
    e(f"v_min_u32 v{t1}, s{sT0}, v{t1}")
    e(f"v_and_b32 v{t2}, 3, v0")
    e(f"v_lshl_add_u32 v{t1}, v{t1}, 3, v{t2}")
    e(f"v_lshlrev_b32 v{t1}, 4, v{t1}")
    e(f"s_lshr_b32 s{sT0}, s{sW}, 1")
    e(f"s_lshl2_add_u32 s{sT0}, s{sT0}, s{sKb}")
    e(f"s_min_u32 s{sT0}, s{sT0}, 12")
    e(f"s_and_b32 s{sT1}, s{sW}, 1")
    e(f"s_lshl1_add_u32 s{sT0}, s{sT0}, s{sT1}")
    e(f"s_lshr_b32 s{sT1}, s{sRG}, 5")
    e(f"s_mul_i32 s{sT1}, s{sT1}, 26")
    e(f"s_add_u32 s{sT0}, s{sT0}, s{sT1}")
    e(f"s_mul_i32 s{sT0}, s{sT0}, 3328")
    e(f"s_lshl_b32 s{sT1}, s{sHF}, 6")
    e(f"s_add_u32 s{sPc}, s{sT0}, s{sT1}")
    e(f"s_mov_b32 s{S_SW2+2}, {SIZE[S_WC]}")
    e(f"s_mov_b32 s{S_SW2+3}, 0x00020000")
    e(f"s_lshr_b32 s{sT1}, s{sMB}, 2")
    e(f"s_add_u32 m0, s{sT1}, {L_PST}")
    e(f"s_lshr_b32 s6, s2, 5")
    e(f"s_lshl1_add_u32 s6, s6, s{sHF}")
    e("s_waitcnt lgkmcnt(0)")
    A.vmem(f"buffer_load_dwordx4 {vr(vI,4)}, v{t0}, {srd(S_IDX)}, s{sT2} offen", "idx")
    cpsrd(S_SW2, 3)
    fstamp()
    e("s_mov_b64 exec, 0xffff")
    A.vmem(f"buffer_load_dwordx4 v{t1}, {srd(S_SW2)}, s{sPc} offen lds", "pc")
    e("s_mov_b64 exec, -1")
    mksrd(S_WBI); cpsrd(S_WBI, 2)
    e(f"v_lshlrev_b32 v{t3}, 4, v0")
    e(f"s_add_u32 m0, s{sMB}, {L_WBI}")
    e(f"s_lshl_b32 s{sT0}, s6, 13")
    A.vmem(f"buffer_load_dwordx4 v{t3}, {srd(S_WBI)}, 0 offen lds", "sm")
    e("s_addk_i32 m0, 0x2000")
    e(f"v_and_b32 v{t2}, 63, v0")
    A.vmem(f"buffer_load_dwordx4 v{t3}, {srd(S_WBI)}, 4 offen lds", "sm")
    e(f"v_lshl_add_u32 v{vPf}, v{t2}, 7, s{sT0}")
    e(f"s_sub_u32 s{sT1}, s{sW}, {8 - NPF0}")
    e(f"s_lshl_b32 s{sT1}, s{sT1}, 17")
    e(f"s_add_u32 s{sT1}, s{sT1}, s{sT0}")
    e(f"s_add_u32 s{sT1}, s{sT1}, {PF0*32768}")
    e(f"s_cmp_lt_u32 s{sW}, {8 - NPF0}")
    e(f"s_cselect_b32 s{sT1}, 0x7f000000, s{sT1}")
    e(f"s_cmp_eq_u32 s{sW}, 0")
    e(f"s_cselect_b64 s[{S_SW1}:{S_SW1+1}], s[{KT}:{KT+1}], s[{KT+2}:{KT+3}]")
    e(f"s_min_u32 s{sT0}, s{sMB}, 2048")
    e(f"s_add_u32 m0, s{sT0}, {L_SE1}")
    e(f"s_cmp_lt_u32 s{sW}, 2")
    e(f"s_cselect_b64 s[{S_SW1}:{S_SW1+1}], s[{S_SW1}:{S_SW1+1}], s[{S_W1}:{S_W1+1}]")
    e(f"s_cselect_b32 s{S_SW1+2}, 676, s{S_W1+2}")
    e(f"s_cselect_b32 s{sT1}, 0, s{sT1}")
    e(f"s_cselect_b32 s{sT3}, 4, 7")
    e(f"s_mov_b32 s{S_SW1+3}, 0x00020000")
    e(f"v_lshlrev_b32 v{t4}, s{sT3}, v{t2}")
    A.vmem(f"buffer_load_dwordx4 v{t4}, {srd(S_SW1)}, s{sT1} offen lds", "se")
    fstamp()
    e("s_branch L_A2")
    sv = (A.vm, A.ds, A.vm_done, A.ds_done, nst[0])
    b_head()
    A.vm, A.ds, A.vm_done, A.ds_done, nst[0] = sv
    lab("L_A2")
    e(f"s_and_b32 s{sT0}, s{sMB}, 0x1000")
    e(f"s_mul_i32 s{sT0}, s{sT0}, 3")
    e(f"s_add_u32 s{sMG}, s{sMB}, s{sT0}")
    e(f"v_lshrrev_b32 v{t1}, 4, v0")
    e(f"v_xor_b32 v{t1}, v{t1}, v0")
    e(f"v_and_b32 v{t1}, 7, v{t1}")
    e(f"v_lshlrev_b32 v{vSw}, 4, v{t1}")
    e(f"v_and_b32 v{L15}, 15, v0")
    e(f"v_bfe_u32 v{G}, v0, 4, 2")
    e(f"v_bfe_u32 v{t0}, v0, 1, 3")
    e(f"s_and_b32 s{sT0}, s{sMB}, 0x400")
    e(f"s_lshl_b32 s{sT0}, s{sT0}, 1")
    e(f"v_lshl_add_u32 v{aC[1]}, v{L15}, 7, s{sT0}")
    e(f"v_xor_b32 v{t2}, v{G}, v{t0}")
    e(f"v_lshl_add_u32 v{aE[0][0]}, v{t2}, 4, v{aC[1]}")
    e(f"v_xor_b32 v{aE[1][0]}, 64, v{aE[0][0]}")
    e(f"v_xor_b32 v{aE[0][1]}, 0x800, v{aE[0][0]}")
    e(f"v_xor_b32 v{aE[1][1]}, 0x800, v{aE[1][0]}")
    e(f"v_bfe_u32 v{GP}, v0, 2, 2")
    e(f"v_lshl_add_u32 v{t3}, v{G}, 3, v{GP}")
    e(f"v_and_b32 v{t1}, 1, v0")
    e(f"v_lshl_add_u32 v{t3}, v{t1}, 6, v{t3}")
    e(f"v_bfe_u32 v{t4}, v0, 1, 1")
    e(f"v_lshlrev_b32 v{t5}, 3, v{t4}")
    e(f"v_lshl_add_u32 v{t3}, v{t3}, 7, v{t5}")
    e(f"s_lshl_b32 s{sT0}, s{sW}, 4")
    e(f"s_add_u32 s{sT0}, s{sT0}, {L_WBI}")
    e(f"v_add_u32 v{aWb}, s{sT0}, v{t3}")
    e(f"v_lshl_add_u32 v{t1}, v{GP}, 1, v{t1}")
    e(f"v_add_u32 v{R01}, v{t5}, v{t1}")
    e(f"v_and_b32 v{t4}, 3, v0")
    e(f"v_lshl_add_u32 v{t3}, v{t4}, 5, v{GP}")
    e(f"s_lshl_b32 s{sT0}, s{sW}, 3")
    e(f"s_add_u32 s{sT0}, s{sT0}, {L_PST}")
    e(f"v_lshl_add_u32 v{PA}, v{t3}, 1, s{sT0}")
    e(f"v_mul_u32_u24 v{t3}, 3328, v{GP}")
    e(f"v_lshl_add_u32 v{PA+1}, v{t4}, 4, v{t3}")
    e(f"v_mov_b32 v{PA + 7}, 0")
    e(f"s_lshl2_add_u32 s{sT1}, s{sKb}, s{sG}")
    e(f"s_lshl_b32 s{sT1}, s{sT1}, 2")
    e(f"s_mul_i32 s{sT0}, s{sG}, 3")
    e(f"s_min_u32 s{sT0}, s{sT0}, 8")
    e(f"s_mul_i32 s{sT2}, s{sKb}, 10")
    e(f"s_add_u32 s{sT0}, s{sT0}, s{sT2}")
    e(f"s_add_u32 s{sT0}, s{sT0}, 64")
    e(f"s_cmp_lt_u32 s{sG}, 2")
    e(f"s_movk_i32 s{sG}, 0x3333")
    e(f"s_cselect_b32 s{sG}, 0x7777, s{sG}")
    e(f"s_cmp_eq_u32 s{sJt}, 0")
    e(f"s_cselect_b32 s{sT0}, s{sT1}, s{sT0}")
    e(f"s_cselect_b32 s{sG}, 0xffff, s{sG}")
    e(f"s_lshr_b32 s{sT1}, s{sRG}, 5")
    e(f"s_mul_i32 s{sT1}, s{sT1}, 104")
    e(f"s_add_u32 s{sT0}, s{sT0}, s{sT1}")
    e(f"s_lshl_b32 s{sT0}, s{sT0}, 4")
    e(f"s_lshl3_add_u32 s{sT1}, s{sHF}, s{sW}")
    e(f"s_mul_i32 s{sT1}, s{sT1}, {4*3328}")
    e(f"s_add_u32 s{sT0}, s{sT0}, s{sT1}")
    e(f"s_add_u32 s{sWF}, s{sT0}, {WFB}")
    e(f"s_and_b32 s{sT0}, s{sKb}, 1")
    e(f"s_lshl_b32 s{sT0}, s{sT0}, 3")
    e(f"s_lshl_b32 s{sJt}, 0xff, s{sT0}")
    e(f"s_lshr_b32 s{sT0}, s{sKb}, 1")
    e(f"s_xor_b32 s{sT0}, s{sT0}, s{sW}")
    e(f"s_bitcmp1_b32 s{sT0}, 0")
    e(f"s_cselect_b32 s{sJt}, 0x10000, s{sJt}")
    mksrd(S_WS); cpsrd(S_WS, 7)
    e(f"v_and_b32 v{t3}, 31, v0")
    e(f"v_bfe_u32 v{t4}, v0, 5, 1")
    e(f"v_lshl_add_u32 v{t3}, v{t4}, 6, v{t3}")
    e(f"s_lshl2_add_u32 s{sT0}, s{sRG}, s{sHF}")
    e(f"s_lshl_b32 s{sT0}, s{sT0}, 8")
    e(f"v_lshl_add_u32 v{vHo}, v{t3}, 3, s{sT0}")
    def late_setup():
        u0, u1, u2 = PA + 2, PA + 3, aWb
        e(f"v_bfe_u32 v{u0}, v0, 1, 3")
        e(f"v_xor_b32 v{u0}, s{sW}, v{u0}")
        e(f"v_lshl_add_u32 v{u0}, v{u0}, 4, v{aC[1]}")
        e(f"v_lshl_add_u32 v{aC[0]}, v{G}, 13, v{u0}")
        e(f"v_xor_b32 v{aC[1]}, 0x800, v{aC[0]}")
        e(f"v_min_u32 v{u1}, 1, v{G}")
        e(f"v_add_u32 v{u1}, 24, v{u1}")
        e(f"v_lshl_add_u32 v{aC6[0]}, v{u1}, 12, v{u0}")
        e(f"v_xor_b32 v{aC6[1]}, 0x800, v{aC6[0]}")
        e(f"s_and_b32 s{sT1}, s{sW}, 2")
        e(f"s_lshl_b32 s{sT1}, s{sT1}, 3")
        e(f"v_add_u32 v{u0}, s{sT1}, v{R01}")
        e(f"v_add_u32 v{u1}, 24, v{GP}")
        e(f"v_min_u32 v{u0}, v{u0}, v{u1}")
        e(f"v_mov_b32 v{u2}, {L_SE1}")
        e(f"s_movk_i32 s{sT3}, 208")
        e(f"v_mad_u32_u24 v{u1}, v{G}, s{sT3}, v{u2}")
        e(f"v_lshl_add_u32 v{aS2}, v{u0}, 1, v{u1}")
        e(f"v_lshl_add_u32 v{u2}, v{L15}, 1, v{u2}")
        e(f"v_mad_u32_u24 v{aS1t}, v{G}, 26, v{u2}")
        e(f"v_mad_u32_u24 v{aS1}, v{G}, 52, v{u2}")
        e(f"v_and_b32 v{u0}, 63, v0")
        e(f"v_lshlrev_b32 v{vJ[0]}, 4, v{u0}")
        e(f"s_lshl3_add_u32 s{sT0}, s6, s{sW}")
        e(f"s_mul_i32 s{sT0}, s{sT0}, {13*128}")
        e(f"s_add_u32 s{sT0}, s{sT0}, {WFB}")
        e(f"v_lshl_add_u32 v{vPw}, v{u0}, 7, s{sT0}")
        e(f"v_mul_u32_u24 v{u0}, 3, v{GP}")
        e(f"v_min_u32 v{u0}, 8, v{u0}")
        e(f"v_mad_u32_u24 v{u0}, v{G}, 10, v{u0}")
        e(f"v_and_b32 v{u1}, 3, v0")
        e(f"v_bfrev_b32 v{vJ[1]}, 2")
        setexec(0x33773377)
        e(f"v_add_lshl_u32 v{vJ[1]}, v{u0}, v{u1}, 4")
        e("s_mov_b64 exec, -1")
        e(f"s_mul_i32 s{sMB2}, s{sW}, {8*3328}")
        e(f"s_add_u32 s{sMB2}, s{sMB2}, {WFB}")
        e(f"s_and_b32 s{sT0}, s{sW}, 1")
        e(f"s_mul_i32 s{sT2}, s{sT0}, {16*144}")
        e(f"s_sub_u32 s{sT3}, {16*144 + L_AV}, s{sT2}")
        e(f"s_add_u32 s{sT2}, s{sT2}, {L_AV}")
        e(f"v_mul_u32_u24 v{u0}, 144, v{L15}")
        e(f"v_lshl_add_u32 v{u0}, v{G}, 5, v{u0}")
        e(f"v_add_u32 v{aAr[0]}, s{sT2}, v{u0}")
        e(f"v_add_u32 v{aAr[1]}, s{sT3}, v{u0}")
        e(f"v_add_u32 v{aAw}, s{sT1}, v{aAr[0]}")
        e(f"s_lshl_b32 s{sSt}, s{sW}, 11")
        e(f"s_add_u32 s{sSt}, s{sSt}, {R2}")
        e(f"v_add_u32 v{aRed}, s{sSt}, v{vJ[0]}")
        for b in (S_OUT, S_DBG): mksrd(b)
        for k, b in enumerate((S_OUT, S_DBG)): cpsrd(b, k + 5)
        c0 = -2.0 * math.sqrt(2.0 / math.pi) * math.log2(math.e)
        e(f"s_mov_b32 s{sC0}, {fbits(c0)}")
        e(f"s_mov_b32 s{sC1}, {fbits(c0 * 0.044715)}")
        e(f"s_mov_b32 s{sMSK}, 0xffff0000")
        e(f"s_mov_b32 s{sNL}, {fbits(-math.log2(math.e))}")
        e(f"v_mov_b32 v{ZF+3}, 0")
    stamp()
    fstamp()
    A.vm_wait("idx")
    stamp()
    fs0 = (lambda: fstamp()) if FS == -1 else (lambda: None)
    fs0()
    for d in range(4): e(f"v_lshlrev_b32 v{vI+d}, 7, v{vI+d}")
    for s in range(G0): a_gather(s)
    fs0()
    def pfbatch():
        e(f"s_lshl_b32 s{sT1}, s{sW}, 17")
        e(f"s_add_u32 s{sT1}, s{sT1}, {PF0*32768 + NPF0*131072}")
        A.vmem(f"buffer_load_dword v{vDum}, v{vPf}, {srd(S_W1)}, s{sT1} offen", "pf")
    A.vm_wait("sm")
    fs0()
    e("s_barrier")
    fs0()
    for t in range(8):
        A.lds(f"ds_read_u16 v{PA + 12 + t}, v{PA} offset:{t*256}", "pr")
    for ks in range(2):
        for u in range(2):
            A.lds(f"ds_read_b64_tr_b16 {vr(WB + ks*4 + 2*u, 2)}, v{aWb} offset:{ks*4096 + u*512}", "wb")
    e(f"s_lshl_b32 s{sT0}, s{sW}, 28")
    A.vmem(f"buffer_load_dword v{vTag}, v{vHo}, {srd(S_WS)}, s{sT0} offen offset:4 sc1", "snap")
    e(f"s_add_u32 s{sT0}, s{sT0}, 0x10000")
    A.vmem(f"buffer_load_dword v{vTag2 if not STAMPS else vPo}, v{vHo}, {srd(S_WS)}, s{sT0} offen offset:4 sc1", "snap")
    fs0()
    A.ds_wait("pr")
    for q in range(3): e(f"v_lshl_or_b32 v{PA + 4 + q}, v{PA + 13 + 2*q}, 16, v{PA + 12 + 2*q}")
    e("s_mov_b32 exec_hi, 0")
    e(f"s_mov_b32 exec_lo, s{sJt}")
    e(f"v_lshl_or_b32 v{PA + 7}, v{PA + 19}, 16, v{PA + 18}")
    e(f"s_mov_b32 exec_lo, s{sG}")
    A.vmem(f"buffer_store_dwordx4 {vr(PA + 4, 4)}, v{PA + 1}, {srd(S_WS)}, s{sWF} offen sc1", "st")
    e("s_mov_b64 exec, -1")
    A.ds_all()
    cm("rows with r == 2 compute the field mean")
    e(f"v_mov_b32 v{t5}, 0x3c803c80")
    setexec(0x44444444)
    for d in range(8): e(f"v_mov_b32 v{WB + d}, v{t5}")
    e("s_mov_b64 exec, -1")
    if not LATE0: late_setup()
    def se_frags():
        TM2 = CAP + 20
        for t in range(6):
            A.lds(f"ds_read_u16 v{TM2 + t}, v{CAP + 48} offset:{(8*(t >> 1) + (t & 1))*26}", "se")
        A.lds(f"ds_read_u16 v{SE1F + 3}, v{CAP + 49} offset:{24*26}", "se")
    def se_frags2():
        TM2 = CAP + 20
        A.ds_wait("se")
        for kk in range(4):
            A.lds(f"ds_read_u16 v{TM2 + 8 + kk}, v{CAP + 50} offset:{1024 + kk*52}", "se")
    def se_frags3():
        TM2 = CAP + 20
        A.ds_wait("se")
        for q in range(3): e(f"v_lshl_or_b32 v{SE1F + q}, v{TM2 + 2*q + 1}, 16, v{TM2 + 2*q}")
        for q in range(2): e(f"v_lshl_or_b32 v{SE2F + q}, v{TM2 + 8 + 2*q + 1}, 16, v{TM2 + 8 + 2*q}")
    deferred = []
    fs0()
    stamp()
    def swaps(q, tls=(0, 1)):
        for tl in tls:
            for r in range(2):
                R = [xf(2*g + r, tl, q) for g in range(4)]
                e(f"v_permlane32_swap_b32 v{R[0]}, v{R[2]}")
                e(f"v_permlane32_swap_b32 v{R[1]}, v{R[3]}")
        for tl in tls:
            for r in range(2):
                R = [xf(2*g + r, tl, q) for g in range(4)]
                e(f"v_permlane16_swap_b32 v{R[0]}, v{R[1]}")
                e(f"v_permlane16_swap_b32 v{R[2]}, v{R[3]}")
    DDS = [DD, CAP + 32]
    def pack(s, tl):
        q, Gq = s >> 2, s & 3
        d = DDS[s & 1]
        for r in range(2):
            e(f"v_cvt_pk_bf16_f32 v{xf(2*Gq + r, tl, q)}, v{d + tl*4 + r}, v{d + 8 + tl*4 + r}")
    def packz(s):
        q, Gq = s >> 2, s & 3
        d = DDS[s & 1]
        lo = 0xffff << (16*Gq)
        e(f"s_mov_b32 exec_lo, {lo & 0xffffffff}")
        e(f"s_mov_b32 exec_hi, {lo >> 32}")
        e(f"v_cvt_pk_bf16_f32 v{ZF + q}, v{d + 2}, v{d + 8 + 2}")
        e("s_mov_b64 exec, -1")
    wl = [0]
    def wload():
        k = wl[0]
        if k >= 32: return
        wl[0] += 1
        u, part, x = k >> 2, (k >> 1) & 1, k & 1
        ep, jt = u >> 1, u & 1
        if 8 <= k < 8 + NST:
            A.vm_wait(f"ws{k}")
            A.lds(f"ds_read_b128 {vr(RING[k % 8], 4)}, v{aRed} offset:{stoff(k)}", f"w{k >> 1}")
            return
        e(f"s_add_u32 s{sT0}, s{sMB2}, {(2*ep + x)*3328}")
        A.vmem(f"buffer_load_dwordx4 {vr(RING[k % 8], 4)}, v{vJ[jt]}, {srd(S_WS)}, s{sT0} offen offset:{part*1664 + jt*1024} sc1", f"w{k >> 1}")
    def stoff(k): return ((k - 8) >> 1)*16384 + ((k - 8) & 1)*1024
    sl = [8]
    def wstage():
        k = sl[0]
        if k >= 8 + NST: return
        sl[0] += 1
        u, part, x = k >> 2, (k >> 1) & 1, k & 1
        ep, jt = u >> 1, u & 1
        e(f"s_add_u32 m0, s{sSt}, {stoff(k)}")
        e(f"s_add_u32 s{sT0}, s{sMB2}, {(2*ep + x)*3328 + part*1664 + jt*1024}")
        A.vmem(f"buffer_load_dwordx4 v{vJ[jt]}, {srd(S_WS)}, s{sT0} offen sc1 lds", f"ws{k}")
    def early():
        for _ in range(NPS):
            if wl[0] < 6: wload()
            else: wstage()
    QB = [[AF + 4*i for i in range(8)], [AK, AK+4, AK+8, AK+12, U, U+4, ACCP, RAW+20]]
    def rd(s, i):
        if "anord" in X and i & 1: return
        tl, fi, ks = i >> 2, (i >> 1) & 1, i & 1
        f = 2*s + fi
        A.lds(f"ds_read_b128 {vr(QB[s & 1][i], 4)}, v{aE[ks][tl]} offset:{(f & 15)*4096}", f"e{s}_{i >> 1}")
    def mmi(s, i):
        if "anomm" in X:
            if not i & 1: A.ds_wait(f"e{s}_{i >> 1}")
            return
        tl, fi = i >> 2, (i >> 1) & 1
        d = DDS[s & 1] + fi*8 + tl*4
        if i & 1: mf16(d, WB + 4, QB[s & 1][i], d)
        else:
            A.ds_wait(f"e{s}_{i >> 1}")
            mf16(d, WB, QB[s & 1][i])
    def issue(s):
        if s + GAHEAD < 13:
            a_gm0(s + GAHEAD)
            a_gissue(s + GAHEAD)
    swq = []
    def take(lst, n):
        for _ in range(n):
            if lst: A.L.append(lst.pop(0))
    for s in range(G0, GAHEAD): a_gather(s)
    if GAHEAD < 13:
        for h in range(2): a_gaddr(GAHEAD, h)
    def flagcheck():
        cm("wave 0: every producer of this group's W-fragment image has signalled")
        A.vm_wait("fl")
        e(f"s_cmp_lg_u32 s{sW}, 0")
        e("s_cbranch_scc1 L_flok")
        lab("L_flp")
        e(f"v_and_b32 v{vFl}, 0x01000100, v{vFl}")
        e(f"v_cmp_ne_u32 vcc, 0x01000100, v{vFl}")
        e("s_cbranch_vccz L_flok")
        e("s_sleep 8")
        e(f"v_lshrrev_b32 v{vFl}, 2, v{vJ[0]}")
        e(f"buffer_load_dword v{vFl}, v{vFl}, {srd(S_DBG)}, 0 offen sc1")
        e("s_waitcnt vmcnt(0)")
        e("s_branch L_flp")
        lab("L_flok")
    for s in range(13):
        cm(f"-- A step {s}")
        if s % 2 == 0:
            if s < 12 or FCHK == 12:
                if s == 12 or (s == 10 and FCHK != 12): A.vm_wait("g12")
                elif s & 2: A.vm_wait(f"g{4*(s >> 2) + 3}")
                else:
                    e(f"s_cmp_ge_u32 s{sW}, 4")
                    e(f"s_cbranch_scc1 L_nw{s}")
                    dn = A.vm_done
                    A.vm_wait(f"g{4*(s >> 2) + 3}")
                    A.vm_done = dn
                    lab(f"L_nw{s}")
                if s == FSIG: A.vm_wait("st")
                if s == FCHK: flagcheck()
                if s == 0: fs0()
                e("s_barrier")
                if s == 0: fs0()
            if s in (0, 4, 8, 12): stamp()
            if s == FCHK:
                e("s_mov_b64 exec, 0x1fff")
                A.vmem(f"buffer_load_dword v{vDum}, v{vPw}, {srd(S_WS)}, 0 offen sc1", "pf")
                e("s_mov_b64 exec, -1")
            with Cap() as cf:
                if s == 12:
                    for tl in range(2): e(f"v_add_u32 v{aC2[tl]}, 0x10000, v{aC[tl]}")
            fill = list(cf.l)
            for i in range(8):
                if s: mmi(s - 1, i)
                rd(s, i)
                if s == 12:
                    take(fill, 1)
                    if i == 7: packz(11)
            issue(s)
            if s == 0 and LATE0: late_setup()
            if s == FSIG:
                cm("signal: this workgroup's fragments are stored (only wave 0 stays in range); pull them into L2")
                e(f"s_lshl_b32 s{sT0}, s{sHF}, 4")
                e(f"s_lshl_b32 s{sT0}, 0x100, s{sT0}")
                e(f"v_mov_b32 v{vFl}, s{sT0}")
                e(f"s_lshl_b32 s{sT0}, s{sW}, 6")
                e(f"s_add_u32 s{sT0}, s{sT0}, s{sRG}")
                e(f"s_lshl_b32 s{sT0}, s{sT0}, 2")
                e("s_mov_b64 exec, 1")
                A.vmem(f"buffer_atomic_or v{vFl}, off, {srd(S_DBG)}, s{sT0} sc1", "sig")
                e("s_mov_b64 exec, -1")
            if s >= FCHK and s < 12: early()
            if s == 2: se_frags()
            continue
        with Cap() as cf:
            if s >= 3:
                pack(s - 2, 0); pack(s - 2, 1)
            for ss in (s, s + 1):
                if ss + GAHEAD < 13:
                    for h in range(2): a_gaddr(ss + GAHEAD, h)
            if s in (5, 9): swaps((s >> 2) - 1, (0,))
            if s in (7, 11): swaps((s >> 2) - 1, (1,))
        fill = list(cf.l)
        for i in range(8):
            mmi(s - 1, i)
            rd(s, i)
            if i < 6: take(fill, -(-len(fill) // (6 - i)))
            if i == 5 and s >= 3: packz(s - 2)
            if i == 6: pack(s - 1, 0)
            if i == 7: packz(s - 1)
        issue(s)
        if s == FLD:
            e(f"v_lshrrev_b32 v{vFl}, 2, v{vJ[0]}")
            e(f"s_lshl_b32 s{sT0}, s{sW}, 8")
            A.vmem(f"buffer_load_dword v{vFl}, v{vFl}, {srd(S_DBG)}, s{sT0} offen sc1", "fl")
        if s == PFAT: pfbatch()
        if s > FCHK: early()
        if s == 3: se_frags2()
        if s == 5: se_frags3()
        if s == 7:
            for r in aE[0] + aE[1]: e(f"v_add_u32 v{r}, 0x10000, v{r}")
        pack(s - 1, 1)
    for i in range(8): mmi(12, i)
    SL = [[RAW + 16, RAW + 17]]
    def tailwork():
        pack(11, 0); pack(11, 1)
        while wl[0] < 8: wload()
        while sl[0] < 8 + NST: wstage()
        for tl in range(2):
            for el in range(8):
                e(f"v_cvt_pk_bf16_f32 v{xf(el, tl, 3)}, v{DD + tl*4 + (el & 1)}, v{DD + 8 + tl*4 + (el & 1)}")
            for fi in range(2):
                for r in range(2): e(f"v_mov_b32 v{LF[tl][fi][r]}, v{DD + fi*8 + tl*4 + r}")
        swaps(2)
        for tl in range(2):
            for p in range(2): e(f"v_mov_b32 v{UH + tl*16 + 14 + p}, 0")
    e(f"s_cmp_ge_u32 s{sW}, 4")
    e("s_cbranch_scc1 L_nosenet")
    cm("waves 0..3: SENET first")
    sv = (list(A.vm), A.vm_done, wl[0], sl[0])
    e("s_mov_b64 exec, 0xffff")
    e(f"v_cvt_pk_bf16_f32 v{ZF + 3}, v{DD + 2}, 0")
    e("s_mov_b32 exec_lo, 0xffff0000")
    e(f"v_cvt_pk_bf16_f32 v{ZF + 3}, v{DD + 8 + 2}, 0")
    e("s_mov_b64 exec, -1")
    b = 228
    mf16(b, SE1F, ZF)
    e(f"v_mov_b32 v{b+20}, s{sC0}")
    e(f"v_cvt_pk_bf16_f32 v{b+8}, v{b+0}, v{b+1}")
    e(f"v_cvt_pk_bf16_f32 v{b+9}, v{b+2}, v{b+3}")
    for d in range(2):
        e(f"v_lshlrev_b32 v{b+2*d}, 16, v{b+8+d}")
        e(f"v_and_b32 v{b+2*d+1}, s{sMSK}, v{b+8+d}")
    ls = []
    for r in range(4):
        with Cap() as c: gelu(b + 4 + r, b + r, b + 12 + r, b + 20)
        ls.append(c.l)
    zipl(ls)
    e(f"v_cvt_pk_bf16_f32 v{b+10}, v{b+4}, v{b+5}")
    e(f"v_cvt_pk_bf16_f32 v{b+11}, v{b+6}, v{b+7}")
    e(f"v_mfma_f32_16x16x16_bf16 {vr(b+16,4)}, {vr(SE2F,2)}, {vr(b+10,2)}, 0")
    e(f"v_cvt_pk_bf16_f32 v{b+8}, v{b+16}, v{b+17}")
    e(f"v_cvt_pk_bf16_f32 v{b+9}, v{b+18}, v{b+19}")
    for d in range(2):
        e(f"v_lshlrev_b32 v{b+2*d}, 16, v{b+8+d}")
        e(f"v_and_b32 v{b+2*d+1}, s{sMSK}, v{b+8+d}")
    for r in range(4): e(f"v_mul_f32 v{b+r}, s{sNL}, v{b+r}")
    for r in range(4): e(f"v_exp_f32 v{b+r}, v{b+r}")
    for r in range(4): e(f"v_add_f32 v{b+r}, 1.0, v{b+r}")
    for r in range(4): e(f"v_rcp_f32 v{b+r}, v{b+r}")
    for r in range(4): e(f"v_cvt_pk_bf16_f32 v{b+4+r}, 0, v{b+r}")
    e(f"ds_write_b128 v{aAw}, {vr(b+4,4)}")
    e("s_waitcnt lgkmcnt(0)")
    stamp()
    e("s_barrier")
    tailwork()
    e("s_branch L_post")
    lab("L_nosenet")
    e("s_nop 7")
    A.vm, A.vm_done, wl[0], sl[0] = list(sv[0]), sv[1], sv[2], sv[3]
    tailwork()
    e("s_barrier")
    lab("L_post")
    A.ds_done = len(A.ds) - 1
    for tl in range(2):
        for u in range(2):
            A.lds(f"ds_read_b128 {vr(AJ + tl*8 + u*4, 4)}, v{aAr[tl]} offset:{u*16}", "ak")
    e(f"v_bfe_u32 v{XQ}, v0, 4, 2")
    e(f"v_lshlrev_b32 v{XQ}, 5, v{XQ}")
    for tl in range(2):
        e(f"v_sub_u32 v{aAr[tl]}, v{aAr[tl]}, v{XQ}")
        A.lds(f"ds_read2_b32 {vr(XQ + 4 + 2*tl, 2)}, v{aAr[tl]} offset0:6 offset1:14", "ak")
    def mms(u, part):
        ep = u >> 1
        tg = f"w{2*u + part}"
        if tg in A.vm: A.vm_wait(tg)
        if tg in A.ds: A.ds_wait(tg)
        for x in range(2):
            for tl in range(2):
                mf16(TS[u & 1][part*4 + x*2 + tl], RING[(4*u + 2*part + x) % 8], XQ + x*8 + tl*4 if part else xf(2*ep + x, tl, 0))
    def xq(ep):
        tmp = TS[0][4]
        for x in range(2):
            for tl in range(2):
                src = xf(2*ep + x, tl, 0)
                for qq in range(3):
                    e(f"v_dot2_f32_bf16 v{tmp + tl*6 + 2*qq}, v{src + qq}, v{AKL[tl][qq]}, 0")
                    e(f"v_dot2_f32_bf16 v{tmp + tl*6 + 2*qq + 1}, v{src + qq}, v{AJ + tl*8 + 2*qq + 1}, 0")
            for tl in range(2):
                dst = XQ + x*8 + tl*4
                if ep == 0: e(f"v_cvt_pk_bf16_f32 v{dst + 3}, v{LF[tl][0][x]}, v{LF[tl][1][x]}")
                for qq in range(3):
                    e(f"v_cvt_pk_bf16_f32 v{dst + qq}, v{tmp + tl*6 + 2*qq}, v{tmp + tl*6 + 2*qq + 1}")
    def fin(u):
        ep, jt = u >> 1, u & 1
        S_ = TS[u & 1]
        for tl in range(2):
            for x in range(2):
                p, q_, a = S_[x*2 + tl], S_[4 + x*2 + tl], AJ + tl*8 + 4*jt
                for r in range(3 if jt else 4): e(f"v_fmac_f32 v{p+r}, v{q_+r}, v{a+r}")
            for r in range(3 if jt else 4):
                e(f"v_cvt_pk_bf16_f32 v{UH + tl*16 + (4*jt + r)*2 + (ep & 1)}, v{S_[tl] + r}, v{S_[2 + tl] + r}")
    def cq(hf):
        for tl in range(2):
            for t in range(7):
                base = aC6[tl] if t == 6 else (aC2[tl] if t >= 4 else aC[tl])
                off = 0 if t == 6 else ((t >> 1) & 1)*32768 + (t & 1)*4096
                A.lds(f"ds_read_b64 {vr(XF + tl*16 + 2*t, 2)}, v{base} offset:{off + 8*hf}", "cq")
    def diag(hf):
        A.ds_wait("cq")
        for k in range(4):
            for tl in range(2):
                mf16(ACC[tl], UH + tl*16 + 4*k, XF + tl*16 + 4*k, ACC[tl] if (hf or k) else None)
    def weave(ml, fl):
        k = 0; nm = sum(1 for m in ml if "v_mfma" in m); i = 0
        for m in ml:
            A.L.append(m)
            if "v_mfma" in m:
                i += 1
                tgt = i * len(fl) // nm
                while k < tgt:
                    A.L.append(fl[k]); k += 1
    mms(0, 0)
    A.ds_wait("ak")
    for tl in range(2):
        for qq in range(3): e(f"v_lshrrev_b32 v{AKL[tl][qq]}, 16, v{AJ + tl*8 + 2*qq}")
        for fi in range(2):
            for r in range(2): e(f"v_mul_f32 v{LF[tl][fi][r]}, v{LF[tl][fi][r]}, v{XQ + 4 + 2*tl + fi}")
    for u in range(8):
        ep, jt = u >> 1, u & 1
        cm(f"-- block ep {ep} jt {jt}")
        if jt == 0:
            stamp()
            xq(ep)
        with Cap() as c1:
            if u: mms(u, 0)
            mms(u, 1)
        with Cap() as c2:
            if u: fin(u - 1)
        weave(c1.l, c2.l)
        for _ in range(4): wload()
        if u == 3: cq(0)
        if u == 4: diag(0)
        if u == 5: cq(1)
    if STAMPS: e(f"v_mov_b32 v{vTag2}, v{vPo}")
    e(f"s_lshl_b32 s{sT0}, s{sW}, 28")
    e(f"buffer_load_dwordx2 {vr(vPo,2)}, v{vHo}, {srd(S_WS)}, s{sT0} offen sc1")
    fin(7)
    diag(1)
    stamp()
    e(f"s_and_b32 s{sT0}, s{sMB}, 0x400")
    e(f"v_add_u32 v{aRed}, s{sT0}, v{aRed}")
    e(f"v_xor_b32 v{aAr[0]}, 0x400, v{aRed}")
    e(f"s_cmp_lg_u32 s{sW}, 0")
    e(f"ds_write_b128 v{aRed}, {vr(ACC[0], 4)}")
    e(f"ds_write_b128 v{aAr[0]}, {vr(ACC[1], 4)}")
    e("s_cbranch_scc0 L_w0")
    e("s_waitcnt lgkmcnt(0)")
    e("s_barrier")
    e("s_branch L_end")
    lab("L_w0")
    P2 = 40
    e(f"buffer_load_dwordx2 {vr(P2,2)}, v{vHo}, {srd(S_WS)}, 0 offen sc1")
    e(f"v_and_b32 v1, 31, v0")
    e(f"v_and_b32 v6, 15, v0")
    e(f"v_lshrrev_b32 v7, 2, v6")
    e(f"v_lshl_add_u32 v7, v7, 4, v6")
    e(f"v_lshlrev_b32 v7, 4, v7")
    e(f"v_and_b32 v6, 3, v0")
    e(f"v_lshl_add_u32 v7, v6, 2, v7")
    e(f"v_bfe_u32 v6, v0, 4, 1")
    e(f"v_lshl_add_u32 v7, v6, 10, v7")
    e(f"v_bfe_u32 v6, v0, 5, 1")
    e(f"v_lshl_add_u32 v7, v6, 13, v7")
    e(f"v_add_u32 v7, {R2}, v7")
    e(f"s_lshl1_add_u32 s{sT0}, s{sRG}, s{sHF}")
    e(f"s_lshl_b32 s{sT0}, s{sT0}, 6")
    e(f"v_lshlrev_b32 v9, 1, v1")
    e(f"s_lshl_b32 s{sT1}, s{sRG}, 2")
    cm("wait for both deep partials: a lane is done when its tag differs from the snapshot or its producer's arrival flag is set")
    e(f"s_mov_b32 s{sT3}, 0")
    lab("L_poll")
    e("s_waitcnt vmcnt(1)")
    e(f"v_cmp_eq_u32 vcc, v{vPo+1}, v{vTag}")
    e("s_cbranch_vccz L_got")
    if "noB" in X: e("s_branch L_got")
    e(f"buffer_load_dwordx2 {vr(vPo,2)}, v{vHo}, {srd(S_WS)}, 0 offen sc1")
    e("s_waitcnt vmcnt(1)")
    e(f"v_cmp_eq_u32 vcc, v{P2+1}, v{vTag}")
    e("s_cbranch_vccz L_got2")
    e(f"buffer_load_dwordx2 {vr(P2,2)}, v{vHo}, {srd(S_WS)}, 0 offen sc1")
    e(f"s_add_u32 s{sT3}, s{sT3}, 1")
    e(f"s_and_b32 s{sT2}, s{sT3}, 15")
    e("s_cbranch_scc1 L_poll")
    cm("now and then: the write-through copy (producer on another die), and the flags (a partial was already there at the snapshot)")
    e("s_mov_b64 exec, 1")
    e(f"buffer_load_dword v{vPo+3}, off, {srd(S_DBG)}, s{sT1} sc1")
    e("s_waitcnt vmcnt(0)")
    e(f"v_readfirstlane_b32 s{sT2}, v{vPo+3}")
    e("s_mov_b64 exec, -1")
    e(f"s_bitcmp1_b32 s{sT2}, 1")
    e("s_cselect_b32 s6, 0, -1")
    e(f"s_bitcmp1_b32 s{sT2}, 17")
    e("s_cselect_b32 s7, 0, -1")
    e(f"s_mov_b32 s{sT2}, 0x10000")
    e(f"buffer_load_dwordx2 {vr(vPo,2)}, v{vHo}, {srd(S_WS)}, s{sT2} offen sc1")
    e("s_waitcnt vmcnt(0)")
    e(f"v_cmp_eq_u32 vcc, v{vPo+1}, v{vTag2}")
    e("s_and_b64 vcc, vcc, s[6:7]")
    e("s_cbranch_scc0 L_got")
    e(f"buffer_load_dwordx2 {vr(vPo,2)}, v{vHo}, {srd(S_WS)}, 0 offen sc1")
    e(f"buffer_load_dwordx2 {vr(P2,2)}, v{vHo}, {srd(S_WS)}, 0 offen sc1")
    e("s_branch L_poll")
    lab("L_got")
    e(f"v_mov_b32 v8, v{vPo}")
    e("s_branch L_got3")
    lab("L_got2")
    e(f"v_mov_b32 v8, v{P2}")
    lab("L_got3")
    stamp()
    e("s_waitcnt lgkmcnt(0)")
    e("s_barrier")
    for k in range(4): e(f"ds_read_b32 v{32 + k}, v7 offset:{2048*k}")
    e("s_waitcnt lgkmcnt(2)")
    e("v_add_f32 v32, v32, v33")
    e("v_add_f32 v32, v32, v8")
    e("s_waitcnt lgkmcnt(0)")
    e("v_add_f32 v34, v34, v35")
    e("v_add_f32 v32, v32, v34")
    e("v_mov_b32 v33, v32")
    e("v_permlane32_swap_b32 v32, v33")
    e("v_add_f32 v4, v32, v33")
    e("v_cvt_pk_bf16_f32 v4, v4, v4")
    e("s_mov_b32 exec_hi, 0")
    e(f"buffer_store_short v4, v9, {srd(S_OUT)}, s{sT0} offen")
    if STAMPS:
        e("s_mov_b64 exec, -1")
    e("s_branch L_end")

NWS, NGS = 8, 4
WBASE, GBASE = 0, NWS*16384
B_RED = 4*16384
LEAD = P("LEAD", 8)

BST = {}
vW, vS, vIa, vGt = 1, 2, [4, 8], [12, 13]
def b_head():
    lab("L_B")
    cm("===== role B")
    if "noB" in X: e("s_branch L_exit")
    e(f"s_cmp_lt_u32 s{sW}, 4")
    e("s_cbranch_scc1 L_Bc")
    A.reset(); nst[0] = 0
    t0, t1, t2 = 14, 15, 16
    e("s_setprio 3")
    e(f"v_bfe_u32 v{t0}, v0, 4, 4")
    e(f"v_lshlrev_b32 v{t0}, 9, v{t0}")
    e(f"v_bfe_u32 v{t1}, v0, 4, 2")
    e(f"v_lshlrev_b32 v{t1}, 2, v{t1}")
    e(f"s_and_b32 s{sT0}, s{sW}, 2")
    e(f"v_xor_b32 v{t1}, v{t1}, v0")
    e(f"v_xor_b32 v{t1}, s{sT0}, v{t1}")
    e(f"v_and_b32 v{t1}, 15, v{t1}")
    e(f"v_lshl_add_u32 v{t0}, v{t1}, 4, v{t0}")
    e(f"s_lshl_b32 s{sT0}, s{sHF}, 8")
    e(f"v_add_u32 v{vW}, s{sT0}, v{t0}")
    e(f"s_and_b32 s{sMB}, s{sW}, 3")
    e(f"s_lshl_b32 s{sMB}, s{sMB}, 10")
    e(f"v_bfe_u32 v{t0}, v0, 3, 5")
    e(f"v_mul_u32_u24 v{t0}, 104, v{t0}")
    e(f"v_and_b32 v{t1}, 7, v0")
    e(f"v_lshl_add_u32 v{t0}, v{t1}, 4, v{t0}")
    e(f"s_mul_i32 s{sT1}, s{sRG}, {64*104}")
    assert LEAD == 8
    e(f"s_lshr_b32 s{sT2}, s2, 5")
    e(f"s_lshl_b32 s{sT0}, s{sT2}, 15")
    e(f"s_mov_b32 s{sT3}, 0")
    if BPF:
        e(f"v_bfe_u32 v{t1}, v0, 1, 4")
        e(f"v_bfe_u32 v{t2}, v0, 6, 2")
        e(f"v_lshl_add_u32 v{t1}, v{t2}, 4, v{t1}")
        e(f"v_lshlrev_b32 v{t1}, 9, v{t1}")
        e(f"v_and_b32 v{t2}, 1, v0")
        e(f"v_lshl_add_u32 v{t1}, v{t2}, 7, v{t1}")
        e(f"s_lshl_b32 s{sT2}, s{sHF}, 8")
        e(f"s_add_u32 s{sT2}, s{sT2}, s{sT0}")
        e(f"s_add_u32 s{sT2}, s{sT2}, {8*32768}")
    e("s_waitcnt lgkmcnt(0)")
    stamp()
    A.vmem(f"buffer_load_dwordx4 {vr(vIa[0],4)}, v{t0}, {srd(S_IDX)}, s{sT1} offen", "idx")
    A.vmem(f"buffer_load_dwordx4 {vr(vIa[1],4)}, v{t0}, {srd(S_IDX)}, s{sT1} offen offset:{32*104}", "idx")
    if BPF:
        e("s_mov_b32 exec_hi, 0")
        A.vmem(f"buffer_load_dword v{t2}, v{t1}, {srd(S_W1)}, s{sT2} offen", "pf")
        e("s_mov_b64 exec, -1")
    lab("L_lead")
    e(f"s_lshr_b32 s{sT2}, s{sT0}, 1")
    e(f"s_add_u32 m0, s{sT2}, s{sMB}")
    e(f"s_add_u32 s{sT3}, s{sT3}, 1")
    for n in range(4):
        e(f"buffer_load_dwordx4 v{vW}, {srd(S_W1)}, s{sT0} offen lds")
        if n < 3: e("s_addk_i32 m0, 0x1000")
        e(f"s_addk_i32 s{sT0}, 0x2000")
    e(f"s_and_b32 s{sT0}, s{sT0}, {8*32768 - 1}")
    e(f"s_cmp_lt_u32 s{sT3}, 8")
    e("s_cbranch_scc1 L_lead")
    for k in range(4*LEAD - LEAD): A.vm.append("lead")
    for f in range(LEAD): A.vm.append(f"w{f}")
    e("s_branch L_Bl2")
    BST["sv"] = (A.vm, A.ds, A.vm_done, A.ds_done, nst[0])

def role_b():
    A.vm, A.ds, A.vm_done, A.ds_done, nst[0] = BST["sv"]
    lab("L_Bl2")
    t1 = 15
    e(f"v_lshrrev_b32 v{t1}, 4, v0")
    e(f"v_xor_b32 v{t1}, v{t1}, v0")
    e(f"v_and_b32 v{t1}, 7, v{t1}")
    e(f"v_lshlrev_b32 v{vS}, 4, v{t1}")
    if STAMPS:
        rest_srds(); rest_srds2()
    if TOUCH == 2:
        for k in (4, 5, 6, 7):
            e(f"s_load_dword s{sT3}, s[{KT+2*k}:{KT+2*k+1}], 0")
    wq = [(f, n) for f in range(LEAD, 26) for n in range(4)]
    def wpiece():
        f, n = wq.pop(0)
        e(f"s_add_u32 m0, s{sMB}, {WBASE + (f % NWS)*16384 + n*4096}")
        e(f"s_mov_b32 s{sT0}, {f*32768 + n*8192}")
        A.vmem(f"buffer_load_dwordx4 v{vW}, {srd(S_W1)}, s{sT0} offen lds", f"w{f}")
    def gpiece(f):
        c = f >> 2
        for u in range(2):
            e(f"v_add_u32_dpp v{vGt[u]}, v{vIa[u] + (f & 3)}, v{vS} row_newbcast:{c} row_mask:0xf bank_mask:0x3")
        e(f"s_add_u32 m0, s{sMB}, {GBASE + (f % NGS)*8192}")
        for u in range(2):
            e(f"v_add_u32_dpp v{vGt[u]}, v{vIa[u] + (f & 3)}, v{vS} row_newbcast:{8+c} row_mask:0xf bank_mask:0xc")
        A.vmem(f"buffer_load_dwordx4 v{vGt[0]}, {srd(S_TAB)}, 0 offen lds", f"g{f}")
        e("s_addk_i32 m0, 0x1000")
        A.vmem(f"buffer_load_dwordx4 v{vGt[1]}, {srd(S_TAB)}, 0 offen lds", f"g{f}")
    A.vm_wait("idx")
    for u in range(2):
        for d in range(4): e(f"v_lshlrev_b32 v{vIa[u]+d}, 7, v{vIa[u]+d}")
    stamp()
    for f in range(NGS): gpiece(f)
    tot = len(wq); done = 0
    nsteps = 26 - NGS
    for f in range(26):
        A.vm_wait(f"g{f}"); A.vm_wait(f"w{f}")
        e("s_barrier")
        if f in (0, 6, 12, 18, 25): stamp()
        if f >= 1 and f - 1 + NGS < 26:
            tgt = f * tot // nsteps
            while done < tgt and wq and wq[0][0] <= f - 1 + NWS:
                wpiece(); done += 1
            gpiece(f - 1 + NGS)
    assert not wq
    e("s_branch L_end")
    lab("L_Bc")
    A.reset(); nst[0] = 0
    aEm = [1, 2]; aW = [[3, 4], [5, 6]]
    W2 = 176; ACC = 32
    EF = lambda st, ks, rt: 64 + st*32 + ks*16 + rt*4
    WFr = lambda st, ks, ct: 128 + st*16 + ks*8 + ct*4
    t0, t1, t2, t3 = 7, 9, 10, 11
    rest_srds()
    consts()
    e(f"v_and_b32 v{t0}, 15, v0")
    e(f"v_bfe_u32 v{t1}, v0, 4, 2")
    e(f"v_bfe_u32 v{t2}, v0, 1, 3")
    e(f"v_xor_b32 v{t2}, v{t2}, v{t1}")
    e(f"v_lshlrev_b32 v{t2}, 4, v{t2}")
    e(f"v_lshl_add_u32 v{t2}, v{t0}, 7, v{t2}")
    e(f"v_add_u32 v{aEm[0]}, {GBASE}, v{t2}")
    e(f"v_xor_b32 v{aEm[1]}, 64, v{aEm[0]}")
    e(f"v_bfe_u32 v{t0}, v0, 2, 2")
    e(f"v_lshl_add_u32 v{t2}, v{t1}, 3, v{t0}")
    e(f"v_lshlrev_b32 v{t2}, 8, v{t2}")
    e(f"v_xor_b32 v{t0}, s{sW}, v{t0}")
    e(f"v_lshl_add_u32 v{t2}, v{t0}, 6, v{t2}")
    e(f"v_bfe_u32 v{t0}, v0, 4, 1")
    e(f"v_lshl_add_u32 v{t2}, v{t0}, 5, v{t2}")
    e(f"v_and_b32 v{t0}, 3, v0")
    e(f"v_lshl_add_u32 v{aW[0][0]}, v{t0}, 3, v{t2}")
    e(f"v_xor_b32 v{aW[0][1]}, 32, v{aW[0][0]}")
    for ct in range(2): e(f"v_add_u32 v{aW[1][ct]}, 0x10000, v{aW[0][ct]}")
    e(f"s_lshl_b32 s{sT0}, s{sHF}, 8")
    e(f"s_lshl_b32 s{sT1}, s{sW}, 6")
    e(f"s_add_u32 s{sT0}, s{sT0}, s{sT1}")
    e(f"v_lshlrev_b32 v{t1}, 3, v{t1}")
    e("s_waitcnt lgkmcnt(0)")
    rest_srds2()
    e(f"s_mov_b32 s{sT2}, s{sT0}")
    if NPB:
        cm("weight prefetch into L2: 16 lines per wave and block")
        e(f"s_lshr_b32 s{sT0}, s2, 5")
        e(f"s_lshl1_add_u32 s{sT0}, s{sT0}, s{sHF}")
        e(f"s_lshl2_add_u32 s{sT0}, s{sT0}, s{sW}")
        e(f"s_lshl_b32 s{sT0}, s{sT0}, 11")
        e(f"v_and_b32 v{t0}, 15, v0")
        e(f"v_lshl_add_u32 v{t0}, v{t0}, 7, s{sT0}")
        e(f"v_bfe_u32 v{t2}, v0, 4, 2")
        e(f"v_lshl_add_u32 v{t0}, v{t2}, 17, v{t0}")
        nw1 = min(NPB, 6 - NPF0)
        for b0 in range(0, nw1, 4):
            n = min(4, nw1 - b0)
            if n < 4: e(f"s_mov_b64 exec, {hex((1 << (16*n)) - 1) if n < 3 else '-1'}")
            if n == 3: e("s_mov_b32 exec_hi, 0xffff")
            if n == 2: e("s_mov_b32 exec_lo, -1"); e("s_mov_b32 exec_hi, 0")
            e(f"s_mov_b32 s{sT0}, {65536 + (NPF0 + b0)*131072}")
            e(f"buffer_load_dword v{t3}, v{t0}, {srd(S_W1)}, s{sT0} offen")
            e("s_mov_b64 exec, -1")
    for i in range(32): e(f"v_mov_b32 v{ACC+i}, 0")
    C0 = 12
    e(f"v_mov_b32 v{C0}, s{sC0}"); e(f"v_mov_b32 v{C0+1}, s{sC0}")
    e(f"v_mov_b32 v{C0+2}, s{sC1}"); e(f"v_mov_b32 v{C0+3}, s{sC1}")
    W2R = 160
    vHo, vBt, vBt2 = 172, 175, 193
    e(f"v_lshlrev_b32 v{vHo}, 3, v0")
    e(f"s_lshl1_add_u32 s{sT3}, s{sRG}, s{sHF}")
    e(f"s_lshl_b32 s{sT3}, s{sT3}, 9")
    e(f"s_lshl_b32 s{sT0}, s{sW}, 28")
    e(f"s_add_u32 s{sT3}, s{sT3}, s{sT0}")
    def late_loads():
        for q in range(2):
            A.vmem(f"buffer_load_dwordx2 {vr(W2R + 2*q, 2)}, v{t1}, {srd(S_W2)}, s{sT2} offen offset:{32*q}", "w2")
        A.vmem(f"buffer_load_dword v{vBt}, v{vHo}, {srd(S_WS)}, s{sT3} offen offset:4 sc1", "tag")
        e(f"s_add_u32 s{sMB}, s{sT3}, 0x10000")
        A.vmem(f"buffer_load_dword v{vBt2}, v{vHo}, {srd(S_WS)}, s{sMB} offen offset:4 sc1", "tag")
        e(f"s_lshl_b32 s{sT0}, s{sW}, 6")
        e(f"s_add_u32 s{sT0}, s{sT0}, s{sRG}")
        e(f"s_lshl_b32 s{sT0}, s{sT0}, 2")
        e("s_mov_b64 exec, 1")
        A.vmem(f"buffer_load_dword v{vHo+1}, off, {srd(S_DBG)}, s{sT0} sc1", "afl")
        e("s_mov_b64 exec, -1")
    def w2_unpack():
        A.vm_wait("w2")
        for d in range(4):
            e(f"v_lshlrev_b32 v{W2 + 2*d}, 16, v{W2R + d}")
            e(f"v_and_b32 v{W2 + 2*d + 1}, s{sMSK}, v{W2R + d}")
    stamp()
    def rdl(f, ks):
        st = f & 1; ws = f % NWS
        out = []
        def w(ct, u): out.append((f"ds_read_b64_tr_b16 {vr(WFr(st, ks, ct) + 2*u, 2)}, v{aW[ws >> 2][ct]} offset:{(ws & 3)*16384 + ks*8192 + u*1024}", f"r{f}_{ks}a"))
        def em(rt, tag): out.append((f"ds_read_b128 {vr(EF(st, ks, rt), 4)}, v{aEm[ks]} offset:{(f % NGS)*8192 + rt*2048}", tag))
        w(0, 0); w(0, 1); w(1, 0); w(1, 1); em(0, f"r{f}_{ks}a"); em(1, f"r{f}_{ks}b"); em(2, f"r{f}_{ks}c"); em(3, f"r{f}_{ks}d")
        return out
    def mm1(f, ks, rt, ct):
        st = f & 1
        if "bnomm" in X: return
        if "snake" in X and rt & 1: ct ^= 1
        if "rtin" in X:
            k_ = rt*2 + ct; rt, ct = (k_ & 3) if k_ < 4 else 3 - (k_ & 3), k_ >> 2
        d = ACC + rt*8 + ct*4
        if "swapab" in X: mf16(d, EF(st, ks, rt), WFr(st, ks, ct), d)
        else: mf16(d, WFr(st, ks, ct), EF(st, ks, rt), d)
    for f in range(26):
        cm(f"-- B step {f}")
        e("s_barrier")
        if f in (0, 6, 12, 18, 25): stamp()
        if "bidle" in X:
            if f == 23: late_loads()
            continue
        r0, r1 = rdl(f, 0), rdl(f, 1)
        for k in range(8):
            A.lds(*r0[k])
            if k >= 4 and f: mm1(f - 1, 1, (k - 4) >> 1, k & 1)
        for k in range(4):
            if f: mm1(f - 1, 1, 2 + (k >> 1), k & 1)
            A.lds(*r1[k])
        for k in range(8):
            if "rtin" in X:
                if k < 4: A.ds_wait(f"r{f}_0" + "abcd"[k])
            elif not k & 1: A.ds_wait(f"r{f}_0" + "abcd"[k >> 1])
            mm1(f, 0, k >> 1, k & 1)
            if k < 4: A.lds(*r1[4 + k])
        if f == 23: late_loads()
        A.ds_all()
    for k in range(8): mm1(25, 1, k >> 1, k & 1)
    w2_unpack()
    stamp()
    S = 164
    TT = 64
    for hf in range(2):
        ls = []
        for p in range(8):
            rt = 2*hf + (p >> 2); pp = p & 3
            x = ACC + rt*8 + 2*pp; t = TT + 2*p
            with Cap() as c:
                e(f"v_pk_mul_f32 {vr(t,2)}, {vr(x,2)}, {vr(x,2)}")
                e(f"v_pk_fma_f32 {vr(t,2)}, {vr(t,2)}, {vr(C0+2,2)}, {vr(C0,2)}")
                e(f"v_pk_mul_f32 {vr(t,2)}, {vr(t,2)}, {vr(x,2)}")
                e(f"v_exp_f32 v{t}, v{t}")
                e(f"v_exp_f32 v{t+1}, v{t+1}")
                e(f"v_pk_mul_f32 {vr(x,2)}, {vr(x,2)}, {vr(W2 + 2*pp,2)}")
                e(f"v_pk_add_f32 {vr(t,2)}, {vr(t,2)}, 1.0 op_sel_hi:[1,0]")
                e(f"v_rcp_f32 v{t}, v{t}")
                e(f"v_rcp_f32 v{t+1}, v{t+1}")
                if pp == 0: e(f"v_pk_mul_f32 {vr(S + 2*rt,2)}, {vr(x,2)}, {vr(t,2)}")
                else: e(f"v_pk_fma_f32 {vr(S + 2*rt,2)}, {vr(x,2)}, {vr(t,2)}, {vr(S + 2*rt,2)}")
            ls.append(c.l)
        zipl(ls)
    for rt in range(4): e(f"v_add_f32 v{S + 2*rt}, v{S + 2*rt}, v{S + 2*rt + 1}")
    e(f"v_lshlrev_b32 v1, 2, v0")
    e(f"v_add_u32 v1, {B_RED}, v1")
    e(f"v_permlane32_swap_b32 v{S}, v{S+4}")
    e(f"v_permlane32_swap_b32 v{S+2}, v{S+6}")
    e(f"v_add_f32 v{S}, v{S}, v{S+4}")
    e(f"v_add_f32 v{S+2}, v{S+2}, v{S+6}")
    e(f"v_permlane16_swap_b32 v{S}, v{S+2}")
    e(f"v_add_f32 v{S}, v{S}, v{S+2}")
    e(f"ds_write_b32 v1, v{S}")
    e("s_waitcnt lgkmcnt(0)")
    e("s_barrier")
    stamp()
    e(f"s_cmp_lg_u32 s{sW}, 0")
    e("s_cbranch_scc1 L_end")
    for k in range(1, 4): e(f"ds_read_b32 v{16+k}, v1 offset:{256*k}")
    e(f"s_lshl_b32 s{sT1}, s{sRG}, 2")
    e(f"s_lshl_b32 s{sT2}, s{sHF}, 4")
    e(f"s_lshl_b32 s{sT2}, 2, s{sT2}")
    e(f"v_mov_b32 v6, s{sT2}")
    e("s_waitcnt vmcnt(0) lgkmcnt(0)")
    e(f"v_add_u32 v{vBt}, 1, v{vBt}")
    e(f"v_add_u32 v{vBt2}, 1, v{vBt2}")
    e(f"v_add_f32 v{S}, v{S}, v17")
    e(f"v_add_f32 v18, v18, v19")
    e(f"v_add_f32 v{vBt-1}, v{S}, v18")
    e(f"buffer_store_dwordx2 {vr(vBt-1,2)}, v{vHo}, {srd(S_WS)}, s{sT3} offen")
    e(f"v_mov_b32 v{vBt2-1}, v{vBt-1}")
    e(f"buffer_store_dwordx2 {vr(vBt2-1,2)}, v{vHo}, {srd(S_WS)}, s{sMB} offen sc1")
    e(f"v_readfirstlane_b32 s{sT0}, v{vHo+1}")
    e(f"s_and_b32 s{sT0}, s{sT0}, 0x01000100")
    e(f"s_cmp_eq_u32 s{sT0}, 0x01000100")
    e("s_cbranch_scc1 L_end")
    e("s_waitcnt vmcnt(0)")
    e("s_mov_b64 exec, 1")
    e(f"buffer_atomic_or v6, off, {srd(S_DBG)}, s{sT1} sc1")
    if STAMPS: e("s_mov_b64 exec, -1")

def fin():
    lab("L_end")
    if STAMPS:
        e("s_waitcnt vmcnt(0)")
        e("s_memtime s[100:101]")
        e("s_memrealtime s[72:73]")
        e("s_waitcnt lgkmcnt(0)")
        e(f"v_writelane_b32 v{VST[0]}, s4, 0")
        e(f"v_writelane_b32 v{VST[0]}, s70, 32")
        e(f"v_writelane_b32 v{VST[0]}, s100, 25")
        e(f"v_writelane_b32 v{VST[0]}, s72, 57")
        e(f"s_lshl3_add_u32 s{sT0}, s2, s{sW}")
        e(f"s_lshl_b32 s{sT0}, s{sT0}, 8")
        e(f"s_add_u32 s{sT0}, s{sT0}, 0x400000")
        e("v_and_b32 v0, 63, v0")
        e("v_lshlrev_b32 v0, 2, v0")
        e(f"buffer_store_dword v{VST[0]}, v0, {srd(S_WS)}, s{sT0} offen")
    lab("L_exit")
    e("s_endpgm")
    lab("L_codeend")

def main():
    A.raw("; Kernarg: in0 idx, in1 table, in2 se_w1, in3 se_w2, in4 w_bi, in5 w_cross, in6 w_deep1, in7 w_deep2, out, debug, ws")
    A.raw(f"; @launch grid=(256,1,1) block=(512,1,1) lds={LDS_TOTAL}")
    for t in ['.amdgcn_target "amdgcn-amd-amdhsa--gfx950"', ".text", f".globl {KN}", ".p2align 12", f".type {KN},@function", f"{KN}:"]: A.raw(t)
    entry()
    role_a()
    role_b()
    fin()
    for t in ['.section .rodata,"a"', ".p2align 6", f".amdhsa_kernel {KN}", "  .amdhsa_next_free_vgpr 256", "  .amdhsa_next_free_sgpr 102",
              "  .amdhsa_accum_offset 256", "  .amdhsa_group_segment_fixed_size 0", "  .amdhsa_kernarg_size 88", "  .amdhsa_user_sgpr_count 2",
              "  .amdhsa_user_sgpr_kernarg_segment_ptr 1", "  .amdhsa_system_sgpr_workgroup_id_x 1", ".end_amdhsa_kernel"]: A.raw(t)
    if "nodot" in X:
        import re
        A.L = [re.sub(r"v_dot2c?_f32_bf16 (v\d+), (v\d+), (v\d+).*", r"v_cvt_pk_bf16_f32 \1, \2, \3", x) for x in A.L]
    out = autonop([x for x in A.L if x is not None])
    open(sys.argv[1], "w").write("\n".join(out) + "\n")
main()
```

```python
import os, sys, math
sys.path.insert(0, os.path.dirname(os.path.abspath(__file__)))
from asmlib import *

STAMPS = int(os.environ.get("STAMPS", "0"))
def P(name, d): return int(os.environ.get(name, d))
KN = "standalone__deep_cross_fibinet__recsys_kernel"
A = Asm(); e = A.e; lab = A.lab; cm = A.cm

S_IDX, S_TAB, S_W1, S_WC, S_WBI, S_SW1, S_SW2, S_W2, S_OUT, S_DBG, S_WS = [8 + 4*i for i in range(11)]
SIZE = {S_IDX: 4096*104, S_TAB: 100000*128, S_W1: 1664*512, S_WC: 86528*2, S_WBI: 8192, S_SW1: 676, S_SW2: 676, S_W2: 512,
        S_OUT: 8192, S_DBG: 256, S_WS: 1 << 28}
sW, sRG, sHF, sX16 = 52, 53, 54, 55
sT0, sT1, sT2, sT3 = 56, 57, 58, 59
sMB, sMB2, sK6, sM6 = 60, 61, 62, 63
sMa, sMa3, sMb, sKa3 = 6, 7, 3, 55
sLO, sHI, sC0, sC1, sMSK, sNL = 64, 65, 66, 67, 68, 69
KT = 84
def srd(b): return f"s[{b}:{b+3}]"

nst = [0]
FS = P("FS", 6)
fst = [0]
def fstamp(force=False):
    if STAMPS != 3 or (FS == -2 and not force): return
    k = fst[0]; fst[0] += 1
    e("s_memtime s[100:101]")
    e("s_waitcnt lgkmcnt(0)")
    e(f"v_writelane_b32 v{VST[0]}, s100, {k + 1}")
    A.ds_done = len(A.ds) - 1
def stamp():
    if STAMPS != 1: return
    k = nst[0]; nst[0] += 1
    assert k < 24
    e("s_memtime s[100:101]")
    e("s_waitcnt lgkmcnt(0)")
    e(f"v_writelane_b32 v{VST[0]}, s100, {k + 1}")
    e("s_memrealtime s[100:101]")
    e("s_waitcnt lgkmcnt(0)")
    e(f"v_writelane_b32 v{VST[0]}, s100, {k + 33}")
    A.ds_done = len(A.ds) - 1
VST = [26]

def mf16(d, a, b, c=None):
    e(f"v_mfma_f32_16x16x32_bf16 {vr(d,4)}, {vr(a,4)}, {vr(b,4)}, {'0' if c is None else vr(c,4)}")
def mf32(d, a, b, c=None):
    e(f"v_mfma_f32_32x32x16_bf16 {vr(d,16)}, {vr(a,4)}, {vr(b,4)}, {'0' if c is None else vr(c,16)}")

def mksrd(b):
    e(f"s_mov_b32 s{b+2}, {SIZE[b]}")
    e(f"s_mov_b32 s{b+3}, 0x00020000")
def cpsrd(b, k):
    e(f"s_mov_b64 s[{b}:{b+1}], s[{KT+2*k}:{KT+2*k+1}]")

def entry():
    e("s_cmp_ge_u32 s2, 256")
    e("s_cbranch_scc1 L_exit")
    if STAMPS:
        e("s_memtime s[4:5]")
        e("s_memrealtime s[70:71]")
    e(f"s_load_dwordx2 s[{S_IDX}:{S_IDX+1}], s[0:1], 0")
    e(f"s_load_dwordx2 s[{S_W1}:{S_W1+1}], s[0:1], 48")
    e(f"s_load_dwordx2 s[{S_TAB}:{S_TAB+1}], s[0:1], 8")
    e(f"s_load_dwordx8 s[{KT}:{KT+7}], s[0:1], 16")
    e(f"s_load_dwordx8 s[{KT+8}:{KT+15}], s[0:1], 56")
    e("v_lshrrev_b32 v1, 6, v0")
    e(f"s_lshr_b32 s{sT0}, s2, 5")
    e(f"v_readfirstlane_b32 s{sW}, v1")
    e(f"s_and_b32 s{sT1}, s2, 7")
    e(f"s_lshl3_add_u32 s{sRG}, s{sT0}, s{sT1}")
    e(f"s_bfe_u32 s{sHF}, s2, 0x10003")
    if CPF:
        cm("pull the kernel's code into L2: one 128-byte line per wave")
        e(f"s_getpc_b64 s[{S_WC}:{S_WC+1}]")
        lab("L_pc")
        e(f"s_mov_b32 s{S_WC+2}, L_codeend-L_pc")
        e(f"s_mov_b32 s{S_WC+3}, 0x00020000")
        e(f"s_andn2_b32 s{sT0}, s2, 7")
        e(f"s_add_u32 s{sT0}, s{sT0}, s{sW}")
        e(f"s_lshl_b32 s{sT0}, s{sT0}, 7")
        e("s_mov_b64 exec, 1")
        e(f"buffer_load_dword v8, off, {srd(S_WC)}, s{sT0}")
        e("s_mov_b64 exec, -1")
    mksrd(S_IDX); mksrd(S_W1); mksrd(S_TAB)
    e("s_bitcmp1_b32 s2, 4")
    e("s_cbranch_scc1 L_B")

def rest_srds():
    for b in (S_SW1, S_SW2, S_WBI, S_WC, S_W2, S_OUT, S_DBG, S_WS): mksrd(b)
def rest_srds2():
    for k, b in enumerate((S_SW1, S_SW2, S_WBI, S_WC, S_W2, S_OUT, S_DBG, S_WS)): cpsrd(b, k)

def consts():
    c0 = -2.0 * math.sqrt(2.0 / math.pi) * math.log2(math.e)
    e(f"s_mov_b32 s{sLO}, 0x05040100")
    e(f"s_mov_b32 s{sHI}, 0x07060302")
    e(f"s_mov_b32 s{sC0}, {fbits(c0)}")
    e(f"s_mov_b32 s{sC1}, {fbits(c0 * 0.044715)}")
    e(f"s_mov_b32 s{sMSK}, 0xffff0000")
    e(f"s_mov_b32 s{sNL}, {fbits(-math.log2(math.e))}")

R0, R1, R2 = 0, 53248, 106496
MISC = 147456
L_WBI, L_SE1, L_SE2, L_AV = MISC - 8192, MISC + 8192, MISC + 9216, MISC + 10240
LDS_TOTAL = 163840
vSw, vI, vG, vPf, vDum = 1, 2, [6, 9], 7, 8
sMG = 78
aE = [[10, 11], [12, 13]]
aC, aC6, aC2 = [14, 15], [16, 17], [22, 23]
vJ = [18, 19]
vFl, vPw = 22, 23
WFB = 0x40000
L_PST = R2
aAw = 28; aAr = [29, 30]; aRed = 31; sSt = 7
vTag2 = 26 if not STAMPS else 28
vHo, vTag, vPo = 20, 21, 24
XF, CAP, RAW, WF, T = 32, 96, 152, 180, 196
AF, DD, WB, ZF, SE1F, SE2F = T, WF, RAW, RAW + 8, RAW + 12, RAW + 16
RING = [96, 100, 104, 108, 112, 116, RAW + 20, RAW + 24]
UH, XQ, AJ = 120, RAW, WF
TS = [[T + 4*i for i in range(8)], [228, 232, 236, 240, 244, 248, 252, RAW + 16]]
ACC = [2, 10]
AKL = [[1, 6, 7], [8, 9, 27]]
LF = [[[2, 3], [4, 5]], [[10, 11], [12, 13]]]
def xf(el, t, q): return XF + el*8 + t*4 + q
GAHEAD = P("GAHEAD", 6)
G0 = P("G0", 5)
TOUCH = P("TOUCH", 0)
CPF = P("CPF", 1)
X = os.environ.get("X", "").split(",")
NPF0 = P("NPF0", 2)
PFAT = P("PFAT", 7)
SPEC = P("SPEC", 14)
NPB = 0
BPF = P("BPF", 0)
PF0 = 16 if BPF else 8
FLD = P("FLD", 7)
FSIG = P("FSIG", 2)
FCHK = P("FCHK", 10)
ABAR = P("ABAR", 3)
LATE0 = P("LATE0", 1)
EVEN = P("EVEN", 0)
PRIO = P("PRIO", 0)
DBLST = P("DBLST", 0)
NST = P("NST", 0)
NPS = P("NPS", 3)
SPF = P("SPF", -1)
PFB = [(S_W1, 512 + 1024*k) for k in range(6)] + [(S_WC, 0), (S_WC, 1024)]

def a_gaddr(k, h):
    g = vG[k & 1]
    def one(c, r):
        if h == 0: e(f"v_add_u32_dpp v{g}, v{r}, v{vSw} row_newbcast:{c} row_mask:0xf bank_mask:0x3")
        else: e(f"v_add_u32_dpp v{g}, v{r}, v{vSw} row_newbcast:{8+c} row_mask:0xf bank_mask:0xc")
    if k < 12: one(2*(k >> 2), vI + (k & 3))
    else: one(6, vI)
def a_gm0(k):
    if k < 12: e(f"s_add_u32 m0, s{sMG}, {(8*(k >> 2) + (k & 3))*4096}")
    else: e(f"s_add_u32 m0, s{sMB}, {24*4096}")
def a_gissue(k):
    A.vmem(f"buffer_load_dwordx4 v{vG[k & 1]}, {srd(S_TAB)}, 0 offen lds", f"g{k}")
def a_gather(k):
    a_gaddr(k, 0)
    a_gm0(k)
    a_gaddr(k, 1)
    a_gissue(k)

def gelu(dst, x, t0, vc0):
    e(f"v_mul_f32 v{t0}, v{x}, v{x}")
    e(f"v_fma_f32 v{t0}, v{t0}, s{sC1}, v{vc0}")
    e(f"v_mul_f32 v{t0}, v{t0}, v{x}")
    e(f"v_exp_f32 v{t0}, v{t0}")
    e(f"v_add_f32 v{t0}, 1.0, v{t0}")
    e(f"v_rcp_f32 v{t0}, v{t0}")
    e(f"v_mul_f32 v{dst}, v{x}, v{t0}")

def zipl(lists):
    n = max(len(x) for x in lists)
    for i in range(n):
        for x in lists:
            if i < len(x): A.L.append(x[i])
class Cap:
    def __enter__(s): s.sv = A.L; A.L = []; s.l = A.L; return s
    def __exit__(s, *a): A.L = s.sv

def setexec(m32):
    e(f"s_mov_b32 exec_lo, {m32:#x}")
    e(f"s_mov_b32 exec_hi, {m32:#x}")

def role_a():
    A.reset()
    U, AK, ACCP = 228, 236, 252
    t0, t1, t2, t3, t4, t5 = U, U+1, U+2, U+3, U+4, U+5
    L15, G, aWb, GP, R01 = CAP + 51, CAP + 52, CAP + 53, CAP + 54, CAP + 55
    aS1, aS1t, aS2 = CAP + 48, CAP + 49, CAP + 50
    PA = CAP
    sKb, sJt, sWF, sPc = sM6, 55, sK6, 3
    cm("===== role A")
    e(f"v_bfe_u32 v{t0}, v0, 3, 5")
    e(f"v_mul_u32_u24 v{t0}, 104, v{t0}")
    e(f"v_and_b32 v{t1}, 7, v0")
    e(f"v_lshl_add_u32 v{t0}, v{t1}, 4, v{t0}")
    e(f"v_lshrrev_b32 v{t2}, 8, v0")
    e(f"v_lshl_add_u32 v{t0}, v{t2}, 4, v{t0}")
    cm("waves 4..7 read 16 bytes further; their lane 6 reads from field 25 instead")
    e(f"v_mul_u32_u24 v{t2}, 12, v{t2}")
    setexec(0x40404040)
    e(f"v_sub_u32 v{t0}, v{t0}, v{t2}")
    e("s_mov_b64 exec, -1")
    e(f"s_lshl1_add_u32 s{sT2}, s{sRG}, s{sHF}")
    e(f"s_mul_i32 s{sT2}, s{sT2}, {32*104}")
    e(f"s_lshl_b32 s{sMB}, s{sW}, 10")
    cm("this workgroup's piece of w_cross: task rg = (part, jt, kb, g'), e half = half; wave t loads line i(t) for 4 columns (lanes 0..15)")
    sG = 79
    e(f"s_and_b32 s{sG}, s{sRG}, 3")
    e(f"s_bfe_u32 s{sKb}, s{sRG}, 0x20002")
    e(f"s_bfe_u32 s{sJt}, s{sRG}, 0x10004")
    e(f"v_bfe_u32 v{t1}, v0, 3, 1")
    e(f"v_bfe_u32 v{t2}, v0, 2, 1")
    e(f"v_lshl_add_u32 v{t1}, v{t1}, 3, v{t2}")
    e(f"s_lshl3_add_u32 s{sT0}, s{sJt}, s{sG}")
    e(f"s_lshl_b32 s{sT0}, s{sT0}, 1")
    e(f"v_add_u32 v{t1}, s{sT0}, v{t1}")
    e(f"s_add_u32 s{sT0}, s{sG}, 24")
    e(f"v_min_u32 v{t1}, s{sT0}, v{t1}")
    e(f"v_and_b32 v{t2}, 3, v0")
    e(f"v_lshl_add_u32 v{t1}, v{t1}, 3, v{t2}")
    e(f"v_lshlrev_b32 v{t1}, 4, v{t1}")
    e(f"s_lshr_b32 s{sT0}, s{sW}, 1")
    e(f"s_lshl2_add_u32 s{sT0}, s{sT0}, s{sKb}")
    e(f"s_min_u32 s{sT0}, s{sT0}, 12")
    e(f"s_and_b32 s{sT1}, s{sW}, 1")
    e(f"s_lshl1_add_u32 s{sT0}, s{sT0}, s{sT1}")
    e(f"s_lshr_b32 s{sT1}, s{sRG}, 5")
    e(f"s_mul_i32 s{sT1}, s{sT1}, 26")
    e(f"s_add_u32 s{sT0}, s{sT0}, s{sT1}")
    e(f"s_mul_i32 s{sT0}, s{sT0}, 3328")
    e(f"s_lshl_b32 s{sT1}, s{sHF}, 6")
    e(f"s_add_u32 s{sPc}, s{sT0}, s{sT1}")
    e(f"s_mov_b32 s{S_SW2+2}, {SIZE[S_WC]}")
    e(f"s_mov_b32 s{S_SW2+3}, 0x00020000")
    e(f"s_lshr_b32 s{sT1}, s{sMB}, 2")
    e(f"s_add_u32 m0, s{sT1}, {L_PST}")
    e(f"s_lshr_b32 s6, s2, 5")
    e(f"s_lshl1_add_u32 s6, s6, s{sHF}")
    e("s_waitcnt lgkmcnt(0)")
    A.vmem(f"buffer_load_dwordx4 {vr(vI,4)}, v{t0}, {srd(S_IDX)}, s{sT2} offen", "idx")
    cpsrd(S_SW2, 3)
    fstamp()
    e("s_mov_b64 exec, 0xffff")
    A.vmem(f"buffer_load_dwordx4 v{t1}, {srd(S_SW2)}, s{sPc} offen lds", "pc")
    e("s_mov_b64 exec, -1")
    mksrd(S_WBI); cpsrd(S_WBI, 2)
    e(f"v_lshlrev_b32 v{t3}, 4, v0")
    e(f"s_add_u32 m0, s{sMB}, {L_WBI}")
    e(f"s_lshl_b32 s{sT0}, s6, 13")
    A.vmem(f"buffer_load_dwordx4 v{t3}, {srd(S_WBI)}, 0 offen lds", "sm")
    e("s_addk_i32 m0, 0x2000")
    e(f"v_and_b32 v{t2}, 63, v0")
    A.vmem(f"buffer_load_dwordx4 v{t3}, {srd(S_WBI)}, 4 offen lds", "sm")
    e(f"v_lshl_add_u32 v{vPf}, v{t2}, 7, s{sT0}")
    e(f"s_sub_u32 s{sT1}, s{sW}, {8 - NPF0}")
    e(f"s_lshl_b32 s{sT1}, s{sT1}, 17")
    e(f"s_add_u32 s{sT1}, s{sT1}, s{sT0}")
    e(f"s_add_u32 s{sT1}, s{sT1}, {PF0*32768}")
    e(f"s_cmp_lt_u32 s{sW}, {8 - NPF0}")
    e(f"s_cselect_b32 s{sT1}, 0x7f000000, s{sT1}")
    e(f"s_cmp_eq_u32 s{sW}, 0")
    e(f"s_cselect_b64 s[{S_SW1}:{S_SW1+1}], s[{KT}:{KT+1}], s[{KT+2}:{KT+3}]")
    e(f"s_min_u32 s{sT0}, s{sMB}, 2048")
    e(f"s_add_u32 m0, s{sT0}, {L_SE1}")
    e(f"s_cmp_lt_u32 s{sW}, 2")
    e(f"s_cselect_b64 s[{S_SW1}:{S_SW1+1}], s[{S_SW1}:{S_SW1+1}], s[{S_W1}:{S_W1+1}]")
    e(f"s_cselect_b32 s{S_SW1+2}, 676, s{S_W1+2}")
    e(f"s_cselect_b32 s{sT1}, 0, s{sT1}")
    e(f"s_cselect_b32 s{sT3}, 4, 7")
    e(f"s_mov_b32 s{S_SW1+3}, 0x00020000")
    e(f"v_lshlrev_b32 v{t4}, s{sT3}, v{t2}")
    A.vmem(f"buffer_load_dwordx4 v{t4}, {srd(S_SW1)}, s{sT1} offen lds", "se")
    fstamp()
    e("s_branch L_A2")
    sv = (A.vm, A.ds, A.vm_done, A.ds_done, nst[0])
    b_head()
    A.vm, A.ds, A.vm_done, A.ds_done, nst[0] = sv
    lab("L_A2")
    e(f"s_and_b32 s{sT0}, s{sMB}, 0x1000")
    e(f"s_mul_i32 s{sT0}, s{sT0}, 3")
    e(f"s_add_u32 s{sMG}, s{sMB}, s{sT0}")
    e(f"v_lshrrev_b32 v{t1}, 4, v0")
    e(f"v_xor_b32 v{t1}, v{t1}, v0")
    e(f"v_and_b32 v{t1}, 7, v{t1}")
    e(f"v_lshlrev_b32 v{vSw}, 4, v{t1}")
    e(f"v_and_b32 v{L15}, 15, v0")
    e(f"v_bfe_u32 v{G}, v0, 4, 2")
    e(f"v_bfe_u32 v{t0}, v0, 1, 3")
    e(f"s_and_b32 s{sT0}, s{sMB}, 0x400")
    e(f"s_lshl_b32 s{sT0}, s{sT0}, 1")
    e(f"v_lshl_add_u32 v{aC[1]}, v{L15}, 7, s{sT0}")
    e(f"v_xor_b32 v{t2}, v{G}, v{t0}")
    e(f"v_lshl_add_u32 v{aE[0][0]}, v{t2}, 4, v{aC[1]}")
    e(f"v_xor_b32 v{aE[1][0]}, 64, v{aE[0][0]}")
    e(f"v_xor_b32 v{aE[0][1]}, 0x800, v{aE[0][0]}")
    e(f"v_xor_b32 v{aE[1][1]}, 0x800, v{aE[1][0]}")
    e(f"v_bfe_u32 v{GP}, v0, 2, 2")
    e(f"v_lshl_add_u32 v{t3}, v{G}, 3, v{GP}")
    e(f"v_and_b32 v{t1}, 1, v0")
    e(f"v_lshl_add_u32 v{t3}, v{t1}, 6, v{t3}")
    e(f"v_bfe_u32 v{t4}, v0, 1, 1")
    e(f"v_lshlrev_b32 v{t5}, 3, v{t4}")
    e(f"v_lshl_add_u32 v{t3}, v{t3}, 7, v{t5}")
    e(f"s_lshl_b32 s{sT0}, s{sW}, 4")
    e(f"s_add_u32 s{sT0}, s{sT0}, {L_WBI}")
    e(f"v_add_u32 v{aWb}, s{sT0}, v{t3}")
    e(f"v_lshl_add_u32 v{t1}, v{GP}, 1, v{t1}")
    e(f"v_add_u32 v{R01}, v{t5}, v{t1}")
    e(f"v_and_b32 v{t4}, 3, v0")
    e(f"v_lshl_add_u32 v{t3}, v{t4}, 5, v{GP}")
    e(f"s_lshl_b32 s{sT0}, s{sW}, 3")
    e(f"s_add_u32 s{sT0}, s{sT0}, {L_PST}")
    e(f"v_lshl_add_u32 v{PA}, v{t3}, 1, s{sT0}")
    e(f"v_mul_u32_u24 v{t3}, 3328, v{GP}")
    e(f"v_lshl_add_u32 v{PA+1}, v{t4}, 4, v{t3}")
    e(f"v_mov_b32 v{PA + 7}, 0")
    e(f"s_lshl2_add_u32 s{sT1}, s{sKb}, s{sG}")
    e(f"s_lshl_b32 s{sT1}, s{sT1}, 2")
    e(f"s_mul_i32 s{sT0}, s{sG}, 3")
    e(f"s_min_u32 s{sT0}, s{sT0}, 8")
    e(f"s_mul_i32 s{sT2}, s{sKb}, 10")
    e(f"s_add_u32 s{sT0}, s{sT0}, s{sT2}")
    e(f"s_add_u32 s{sT0}, s{sT0}, 64")
    e(f"s_cmp_lt_u32 s{sG}, 2")
    e(f"s_movk_i32 s{sG}, 0x3333")
    e(f"s_cselect_b32 s{sG}, 0x7777, s{sG}")
    e(f"s_cmp_eq_u32 s{sJt}, 0")
    e(f"s_cselect_b32 s{sT0}, s{sT1}, s{sT0}")
    e(f"s_cselect_b32 s{sG}, 0xffff, s{sG}")
    e(f"s_lshr_b32 s{sT1}, s{sRG}, 5")
    e(f"s_mul_i32 s{sT1}, s{sT1}, 104")
    e(f"s_add_u32 s{sT0}, s{sT0}, s{sT1}")
    e(f"s_lshl_b32 s{sT0}, s{sT0}, 4")
    e(f"s_lshl3_add_u32 s{sT1}, s{sHF}, s{sW}")
    e(f"s_mul_i32 s{sT1}, s{sT1}, {4*3328}")
    e(f"s_add_u32 s{sT0}, s{sT0}, s{sT1}")
    e(f"s_add_u32 s{sWF}, s{sT0}, {WFB}")
    e(f"s_and_b32 s{sT0}, s{sKb}, 1")
    e(f"s_lshl_b32 s{sT0}, s{sT0}, 3")
    e(f"s_lshl_b32 s{sJt}, 0xff, s{sT0}")
    e(f"s_lshr_b32 s{sT0}, s{sKb}, 1")
    e(f"s_xor_b32 s{sT0}, s{sT0}, s{sW}")
    e(f"s_bitcmp1_b32 s{sT0}, 0")
    e(f"s_cselect_b32 s{sJt}, 0x10000, s{sJt}")
    mksrd(S_WS); cpsrd(S_WS, 7)
    e(f"v_and_b32 v{t3}, 31, v0")
    e(f"v_bfe_u32 v{t4}, v0, 5, 1")
    e(f"v_lshl_add_u32 v{t3}, v{t4}, 6, v{t3}")
    e(f"s_lshl2_add_u32 s{sT0}, s{sRG}, s{sHF}")
    e(f"s_lshl_b32 s{sT0}, s{sT0}, 8")
    e(f"v_lshl_add_u32 v{vHo}, v{t3}, 3, s{sT0}")
    def late_setup():
        u0, u1, u2 = PA + 2, PA + 3, aWb
        e(f"v_bfe_u32 v{u0}, v0, 1, 3")
        e(f"v_xor_b32 v{u0}, s{sW}, v{u0}")
        e(f"v_lshl_add_u32 v{u0}, v{u0}, 4, v{aC[1]}")
        e(f"v_lshl_add_u32 v{aC[0]}, v{G}, 13, v{u0}")
        e(f"v_xor_b32 v{aC[1]}, 0x800, v{aC[0]}")
        e(f"v_min_u32 v{u1}, 1, v{G}")
        e(f"v_add_u32 v{u1}, 24, v{u1}")
        e(f"v_lshl_add_u32 v{aC6[0]}, v{u1}, 12, v{u0}")
        e(f"v_xor_b32 v{aC6[1]}, 0x800, v{aC6[0]}")
        e(f"s_and_b32 s{sT1}, s{sW}, 2")
        e(f"s_lshl_b32 s{sT1}, s{sT1}, 3")
        e(f"v_add_u32 v{u0}, s{sT1}, v{R01}")
        e(f"v_add_u32 v{u1}, 24, v{GP}")
        e(f"v_min_u32 v{u0}, v{u0}, v{u1}")
        e(f"v_mov_b32 v{u2}, {L_SE1}")
        e(f"s_movk_i32 s{sT3}, 208")
        e(f"v_mad_u32_u24 v{u1}, v{G}, s{sT3}, v{u2}")
        e(f"v_lshl_add_u32 v{aS2}, v{u0}, 1, v{u1}")
        e(f"v_lshl_add_u32 v{u2}, v{L15}, 1, v{u2}")
        e(f"v_mad_u32_u24 v{aS1t}, v{G}, 26, v{u2}")
        e(f"v_mad_u32_u24 v{aS1}, v{G}, 52, v{u2}")
        e(f"v_and_b32 v{u0}, 63, v0")
        e(f"v_lshlrev_b32 v{vJ[0]}, 4, v{u0}")
        e(f"s_lshl3_add_u32 s{sT0}, s6, s{sW}")
        e(f"s_mul_i32 s{sT0}, s{sT0}, {13*128}")
        e(f"s_add_u32 s{sT0}, s{sT0}, {WFB}")
        e(f"v_lshl_add_u32 v{vPw}, v{u0}, 7, s{sT0}")
        e(f"v_mul_u32_u24 v{u0}, 3, v{GP}")
        e(f"v_min_u32 v{u0}, 8, v{u0}")
        e(f"v_mad_u32_u24 v{u0}, v{G}, 10, v{u0}")
        e(f"v_and_b32 v{u1}, 3, v0")
        e(f"v_bfrev_b32 v{vJ[1]}, 2")
        setexec(0x33773377)
        e(f"v_add_lshl_u32 v{vJ[1]}, v{u0}, v{u1}, 4")
        e("s_mov_b64 exec, -1")
        e(f"s_mul_i32 s{sMB2}, s{sW}, {8*3328}")
        e(f"s_add_u32 s{sMB2}, s{sMB2}, {WFB}")
        e(f"s_and_b32 s{sT0}, s{sW}, 1")
        e(f"s_mul_i32 s{sT2}, s{sT0}, {16*144}")
        e(f"s_sub_u32 s{sT3}, {16*144 + L_AV}, s{sT2}")
        e(f"s_add_u32 s{sT2}, s{sT2}, {L_AV}")
        e(f"v_mul_u32_u24 v{u0}, 144, v{L15}")
        e(f"v_lshl_add_u32 v{u0}, v{G}, 5, v{u0}")
        e(f"v_add_u32 v{aAr[0]}, s{sT2}, v{u0}")
        e(f"v_add_u32 v{aAr[1]}, s{sT3}, v{u0}")
        e(f"v_add_u32 v{aAw}, s{sT1}, v{aAr[0]}")
        e(f"s_lshl_b32 s{sSt}, s{sW}, 11")
        e(f"s_add_u32 s{sSt}, s{sSt}, {R2}")
        e(f"v_add_u32 v{aRed}, s{sSt}, v{vJ[0]}")
        for b in (S_OUT, S_DBG): mksrd(b)
        for k, b in enumerate((S_OUT, S_DBG)): cpsrd(b, k + 5)
        c0 = -2.0 * math.sqrt(2.0 / math.pi) * math.log2(math.e)
        e(f"s_mov_b32 s{sC0}, {fbits(c0)}")
        e(f"s_mov_b32 s{sC1}, {fbits(c0 * 0.044715)}")
        e(f"s_mov_b32 s{sMSK}, 0xffff0000")
        e(f"s_mov_b32 s{sNL}, {fbits(-math.log2(math.e))}")
        e(f"v_mov_b32 v{ZF+3}, 0")
    stamp()
    fstamp()
    A.vm_wait("idx")
    stamp()
    fs0 = (lambda: fstamp()) if FS == -1 else (lambda: None)
    fs0()
    for d in range(4): e(f"v_lshlrev_b32 v{vI+d}, 7, v{vI+d}")
    for s in range(G0): a_gather(s)
    fs0()
    def pfbatch():
        e(f"s_lshl_b32 s{sT1}, s{sW}, 17")
        e(f"s_add_u32 s{sT1}, s{sT1}, {PF0*32768 + NPF0*131072}")
        A.vmem(f"buffer_load_dword v{vDum}, v{vPf}, {srd(S_W1)}, s{sT1} offen", "pf")
    A.vm_wait("sm")
    fs0()
    e("s_barrier")
    fs0()
    for t in range(8):
        A.lds(f"ds_read_u16 v{PA + 12 + t}, v{PA} offset:{t*256}", "pr")
    for ks in range(2):
        for u in range(2):
            A.lds(f"ds_read_b64_tr_b16 {vr(WB + ks*4 + 2*u, 2)}, v{aWb} offset:{ks*4096 + u*512}", "wb")
    e(f"s_lshl_b32 s{sT0}, s{sW}, 28")
    A.vmem(f"buffer_load_dword v{vTag}, v{vHo}, {srd(S_WS)}, s{sT0} offen offset:4 sc1", "snap")
    e(f"s_add_u32 s{sT0}, s{sT0}, 0x10000")
    A.vmem(f"buffer_load_dword v{vTag2 if not STAMPS else vPo}, v{vHo}, {srd(S_WS)}, s{sT0} offen offset:4 sc1", "snap")
    fs0()
    A.ds_wait("pr")
    for q in range(3): e(f"v_lshl_or_b32 v{PA + 4 + q}, v{PA + 13 + 2*q}, 16, v{PA + 12 + 2*q}")
    e("s_mov_b32 exec_hi, 0")
    e(f"s_mov_b32 exec_lo, s{sJt}")
    e(f"v_lshl_or_b32 v{PA + 7}, v{PA + 19}, 16, v{PA + 18}")
    e(f"s_mov_b32 exec_lo, s{sG}")
    A.vmem(f"buffer_store_dwordx4 {vr(PA + 4, 4)}, v{PA + 1}, {srd(S_WS)}, s{sWF} offen sc1", "st")
    e("s_mov_b64 exec, -1")
    A.ds_all()
    cm("rows with r == 2 compute the field mean")
    e(f"v_mov_b32 v{t5}, 0")
    e(f"s_cmp_lt_u32 s{sW}, 4")
    e(f"s_cselect_b32 s{sT0}, 0x3c803c80, 0")
    setexec(0x44444444)
    e(f"v_mov_b32 v{t5}, s{sT0}")
    setexec(0xcccccccc)
    for d in range(8): e(f"v_mov_b32 v{WB + d}, v{t5}")
    e("s_mov_b64 exec, -1")
    if not LATE0: late_setup()
    def se_frags():
        TM2 = CAP + 20
        for t in range(6):
            A.lds(f"ds_read_u16 v{TM2 + t}, v{CAP + 48} offset:{(8*(t >> 1) + (t & 1))*26}", "se")
        A.lds(f"ds_read_u16 v{SE1F + 3}, v{CAP + 49} offset:{24*26}", "se")
    def se_frags2():
        TM2 = CAP + 20
        A.ds_wait("se")
        for kk in range(4):
            A.lds(f"ds_read_u16 v{TM2 + 8 + kk}, v{CAP + 50} offset:{1024 + kk*52}", "se")
    def se_frags3():
        TM2 = CAP + 20
        A.ds_wait("se")
        for q in range(3): e(f"v_lshl_or_b32 v{SE1F + q}, v{TM2 + 2*q + 1}, 16, v{TM2 + 2*q}")
        for q in range(2): e(f"v_lshl_or_b32 v{SE2F + q}, v{TM2 + 8 + 2*q + 1}, 16, v{TM2 + 8 + 2*q}")
    deferred = []
    fs0()
    stamp()
    def swaps(q, tls=(0, 1)):
        for tl in tls:
            for r in range(2):
                R = [xf(2*g + r, tl, q) for g in range(4)]
                e(f"v_permlane32_swap_b32 v{R[0]}, v{R[2]}")
                e(f"v_permlane32_swap_b32 v{R[1]}, v{R[3]}")
        for tl in tls:
            for r in range(2):
                R = [xf(2*g + r, tl, q) for g in range(4)]
                e(f"v_permlane16_swap_b32 v{R[0]}, v{R[1]}")
                e(f"v_permlane16_swap_b32 v{R[2]}, v{R[3]}")
    DDS = [DD, CAP + 32]
    def pack(s, tl):
        q, Gq = s >> 2, s & 3
        d = DDS[s & 1]
        for r in range(2):
            e(f"v_cvt_pk_bf16_f32 v{xf(2*Gq + r, tl, q)}, v{d + tl*4 + r}, v{d + 8 + tl*4 + r}")
    def packz(s, part=None):
        q, Gq = s >> 2, s & 3
        d = DDS[s & 1]
        if part in (None, 0): e(f"v_cvt_pk_bf16_f32 v{d + 2}, v{d + 2}, v{d + 8 + 2}")
        if part in (None, 1): e(f"v_mov_b32_dpp v{ZF + q}, v{d + 2} quad_perm:[0,1,2,3] row_mask:{1 << Gq:#x} bank_mask:0xf")
    wl = [0]
    def wload():
        k = wl[0]
        if k >= 32: return
        wl[0] += 1
        u, part, x = k >> 2, (k >> 1) & 1, k & 1
        ep, jt = u >> 1, u & 1
        if 8 <= k < 8 + NST:
            A.vm_wait(f"ws{k}")
            A.lds(f"ds_read_b128 {vr(RING[k % 8], 4)}, v{aRed} offset:{stoff(k)}", f"w{k >> 1}")
            return
        e(f"s_add_u32 s{sT0}, s{sMB2}, {(2*ep + x)*3328}")
        A.vmem(f"buffer_load_dwordx4 {vr(RING[k % 8], 4)}, v{vJ[jt]}, {srd(S_WS)}, s{sT0} offen offset:{part*1664 + jt*1024} sc1", f"w{k >> 1}")
    def stoff(k): return ((k - 8) >> 1)*16384 + ((k - 8) & 1)*1024
    sl = [8]
    def wstage():
        k = sl[0]
        if k >= 8 + NST: return
        sl[0] += 1
        u, part, x = k >> 2, (k >> 1) & 1, k & 1
        ep, jt = u >> 1, u & 1
        e(f"s_add_u32 m0, s{sSt}, {stoff(k)}")
        e(f"s_add_u32 s{sT0}, s{sMB2}, {(2*ep + x)*3328 + part*1664 + jt*1024}")
        A.vmem(f"buffer_load_dwordx4 v{vJ[jt]}, {srd(S_WS)}, s{sT0} offen sc1 lds", f"ws{k}")
    def early():
        for _ in range(NPS):
            if wl[0] < 6: wload()
            else: wstage()
    QB = [[AF + 4*i for i in range(8)], [AK, AK+4, AK+8, AK+12, U, U+4, ACCP, RAW+20]]
    def rd(s, i):
        if "anord" in X and i & 1: return
        tl, fi, ks = i >> 2, (i >> 1) & 1, i & 1
        f = 2*s + fi
        A.lds(f"ds_read_b128 {vr(QB[s & 1][i], 4)}, v{aE[ks][tl]} offset:{(f & 15)*4096}", f"e{s}_{i >> 1}")
    def mmi(s, i):
        if "anomm" in X:
            if not i & 1: A.ds_wait(f"e{s}_{i >> 1}")
            return
        tl, fi = i >> 2, (i >> 1) & 1
        d = DDS[s & 1] + fi*8 + tl*4
        if i & 1: mf16(d, WB + 4, QB[s & 1][i], d)
        else:
            A.ds_wait(f"e{s}_{i >> 1}")
            mf16(d, WB, QB[s & 1][i])
    def issue(s):
        if s + GAHEAD < 13:
            a_gm0(s + GAHEAD)
            a_gissue(s + GAHEAD)
    swq = []
    def take(lst, n):
        for _ in range(n):
            if lst: A.L.append(lst.pop(0))
    for s in range(G0, GAHEAD): a_gather(s)
    if GAHEAD < 13:
        for h in range(2): a_gaddr(GAHEAD, h)
    def flagcheck():
        cm("wave 0: every producer of this group's W-fragment image has signalled")
        A.vm_wait("fl")
        e(f"s_cmp_lg_u32 s{sW}, 0")
        e("s_cbranch_scc1 L_flok")
        lab("L_flp")
        e(f"v_and_b32 v{vFl}, 0x01000100, v{vFl}")
        e(f"v_cmp_ne_u32 vcc, 0x01000100, v{vFl}")
        e("s_cbranch_vccz L_flok")
        e("s_sleep 8")
        e(f"v_lshrrev_b32 v{vFl}, 2, v{vJ[0]}")
        e(f"buffer_load_dword v{vFl}, v{vFl}, {srd(S_DBG)}, 0 offen sc1")
        e("s_waitcnt vmcnt(0)")
        e("s_branch L_flp")
        lab("L_flok")
    swq = []
    def body(s):
        if EVEN:
            if s in (6, 10):
                with Cap() as cs: swaps((s >> 2) - 1, (0,)); swaps((s >> 2) - 1, (1,))
                swq.extend(cs.l)
            with Cap() as cf:
                if s >= 2:
                    packz(s - 2, 0); pack(s - 2, 0); pack(s - 2, 1); packz(s - 2, 1)
                if s + 1 + GAHEAD < 13:
                    for h in range(2): a_gaddr(s + 1 + GAHEAD, h)
                take(swq, 4 if s < 10 else 6)
                if s == 12:
                    for tl in range(2): e(f"v_add_u32 v{aC2[tl]}, 0x10000, v{aC[tl]}")
            fill = list(cf.l)
            i0 = EVEN - 1 if s % 2 == 0 else 0
            for i in range(8):
                if s: mmi(s - 1, i)
                rd(s, i)
                if i >= i0: take(fill, -(-len(fill) // (8 - i)))
            return
        if s % 2 == 0:
            with Cap() as cf:
                if s == 12:
                    for tl in range(2): e(f"v_add_u32 v{aC2[tl]}, 0x10000, v{aC[tl]}")
            fill = list(cf.l)
            for i in range(8):
                if s: mmi(s - 1, i)
                rd(s, i)
                if s == 12:
                    take(fill, 1)
                    if i == 6: packz(11, 0)
                    if i == 7: packz(11, 1)
            return
        with Cap() as cf:
            if s >= 3:
                packz(s - 2, 0); pack(s - 2, 0); pack(s - 2, 1); packz(s - 2, 1)
            for ss in (s, s + 1):
                if ss + GAHEAD < 13:
                    for h in range(2): a_gaddr(ss + GAHEAD, h)
            if s in (5, 9): swaps((s >> 2) - 1, (0,))
            if s in (7, 11): swaps((s >> 2) - 1, (1,))
        fill = list(cf.l)
        for i in range(8):
            mmi(s - 1, i)
            rd(s, i)
            if i < 6: take(fill, -(-len(fill) // (6 - i)))
            if i == 6:
                packz(s - 1, 0); pack(s - 1, 0)
            if i == 7: packz(s - 1, 1)
    if PRIO:
        e(f"s_cmp_lt_u32 s{sW}, 4")
        e("s_cbranch_scc1 L_prio")
        e("s_setprio 1")
        lab("L_prio")
    for s in range(13):
        cm(f"-- A step {s}")
        if s % 2 == 0:
            if s < 12 or FCHK == 12:
                if s == 12 or (s == 10 and FCHK != 12): A.vm_wait("g12")
                elif s & 2: A.vm_wait(f"g{4*(s >> 2) + 3}")
                else:
                    e(f"s_cmp_ge_u32 s{sW}, 4")
                    e(f"s_cbranch_scc1 L_nw{s}")
                    dn = A.vm_done
                    A.vm_wait(f"g{4*(s >> 2) + 3}")
                    A.vm_done = dn
                    lab(f"L_nw{s}")
                if s == FSIG: A.vm_wait("st")
                if s == FCHK: flagcheck()
                if s == 0: fs0()
                if FS == -2: fstamp(True)
                e("s_barrier")
                if FS == -2: fstamp(True)
                if s == 0: fs0()
            if s in (0, 4, 8, 12): stamp()
            if s == FCHK:
                e("s_mov_b64 exec, 0x1fff")
                A.vmem(f"buffer_load_dword v{vDum}, v{vPw}, {srd(S_WS)}, 0 offen sc1", "pf")
                e("s_mov_b64 exec, -1")
            body(s)
            issue(s)
            if s == 0 and LATE0: late_setup()
            if s == FSIG:
                cm("signal: this workgroup's fragments are stored (only wave 0 stays in range); pull them into L2")
                e(f"s_lshl_b32 s{sT0}, s{sHF}, 4")
                e(f"s_lshl_b32 s{sT0}, 0x100, s{sT0}")
                e(f"v_mov_b32 v{vFl}, s{sT0}")
                e(f"s_lshl_b32 s{sT0}, s{sW}, 6")
                e(f"s_add_u32 s{sT0}, s{sT0}, s{sRG}")
                e(f"s_lshl_b32 s{sT0}, s{sT0}, 2")
                e("s_mov_b64 exec, 1")
                A.vmem(f"buffer_atomic_or v{vFl}, off, {srd(S_DBG)}, s{sT0} sc1", "sig")
                e("s_mov_b64 exec, -1")
            if s >= FCHK and s < 12: early()
            if s == 2: se_frags()
            continue
        body(s)
        issue(s)
        if s == FLD:
            e(f"v_lshrrev_b32 v{vFl}, 2, v{vJ[0]}")
            e(f"s_lshl_b32 s{sT0}, s{sW}, 8")
            A.vmem(f"buffer_load_dword v{vFl}, v{vFl}, {srd(S_DBG)}, s{sT0} offen sc1", "fl")
        if s == PFAT: pfbatch()
        if s > FCHK: early()
        if s == 3: se_frags2()
        if s == 5: se_frags3()
        if s == 7:
            for r in aE[0] + aE[1]: e(f"v_add_u32 v{r}, 0x10000, v{r}")
        if not EVEN: pack(s - 1, 1)
    for i in range(8):
        mmi(12, i)
        if EVEN and i == 1: packz(11, 0)
        if EVEN and i == 3: packz(11, 1)
    SL = [[RAW + 16, RAW + 17]]
    def tailwork():
        pack(11, 0); pack(11, 1)
        while wl[0] < 8: wload()
        while sl[0] < 8 + NST: wstage()
        for tl in range(2):
            for el in range(8):
                e(f"v_cvt_pk_bf16_f32 v{xf(el, tl, 3)}, v{DD + tl*4 + (el & 1)}, v{DD + 8 + tl*4 + (el & 1)}")
            for fi in range(2):
                for r in range(2): e(f"v_mov_b32 v{LF[tl][fi][r]}, v{DD + fi*8 + tl*4 + r}")
        swaps(2)
        for tl in range(2):
            for p in range(2): e(f"v_mov_b32 v{UH + tl*16 + 14 + p}, 0")
    if PRIO == 1: e("s_setprio 0")
    e(f"s_cmp_ge_u32 s{sW}, 4")
    e("s_cbranch_scc1 L_nosenet")
    cm("waves 0..3: SENET first")
    sv = (list(A.vm), A.vm_done, wl[0], sl[0])
    e("s_mov_b64 exec, 0xffff")
    e(f"v_cvt_pk_bf16_f32 v{ZF + 3}, v{DD + 2}, 0")
    e("s_mov_b32 exec_lo, 0xffff0000")
    e(f"v_cvt_pk_bf16_f32 v{ZF + 3}, v{DD + 8 + 2}, 0")
    e("s_mov_b64 exec, -1")
    b = 228
    mf16(b, SE1F, ZF)
    e(f"v_mov_b32 v{b+20}, s{sC0}")
    e(f"v_cvt_pk_bf16_f32 v{b+8}, v{b+0}, v{b+1}")
    e(f"v_cvt_pk_bf16_f32 v{b+9}, v{b+2}, v{b+3}")
    for d in range(2):
        e(f"v_lshlrev_b32 v{b+2*d}, 16, v{b+8+d}")
        e(f"v_and_b32 v{b+2*d+1}, s{sMSK}, v{b+8+d}")
    ls = []
    for r in range(4):
        with Cap() as c: gelu(b + 4 + r, b + r, b + 12 + r, b + 20)
        ls.append(c.l)
    zipl(ls)
    e(f"v_cvt_pk_bf16_f32 v{b+10}, v{b+4}, v{b+5}")
    e(f"v_cvt_pk_bf16_f32 v{b+11}, v{b+6}, v{b+7}")
    e(f"v_mfma_f32_16x16x16_bf16 {vr(b+16,4)}, {vr(SE2F,2)}, {vr(b+10,2)}, 0")
    e(f"v_cvt_pk_bf16_f32 v{b+8}, v{b+16}, v{b+17}")
    e(f"v_cvt_pk_bf16_f32 v{b+9}, v{b+18}, v{b+19}")
    for d in range(2):
        e(f"v_lshlrev_b32 v{b+2*d}, 16, v{b+8+d}")
        e(f"v_and_b32 v{b+2*d+1}, s{sMSK}, v{b+8+d}")
    for r in range(4): e(f"v_mul_f32 v{b+r}, s{sNL}, v{b+r}")
    for r in range(4): e(f"v_exp_f32 v{b+r}, v{b+r}")
    for r in range(4): e(f"v_add_f32 v{b+r}, 1.0, v{b+r}")
    for r in range(4): e(f"v_rcp_f32 v{b+r}, v{b+r}")
    for r in range(4): e(f"v_cvt_pk_bf16_f32 v{b+4+r}, 0, v{b+r}")
    e(f"ds_write_b128 v{aAw}, {vr(b+4,4)}")
    e("s_waitcnt lgkmcnt(0)")
    stamp()
    e("s_barrier")
    tailwork()
    e("s_branch L_post")
    lab("L_nosenet")
    e("s_nop 7")
    A.vm, A.vm_done, wl[0], sl[0] = list(sv[0]), sv[1], sv[2], sv[3]
    tailwork()
    e("s_barrier")
    lab("L_post")
    A.ds_done = len(A.ds) - 1
    for tl in range(2):
        for u in range(2):
            A.lds(f"ds_read_b128 {vr(AJ + tl*8 + u*4, 4)}, v{aAr[tl]} offset:{u*16}", "ak")
    e(f"v_bfe_u32 v{XQ}, v0, 4, 2")
    e(f"v_lshlrev_b32 v{XQ}, 5, v{XQ}")
    for tl in range(2):
        e(f"v_sub_u32 v{aAr[tl]}, v{aAr[tl]}, v{XQ}")
        A.lds(f"ds_read2_b32 {vr(XQ + 4 + 2*tl, 2)}, v{aAr[tl]} offset0:6 offset1:14", "ak")
    def mms(u, part):
        ep = u >> 1
        tg = f"w{2*u + part}"
        if tg in A.vm: A.vm_wait(tg)
        if tg in A.ds: A.ds_wait(tg)
        for x in range(2):
            for tl in range(2):
                mf16(TS[u & 1][part*4 + x*2 + tl], RING[(4*u + 2*part + x) % 8], XQ + x*8 + tl*4 if part else xf(2*ep + x, tl, 0))
    def xq(ep):
        tmp = TS[0][4]
        for x in range(2):
            for tl in range(2):
                src = xf(2*ep + x, tl, 0)
                for qq in range(3):
                    e(f"v_dot2_f32_bf16 v{tmp + tl*6 + 2*qq}, v{src + qq}, v{AKL[tl][qq]}, 0")
                    e(f"v_dot2_f32_bf16 v{tmp + tl*6 + 2*qq + 1}, v{src + qq}, v{AJ + tl*8 + 2*qq + 1}, 0")
            for tl in range(2):
                dst = XQ + x*8 + tl*4
                if ep == 0: e(f"v_cvt_pk_bf16_f32 v{dst + 3}, v{LF[tl][0][x]}, v{LF[tl][1][x]}")
                for qq in range(3):
                    e(f"v_cvt_pk_bf16_f32 v{dst + qq}, v{tmp + tl*6 + 2*qq}, v{tmp + tl*6 + 2*qq + 1}")
    def fin(u):
        ep, jt = u >> 1, u & 1
        S_ = TS[u & 1]
        for tl in range(2):
            for x in range(2):
                p, q_, a = S_[x*2 + tl], S_[4 + x*2 + tl], AJ + tl*8 + 4*jt
                for r in range(3 if jt else 4): e(f"v_fmac_f32 v{p+r}, v{q_+r}, v{a+r}")
            for r in range(3 if jt else 4):
                e(f"v_cvt_pk_bf16_f32 v{UH + tl*16 + (4*jt + r)*2 + (ep & 1)}, v{S_[tl] + r}, v{S_[2 + tl] + r}")
    def cq(hf):
        for tl in range(2):
            for t in range(7):
                base = aC6[tl] if t == 6 else (aC2[tl] if t >= 4 else aC[tl])
                off = 0 if t == 6 else ((t >> 1) & 1)*32768 + (t & 1)*4096
                A.lds(f"ds_read_b64 {vr(XF + tl*16 + 2*t, 2)}, v{base} offset:{off + 8*hf}", "cq")
    def diag(hf):
        A.ds_wait("cq")
        for k in range(4):
            for tl in range(2):
                mf16(ACC[tl], UH + tl*16 + 4*k, XF + tl*16 + 4*k, ACC[tl] if (hf or k) else None)
    def weave(ml, fl):
        k = 0; nm = sum(1 for m in ml if "v_mfma" in m); i = 0
        for m in ml:
            A.L.append(m)
            if "v_mfma" in m:
                i += 1
                tgt = i * len(fl) // nm
                while k < tgt:
                    A.L.append(fl[k]); k += 1
    mms(0, 0)
    A.ds_wait("ak")
    for tl in range(2):
        for qq in range(3): e(f"v_lshrrev_b32 v{AKL[tl][qq]}, 16, v{AJ + tl*8 + 2*qq}")
        for fi in range(2):
            for r in range(2): e(f"v_mul_f32 v{LF[tl][fi][r]}, v{LF[tl][fi][r]}, v{XQ + 4 + 2*tl + fi}")
    for u in range(8):
        ep, jt = u >> 1, u & 1
        cm(f"-- block ep {ep} jt {jt}")
        if jt == 0:
            stamp()
            xq(ep)
        with Cap() as c1:
            if u: mms(u, 0)
            mms(u, 1)
        with Cap() as c2:
            if u: fin(u - 1)
        weave(c1.l, c2.l)
        for _ in range(4): wload()
        if u == 3: cq(0)
        if u == 4: diag(0)
        if u == 5: cq(1)
    if STAMPS: e(f"v_mov_b32 v{vTag2}, v{vPo}")
    e(f"s_lshl_b32 s{sT0}, s{sW}, 28")
    e(f"buffer_load_dwordx2 {vr(vPo,2)}, v{vHo}, {srd(S_WS)}, s{sT0} offen sc1")
    fin(7)
    diag(1)
    stamp()
    e(f"s_and_b32 s{sT0}, s{sMB}, 0x400")
    e(f"v_add_u32 v{aRed}, s{sT0}, v{aRed}")
    e(f"v_xor_b32 v{aAr[0]}, 0x400, v{aRed}")
    e(f"s_cmp_lg_u32 s{sW}, 0")
    e(f"ds_write_b128 v{aRed}, {vr(ACC[0], 4)}")
    e(f"ds_write_b128 v{aAr[0]}, {vr(ACC[1], 4)}")
    e("s_cbranch_scc0 L_w0")
    e("s_waitcnt lgkmcnt(0)")
    e("s_barrier")
    e("s_branch L_end")
    lab("L_w0")
    P2 = 40
    e(f"buffer_load_dwordx2 {vr(P2,2)}, v{vHo}, {srd(S_WS)}, 0 offen sc1")
    e(f"v_and_b32 v1, 31, v0")
    e(f"v_and_b32 v6, 15, v0")
    e(f"v_lshrrev_b32 v7, 2, v6")
    e(f"v_lshl_add_u32 v7, v7, 4, v6")
    e(f"v_lshlrev_b32 v7, 4, v7")
    e(f"v_and_b32 v6, 3, v0")
    e(f"v_lshl_add_u32 v7, v6, 2, v7")
    e(f"v_bfe_u32 v6, v0, 4, 1")
    e(f"v_lshl_add_u32 v7, v6, 10, v7")
    e(f"v_bfe_u32 v6, v0, 5, 1")
    e(f"v_lshl_add_u32 v7, v6, 13, v7")
    e(f"v_add_u32 v7, {R2}, v7")
    e(f"s_lshl1_add_u32 s{sT0}, s{sRG}, s{sHF}")
    e(f"s_lshl_b32 s{sT0}, s{sT0}, 6")
    e(f"v_lshlrev_b32 v9, 1, v1")
    e(f"s_lshl_b32 s{sT1}, s{sRG}, 2")
    cm("wait for both deep partials: a lane is done when its tag differs from the snapshot or its producer's arrival flag is set")
    e(f"s_mov_b32 s{sT3}, 0")
    lab("L_poll")
    e("s_waitcnt vmcnt(1)")
    e(f"v_cmp_eq_u32 vcc, v{vPo+1}, v{vTag}")
    e("s_cbranch_vccz L_got")
    if "noB" in X: e("s_branch L_got")
    e(f"buffer_load_dwordx2 {vr(vPo,2)}, v{vHo}, {srd(S_WS)}, 0 offen sc1")
    e("s_waitcnt vmcnt(1)")
    e(f"v_cmp_eq_u32 vcc, v{P2+1}, v{vTag}")
    e("s_cbranch_vccz L_got2")
    e(f"buffer_load_dwordx2 {vr(P2,2)}, v{vHo}, {srd(S_WS)}, 0 offen sc1")
    e(f"s_add_u32 s{sT3}, s{sT3}, 1")
    e(f"s_and_b32 s{sT2}, s{sT3}, 15")
    e("s_cbranch_scc1 L_poll")
    cm("now and then: the write-through copy (producer on another die), and the flags (a partial was already there at the snapshot)")
    e("s_mov_b64 exec, 1")
    e(f"buffer_load_dword v{vPo+3}, off, {srd(S_DBG)}, s{sT1} sc1")
    e("s_waitcnt vmcnt(0)")
    e(f"v_readfirstlane_b32 s{sT2}, v{vPo+3}")
    e("s_mov_b64 exec, -1")
    e(f"s_bitcmp1_b32 s{sT2}, 1")
    e("s_cselect_b32 s6, 0, -1")
    e(f"s_bitcmp1_b32 s{sT2}, 17")
    e("s_cselect_b32 s7, 0, -1")
    e(f"s_mov_b32 s{sT2}, 0x10000")
    e(f"buffer_load_dwordx2 {vr(vPo,2)}, v{vHo}, {srd(S_WS)}, s{sT2} offen sc1")
    e("s_waitcnt vmcnt(0)")
    e(f"v_cmp_eq_u32 vcc, v{vPo+1}, v{vTag2}")
    e("s_and_b64 vcc, vcc, s[6:7]")
    e("s_cbranch_scc0 L_got")
    e(f"buffer_load_dwordx2 {vr(vPo,2)}, v{vHo}, {srd(S_WS)}, 0 offen sc1")
    e(f"buffer_load_dwordx2 {vr(P2,2)}, v{vHo}, {srd(S_WS)}, 0 offen sc1")
    e("s_branch L_poll")
    lab("L_got")
    e(f"v_mov_b32 v8, v{vPo}")
    e("s_branch L_got3")
    lab("L_got2")
    e(f"v_mov_b32 v8, v{P2}")
    lab("L_got3")
    stamp()
    e("s_waitcnt lgkmcnt(0)")
    e("s_barrier")
    for k in range(4): e(f"ds_read_b32 v{32 + k}, v7 offset:{2048*k}")
    e("s_waitcnt lgkmcnt(2)")
    e("v_add_f32 v32, v32, v33")
    e("v_add_f32 v32, v32, v8")
    e("s_waitcnt lgkmcnt(0)")
    e("v_add_f32 v34, v34, v35")
    e("v_add_f32 v32, v32, v34")
    e("v_mov_b32 v33, v32")
    e("v_permlane32_swap_b32 v32, v33")
    e("v_add_f32 v4, v32, v33")
    e("v_cvt_pk_bf16_f32 v4, v4, v4")
    e("s_mov_b32 exec_hi, 0")
    e(f"buffer_store_short v4, v9, {srd(S_OUT)}, s{sT0} offen")
    if STAMPS:
        e("s_mov_b64 exec, -1")
    e("s_branch L_end")

NWS, NGS = 8, 4
WBASE, GBASE = 0, NWS*16384
B_RED = 4*16384
LEAD = P("LEAD", 8)

BST = {}
vW, vS, vIa, vGt = 1, 2, [4, 8], [12, 13]
def b_head():
    lab("L_B")
    cm("===== role B")
    if "noB" in X: e("s_branch L_exit")
    e(f"s_cmp_lt_u32 s{sW}, 4")
    e("s_cbranch_scc1 L_Bc")
    A.reset(); nst[0] = 0
    t0, t1, t2 = 14, 15, 16
    e("s_setprio 3")
    e(f"v_bfe_u32 v{t0}, v0, 4, 4")
    e(f"v_lshlrev_b32 v{t0}, 9, v{t0}")
    e(f"v_bfe_u32 v{t1}, v0, 4, 2")
    e(f"v_lshlrev_b32 v{t1}, 2, v{t1}")
    e(f"s_and_b32 s{sT0}, s{sW}, 2")
    e(f"v_xor_b32 v{t1}, v{t1}, v0")
    e(f"v_xor_b32 v{t1}, s{sT0}, v{t1}")
    e(f"v_and_b32 v{t1}, 15, v{t1}")
    e(f"v_lshl_add_u32 v{t0}, v{t1}, 4, v{t0}")
    e(f"s_lshl_b32 s{sT0}, s{sHF}, 8")
    e(f"v_add_u32 v{vW}, s{sT0}, v{t0}")
    e(f"s_and_b32 s{sMB}, s{sW}, 3")
    e(f"s_lshl_b32 s{sMB}, s{sMB}, 10")
    e(f"v_bfe_u32 v{t0}, v0, 3, 5")
    e(f"v_mul_u32_u24 v{t0}, 104, v{t0}")
    e(f"v_and_b32 v{t1}, 7, v0")
    e(f"v_lshl_add_u32 v{t0}, v{t1}, 4, v{t0}")
    e(f"s_mul_i32 s{sT1}, s{sRG}, {64*104}")
    assert LEAD == 8
    e(f"s_lshr_b32 s{sT2}, s2, 5")
    e(f"s_lshl_b32 s{sT0}, s{sT2}, 15")
    e(f"s_mov_b32 s{sT3}, 0")
    if BPF:
        e(f"v_bfe_u32 v{t1}, v0, 1, 4")
        e(f"v_bfe_u32 v{t2}, v0, 6, 2")
        e(f"v_lshl_add_u32 v{t1}, v{t2}, 4, v{t1}")
        e(f"v_lshlrev_b32 v{t1}, 9, v{t1}")
        e(f"v_and_b32 v{t2}, 1, v0")
        e(f"v_lshl_add_u32 v{t1}, v{t2}, 7, v{t1}")
        e(f"s_lshl_b32 s{sT2}, s{sHF}, 8")
        e(f"s_add_u32 s{sT2}, s{sT2}, s{sT0}")
        e(f"s_add_u32 s{sT2}, s{sT2}, {8*32768}")
    e("s_waitcnt lgkmcnt(0)")
    stamp()
    A.vmem(f"buffer_load_dwordx4 {vr(vIa[0],4)}, v{t0}, {srd(S_IDX)}, s{sT1} offen", "idx")
    A.vmem(f"buffer_load_dwordx4 {vr(vIa[1],4)}, v{t0}, {srd(S_IDX)}, s{sT1} offen offset:{32*104}", "idx")
    if BPF:
        e("s_mov_b32 exec_hi, 0")
        A.vmem(f"buffer_load_dword v{t2}, v{t1}, {srd(S_W1)}, s{sT2} offen", "pf")
        e("s_mov_b64 exec, -1")
    lab("L_lead")
    e(f"s_lshr_b32 s{sT2}, s{sT0}, 1")
    e(f"s_add_u32 m0, s{sT2}, s{sMB}")
    e(f"s_add_u32 s{sT3}, s{sT3}, 1")
    for n in range(4):
        e(f"buffer_load_dwordx4 v{vW}, {srd(S_W1)}, s{sT0} offen lds")
        if n < 3: e("s_addk_i32 m0, 0x1000")
        e(f"s_addk_i32 s{sT0}, 0x2000")
    e(f"s_and_b32 s{sT0}, s{sT0}, {8*32768 - 1}")
    e(f"s_cmp_lt_u32 s{sT3}, 8")
    e("s_cbranch_scc1 L_lead")
    for k in range(4*LEAD - LEAD): A.vm.append("lead")
    for f in range(LEAD): A.vm.append(f"w{f}")
    e("s_branch L_Bl2")
    BST["sv"] = (A.vm, A.ds, A.vm_done, A.ds_done, nst[0])

def role_b():
    A.vm, A.ds, A.vm_done, A.ds_done, nst[0] = BST["sv"]
    lab("L_Bl2")
    t1 = 15
    e(f"v_lshrrev_b32 v{t1}, 4, v0")
    e(f"v_xor_b32 v{t1}, v{t1}, v0")
    e(f"v_and_b32 v{t1}, 7, v{t1}")
    e(f"v_lshlrev_b32 v{vS}, 4, v{t1}")
    if STAMPS:
        rest_srds(); rest_srds2()
    if TOUCH == 2:
        for k in (4, 5, 6, 7):
            e(f"s_load_dword s{sT3}, s[{KT+2*k}:{KT+2*k+1}], 0")
    wq = [(f, n) for f in range(LEAD, 26) for n in range(4)]
    def wpiece():
        f, n = wq.pop(0)
        e(f"s_add_u32 m0, s{sMB}, {WBASE + (f % NWS)*16384 + n*4096}")
        e(f"s_mov_b32 s{sT0}, {f*32768 + n*8192}")
        A.vmem(f"buffer_load_dwordx4 v{vW}, {srd(S_W1)}, s{sT0} offen lds", f"w{f}")
    def gpiece(f):
        c = f >> 2
        for u in range(2):
            e(f"v_add_u32_dpp v{vGt[u]}, v{vIa[u] + (f & 3)}, v{vS} row_newbcast:{c} row_mask:0xf bank_mask:0x3")
        e(f"s_add_u32 m0, s{sMB}, {GBASE + (f % NGS)*8192}")
        for u in range(2):
            e(f"v_add_u32_dpp v{vGt[u]}, v{vIa[u] + (f & 3)}, v{vS} row_newbcast:{8+c} row_mask:0xf bank_mask:0xc")
        A.vmem(f"buffer_load_dwordx4 v{vGt[0]}, {srd(S_TAB)}, 0 offen lds", f"g{f}")
        e("s_addk_i32 m0, 0x1000")
        A.vmem(f"buffer_load_dwordx4 v{vGt[1]}, {srd(S_TAB)}, 0 offen lds", f"g{f}")
    A.vm_wait("idx")
    for u in range(2):
        for d in range(4): e(f"v_lshlrev_b32 v{vIa[u]+d}, 7, v{vIa[u]+d}")
    stamp()
    for f in range(NGS): gpiece(f)
    tot = len(wq); done = 0
    nsteps = 26 - NGS
    for f in range(26):
        A.vm_wait(f"g{f}"); A.vm_wait(f"w{f}")
        e("s_barrier")
        if f in (0, 6, 12, 18, 25): stamp()
        if f >= 1 and f - 1 + NGS < 26:
            tgt = f * tot // nsteps
            while done < tgt and wq and wq[0][0] <= f - 1 + NWS:
                wpiece(); done += 1
            gpiece(f - 1 + NGS)
    assert not wq
    e("s_branch L_end")
    lab("L_Bc")
    A.reset(); nst[0] = 0
    aEm = [1, 2]; aW = [[3, 4], [5, 6]]
    W2 = 176; ACC = 32
    EF = lambda st, ks, rt: 64 + st*32 + ks*16 + rt*4
    WFr = lambda st, ks, ct: 128 + st*16 + ks*8 + ct*4
    t0, t1, t2, t3 = 7, 9, 10, 11
    rest_srds()
    consts()
    e(f"v_and_b32 v{t0}, 15, v0")
    e(f"v_bfe_u32 v{t1}, v0, 4, 2")
    e(f"v_bfe_u32 v{t2}, v0, 1, 3")
    e(f"v_xor_b32 v{t2}, v{t2}, v{t1}")
    e(f"v_lshlrev_b32 v{t2}, 4, v{t2}")
    e(f"v_lshl_add_u32 v{t2}, v{t0}, 7, v{t2}")
    e(f"v_add_u32 v{aEm[0]}, {GBASE}, v{t2}")
    e(f"v_xor_b32 v{aEm[1]}, 64, v{aEm[0]}")
    e(f"v_bfe_u32 v{t0}, v0, 2, 2")
    e(f"v_lshl_add_u32 v{t2}, v{t1}, 3, v{t0}")
    e(f"v_lshlrev_b32 v{t2}, 8, v{t2}")
    e(f"v_xor_b32 v{t0}, s{sW}, v{t0}")
    e(f"v_lshl_add_u32 v{t2}, v{t0}, 6, v{t2}")
    e(f"v_bfe_u32 v{t0}, v0, 4, 1")
    e(f"v_lshl_add_u32 v{t2}, v{t0}, 5, v{t2}")
    e(f"v_and_b32 v{t0}, 3, v0")
    e(f"v_lshl_add_u32 v{aW[0][0]}, v{t0}, 3, v{t2}")
    e(f"v_xor_b32 v{aW[0][1]}, 32, v{aW[0][0]}")
    for ct in range(2): e(f"v_add_u32 v{aW[1][ct]}, 0x10000, v{aW[0][ct]}")
    e(f"s_lshl_b32 s{sT0}, s{sHF}, 8")
    e(f"s_lshl_b32 s{sT1}, s{sW}, 6")
    e(f"s_add_u32 s{sT0}, s{sT0}, s{sT1}")
    e(f"v_lshlrev_b32 v{t1}, 3, v{t1}")
    e("s_waitcnt lgkmcnt(0)")
    rest_srds2()
    e(f"s_mov_b32 s{sT2}, s{sT0}")
    if NPB:
        cm("weight prefetch into L2: 16 lines per wave and block")
        e(f"s_lshr_b32 s{sT0}, s2, 5")
        e(f"s_lshl1_add_u32 s{sT0}, s{sT0}, s{sHF}")
        e(f"s_lshl2_add_u32 s{sT0}, s{sT0}, s{sW}")
        e(f"s_lshl_b32 s{sT0}, s{sT0}, 11")
        e(f"v_and_b32 v{t0}, 15, v0")
        e(f"v_lshl_add_u32 v{t0}, v{t0}, 7, s{sT0}")
        e(f"v_bfe_u32 v{t2}, v0, 4, 2")
        e(f"v_lshl_add_u32 v{t0}, v{t2}, 17, v{t0}")
        nw1 = min(NPB, 6 - NPF0)
        for b0 in range(0, nw1, 4):
            n = min(4, nw1 - b0)
            if n < 4: e(f"s_mov_b64 exec, {hex((1 << (16*n)) - 1) if n < 3 else '-1'}")
            if n == 3: e("s_mov_b32 exec_hi, 0xffff")
            if n == 2: e("s_mov_b32 exec_lo, -1"); e("s_mov_b32 exec_hi, 0")
            e(f"s_mov_b32 s{sT0}, {65536 + (NPF0 + b0)*131072}")
            e(f"buffer_load_dword v{t3}, v{t0}, {srd(S_W1)}, s{sT0} offen")
            e("s_mov_b64 exec, -1")
    for i in range(32): e(f"v_mov_b32 v{ACC+i}, 0")
    C0 = 12
    e(f"v_mov_b32 v{C0}, s{sC0}"); e(f"v_mov_b32 v{C0+1}, s{sC0}")
    e(f"v_mov_b32 v{C0+2}, s{sC1}"); e(f"v_mov_b32 v{C0+3}, s{sC1}")
    W2R = 160
    vHo, vBt, vBt2 = 172, 175, 193
    e(f"v_lshlrev_b32 v{vHo}, 3, v0")
    e(f"s_lshl1_add_u32 s{sT3}, s{sRG}, s{sHF}")
    e(f"s_lshl_b32 s{sT3}, s{sT3}, 9")
    e(f"s_lshl_b32 s{sT0}, s{sW}, 28")
    e(f"s_add_u32 s{sT3}, s{sT3}, s{sT0}")
    def late_loads():
        for q in range(2):
            A.vmem(f"buffer_load_dwordx2 {vr(W2R + 2*q, 2)}, v{t1}, {srd(S_W2)}, s{sT2} offen offset:{32*q}", "w2")
        A.vmem(f"buffer_load_dword v{vBt}, v{vHo}, {srd(S_WS)}, s{sT3} offen offset:4 sc1", "tag")
        e(f"s_add_u32 s{sMB}, s{sT3}, 0x10000")
        A.vmem(f"buffer_load_dword v{vBt2}, v{vHo}, {srd(S_WS)}, s{sMB} offen offset:4 sc1", "tag")
        e(f"s_lshl_b32 s{sT0}, s{sW}, 6")
        e(f"s_add_u32 s{sT0}, s{sT0}, s{sRG}")
        e(f"s_lshl_b32 s{sT0}, s{sT0}, 2")
        e("s_mov_b64 exec, 1")
        A.vmem(f"buffer_load_dword v{vHo+1}, off, {srd(S_DBG)}, s{sT0} sc1", "afl")
        e("s_mov_b64 exec, -1")
    def w2_unpack():
        A.vm_wait("w2")
        for d in range(4):
            e(f"v_lshlrev_b32 v{W2 + 2*d}, 16, v{W2R + d}")
            e(f"v_and_b32 v{W2 + 2*d + 1}, s{sMSK}, v{W2R + d}")
    stamp()
    def rdl(f, ks):
        st = f & 1; ws = f % NWS
        out = []
        def w(ct, u): out.append((f"ds_read_b64_tr_b16 {vr(WFr(st, ks, ct) + 2*u, 2)}, v{aW[ws >> 2][ct]} offset:{(ws & 3)*16384 + ks*8192 + u*1024}", f"r{f}_{ks}a"))
        def em(rt, tag): out.append((f"ds_read_b128 {vr(EF(st, ks, rt), 4)}, v{aEm[ks]} offset:{(f % NGS)*8192 + rt*2048}", tag))
        w(0, 0); w(0, 1); w(1, 0); w(1, 1); em(0, f"r{f}_{ks}a"); em(1, f"r{f}_{ks}b"); em(2, f"r{f}_{ks}c"); em(3, f"r{f}_{ks}d")
        return out
    def mm1(f, ks, rt, ct):
        st = f & 1
        if "bnomm" in X: return
        if "snake" in X and rt & 1: ct ^= 1
        if "rtin" in X:
            k_ = rt*2 + ct; rt, ct = (k_ & 3) if k_ < 4 else 3 - (k_ & 3), k_ >> 2
        d = ACC + rt*8 + ct*4
        if "swapab" in X: mf16(d, EF(st, ks, rt), WFr(st, ks, ct), d)
        else: mf16(d, WFr(st, ks, ct), EF(st, ks, rt), d)
    for f in range(26):
        cm(f"-- B step {f}")
        e("s_barrier")
        if f in (0, 6, 12, 18, 25): stamp()
        if "bidle" in X:
            if f == 23: late_loads()
            continue
        r0, r1 = rdl(f, 0), rdl(f, 1)
        for k in range(8):
            A.lds(*r0[k])
            if k >= 4 and f: mm1(f - 1, 1, (k - 4) >> 1, k & 1)
        for k in range(4):
            if f: mm1(f - 1, 1, 2 + (k >> 1), k & 1)
            A.lds(*r1[k])
        for k in range(8):
            if "rtin" in X:
                if k < 4: A.ds_wait(f"r{f}_0" + "abcd"[k])
            elif not k & 1: A.ds_wait(f"r{f}_0" + "abcd"[k >> 1])
            mm1(f, 0, k >> 1, k & 1)
            if k < 4: A.lds(*r1[4 + k])
        if f == 23: late_loads()
        A.ds_all()
    for k in range(8): mm1(25, 1, k >> 1, k & 1)
    w2_unpack()
    stamp()
    S = 164
    TT = 64
    for hf in range(2):
        ls = []
        for p in range(8):
            rt = 2*hf + (p >> 2); pp = p & 3
            x = ACC + rt*8 + 2*pp; t = TT + 2*p
            with Cap() as c:
                e(f"v_pk_mul_f32 {vr(t,2)}, {vr(x,2)}, {vr(x,2)}")
                e(f"v_pk_fma_f32 {vr(t,2)}, {vr(t,2)}, {vr(C0+2,2)}, {vr(C0,2)}")
                e(f"v_pk_mul_f32 {vr(t,2)}, {vr(t,2)}, {vr(x,2)}")
                e(f"v_exp_f32 v{t}, v{t}")
                e(f"v_exp_f32 v{t+1}, v{t+1}")
                e(f"v_pk_mul_f32 {vr(x,2)}, {vr(x,2)}, {vr(W2 + 2*pp,2)}")
                e(f"v_pk_add_f32 {vr(t,2)}, {vr(t,2)}, 1.0 op_sel_hi:[1,0]")
                e(f"v_rcp_f32 v{t}, v{t}")
                e(f"v_rcp_f32 v{t+1}, v{t+1}")
                if pp == 0: e(f"v_pk_mul_f32 {vr(S + 2*rt,2)}, {vr(x,2)}, {vr(t,2)}")
                else: e(f"v_pk_fma_f32 {vr(S + 2*rt,2)}, {vr(x,2)}, {vr(t,2)}, {vr(S + 2*rt,2)}")
            ls.append(c.l)
        zipl(ls)
    for rt in range(4): e(f"v_add_f32 v{S + 2*rt}, v{S + 2*rt}, v{S + 2*rt + 1}")
    e(f"v_lshlrev_b32 v1, 2, v0")
    e(f"v_add_u32 v1, {B_RED}, v1")
    e(f"v_permlane32_swap_b32 v{S}, v{S+4}")
    e(f"v_permlane32_swap_b32 v{S+2}, v{S+6}")
    e(f"v_add_f32 v{S}, v{S}, v{S+4}")
    e(f"v_add_f32 v{S+2}, v{S+2}, v{S+6}")
    e(f"v_permlane16_swap_b32 v{S}, v{S+2}")
    e(f"v_add_f32 v{S}, v{S}, v{S+2}")
    e(f"ds_write_b32 v1, v{S}")
    e("s_waitcnt lgkmcnt(0)")
    e("s_barrier")
    stamp()
    e(f"s_cmp_lg_u32 s{sW}, 0")
    e("s_cbranch_scc1 L_end")
    for k in range(1, 4): e(f"ds_read_b32 v{16+k}, v1 offset:{256*k}")
    e(f"s_lshl_b32 s{sT1}, s{sRG}, 2")
    e(f"s_lshl_b32 s{sT2}, s{sHF}, 4")
    e(f"s_lshl_b32 s{sT2}, 2, s{sT2}")
    e(f"v_mov_b32 v6, s{sT2}")
    e("s_waitcnt vmcnt(0) lgkmcnt(0)")
    e(f"v_add_u32 v{vBt}, 1, v{vBt}")
    e(f"v_add_u32 v{vBt2}, 1, v{vBt2}")
    e(f"v_add_f32 v{S}, v{S}, v17")
    e(f"v_add_f32 v18, v18, v19")
    e(f"v_add_f32 v{vBt-1}, v{S}, v18")
    e(f"buffer_store_dwordx2 {vr(vBt-1,2)}, v{vHo}, {srd(S_WS)}, s{sT3} offen")
    e(f"v_mov_b32 v{vBt2-1}, v{vBt-1}")
    e(f"buffer_store_dwordx2 {vr(vBt2-1,2)}, v{vHo}, {srd(S_WS)}, s{sMB} offen sc1")
    e(f"v_readfirstlane_b32 s{sT0}, v{vHo+1}")
    e(f"s_and_b32 s{sT0}, s{sT0}, 0x01000100")
    e(f"s_cmp_eq_u32 s{sT0}, 0x01000100")
    e("s_cbranch_scc1 L_end")
    e("s_waitcnt vmcnt(0)")
    e("s_mov_b64 exec, 1")
    e(f"buffer_atomic_or v6, off, {srd(S_DBG)}, s{sT1} sc1")
    if STAMPS: e("s_mov_b64 exec, -1")

def fin():
    lab("L_end")
    if STAMPS:
        e("s_waitcnt vmcnt(0)")
        e("s_memtime s[100:101]")
        e("s_memrealtime s[72:73]")
        e("s_waitcnt lgkmcnt(0)")
        e(f"v_writelane_b32 v{VST[0]}, s4, 0")
        e(f"v_writelane_b32 v{VST[0]}, s70, 32")
        e(f"v_writelane_b32 v{VST[0]}, s100, 25")
        e(f"v_writelane_b32 v{VST[0]}, s72, 57")
        e(f"s_lshl3_add_u32 s{sT0}, s2, s{sW}")
        e(f"s_lshl_b32 s{sT0}, s{sT0}, 8")
        e(f"s_add_u32 s{sT0}, s{sT0}, 0x400000")
        e("v_and_b32 v0, 63, v0")
        e("v_lshlrev_b32 v0, 2, v0")
        e(f"buffer_store_dword v{VST[0]}, v0, {srd(S_WS)}, s{sT0} offen")
    lab("L_exit")
    e("s_endpgm")
    lab("L_codeend")

def main():
    A.raw("; Kernarg: in0 idx, in1 table, in2 se_w1, in3 se_w2, in4 w_bi, in5 w_cross, in6 w_deep1, in7 w_deep2, out, debug, ws")
    A.raw(f"; @launch grid=(256,1,1) block=(512,1,1) lds={LDS_TOTAL}")
    for t in ['.amdgcn_target "amdgcn-amd-amdhsa--gfx950"', ".text", f".globl {KN}", ".p2align 12", f".type {KN},@function", f"{KN}:"]: A.raw(t)
    entry()
    role_a()
    role_b()
    fin()
    for t in ['.section .rodata,"a"', ".p2align 6", f".amdhsa_kernel {KN}", "  .amdhsa_next_free_vgpr 256", "  .amdhsa_next_free_sgpr 102",
              "  .amdhsa_accum_offset 256", "  .amdhsa_group_segment_fixed_size 0", "  .amdhsa_kernarg_size 88", "  .amdhsa_user_sgpr_count 2",
              "  .amdhsa_user_sgpr_kernarg_segment_ptr 1", "  .amdhsa_system_sgpr_workgroup_id_x 1", ".end_amdhsa_kernel"]: A.raw(t)
    if "nodot" in X:
        import re
        A.L = [re.sub(r"v_dot2c?_f32_bf16 (v\d+), (v\d+), (v\d+).*", r"v_cvt_pk_bf16_f32 \1, \2, \3", x) for x in A.L]
    for fl in ("sc1", "sc0", "nt"):
        if "bw" + fl in X: A.L = [x.replace(" offen lds", f" offen {fl} lds") if f"v{vW}, {srd(S_W1)}" in x else x for x in A.L]
        if "bg" + fl in X: A.L = [x.replace(" offen lds", f" offen {fl} lds") if (f"v12, {srd(S_TAB)}" in x or f"v13, {srd(S_TAB)}" in x) else x for x in A.L]
    out = autonop([x for x in A.L if x is not None])
    open(sys.argv[1], "w").write("\n".join(out) + "\n")
main()
```

```python
import re, struct

class Asm:
    def __init__(s):
        s.L = []
        s.vm = []
        s.ds = []
        s.vm_done = -1
        s.ds_done = -1
        s.alias = {}
    def e(s, t): s.L.append("    " + t)
    def lab(s, t): s.L.append(t + ":")
    def cm(s, t): s.L.append("    ; " + t)
    def raw(s, t): s.L.append(t)
    def reset(s):
        s.vm = []; s.ds = []; s.vm_done = -1; s.ds_done = -1
    def vmem(s, t, tag):
        s.e(t); s.vm.append(tag)
    def lds(s, t, tag="x"):
        if len(s.ds) - 1 - s.ds_done >= 15:
            s.ds_done = len(s.ds) - 1 - 11
            s.e("s_waitcnt lgkmcnt(11)")
        s.e(t); s.ds.append(tag)
        assert len(s.ds) - 1 - s.ds_done <= 15, "more than 15 LDS ops outstanding: " + t
    def vm_wait(s, tag):
        last = max(i for i, t in enumerate(s.vm) if t == tag)
        if last <= s.vm_done: return
        n = sum(1 for t in s.vm[last+1:] if not t.startswith("o:"))
        assert n <= 63
        s.vm_done = last
        s.e(f"s_waitcnt vmcnt({n})")
    def vm_count(s, tag, old):
        last = max(i for i, t in enumerate(s.vm) if t == tag)
        return sum(1 for t in s.vm[last+1:] if old or not t.startswith("o:"))
    def vm_all(s):
        s.vm_done = len(s.vm) - 1
        s.e("s_waitcnt vmcnt(0)")
    def ds_wait(s, tag):
        last = max(i for i, t in enumerate(s.ds) if t == tag or t == s.alias.get(tag))
        if last <= s.ds_done: return
        n = len(s.ds) - 1 - last
        s.ds_done = last
        s.e(f"s_waitcnt lgkmcnt({n})")
    def ds_all(s):
        s.ds_done = len(s.ds) - 1
        s.e("s_waitcnt lgkmcnt(0)")

def vr(b, n): return f"v[{b}:{b+n-1}]" if n > 1 else f"v{b}"
def sr(b, n): return f"s[{b}:{b+n-1}]" if n > 1 else f"s{b}"
def fbits(x): return "0x%08x" % struct.unpack("<I", struct.pack("<f", x))[0]

_tok = re.compile(r"^(-?)(abs\()?([vsa])(?:\[(\d+):(\d+)\]|(\d+))\)?$")
def regs(op):
    op = op.strip()
    if op == "vcc": return {("s", 106), ("s", 107)}
    if op == "vcc_lo": return {("s", 106)}
    if op == "exec": return {("s", 126), ("s", 127)}
    if op == "m0": return {("s", 124)}
    m = _tok.match(op)
    if not m: return set()
    k = m.group(3)
    if m.group(4): return {(k, i) for i in range(int(m.group(4)), int(m.group(5)) + 1)}
    return {(k, int(m.group(6)))}

TRANS = ("v_exp_f32", "v_log_f32", "v_rcp_f32", "v_rsq_f32", "v_sqrt_f32", "v_sin_f32", "v_cos_f32")
class I:
    def __init__(s, line):
        s.line = line
        t = line.strip().split(";")[0].strip()
        p = t.split(None, 1)
        s.op = p[0]
        rest = p[1] if len(p) > 1 else ""
        rest = re.sub(r"\s[a-z_]+:\[[^\]]*\]", "", rest)
        ops = [x.strip() for x in rest.split(",")] if rest else []
        if ops:
            last = ops[-1].split()
            s.mods = last[1:]; ops[-1] = last[0]
        else: s.mods = []
        s.ops = ops
        op = s.op
        s.mfma = op.startswith("v_mfma")
        s.valu = op.startswith("v_") and not s.mfma
        s.dot = op.startswith("v_dot")
        s.trans = op.replace("_e32", "").replace("_e64", "") in TRANS
        s.dpp = op.endswith("_dpp")
        s.perml = op.startswith("v_permlane")
        s.rdlane = op.startswith("v_readlane") or op.startswith("v_readfirstlane")
        s.vmem = op.startswith("buffer_") or op.startswith("global_")
        s.dma = s.vmem and ("lds" in s.mods or "_lds_" in op)
        s.dsop = op.startswith("ds_")
        s.salu = op.startswith("s_")
        s.w = set(); s.r = set(); s.srcC = set(); s.srcAB = set()
        R = [regs(x) for x in ops]
        if s.mfma:
            s.w = R[0]; s.srcAB = R[1] | R[2]; s.srcC = R[3]; s.r = s.srcAB | s.srcC
            s.passes = 8 if "32x32" in op else 4
        elif s.valu:
            if s.perml or op.startswith("v_swap"):
                s.w = R[0] | R[1]; s.r = R[0] | R[1]
            else:
                s.w = R[0]
                for x in R[1:]: s.r |= x
                if op.startswith("v_fmac") or op.startswith("v_dot2c") or s.dpp or op.startswith("v_writelane"): s.r |= R[0]
                if op.startswith(("v_add_co", "v_sub_co", "v_addc_co")): s.w |= R[1]
        elif s.dsop:
            if op.startswith(("ds_read", "ds_bpermute", "ds_swizzle", "ds_permute")):
                s.w = R[0]
                for x in R[1:]: s.r |= x
            else:
                for x in R: s.r |= x
        elif s.vmem:
            if "_load" in op and not s.dma:
                s.w = R[0]
                for x in R[1:]: s.r |= x
            else:
                for x in R: s.r |= x
                if "atomic" in op and "sc0" in s.mods: s.w = R[0]
            if s.dma: s.r |= {("s", 124)}
            s.wide = ("store_dwordx3" in op or "store_dwordx4" in op or "cmpswap_x2" in op)
        elif s.salu:
            if op.startswith(("s_cmp", "s_cbranch", "s_branch", "s_waitcnt", "s_barrier", "s_nop", "s_endpgm", "s_setprio", "s_sleep", "s_bitcmp")):
                for x in R: s.r |= x
            elif R:
                s.w = R[0]
                if op.startswith("s_addk"): s.r |= R[0]
                for x in R[1:]: s.r |= x
        s.states = int(ops[0], 0) + 1 if op == "s_nop" else 1

def need(p, c):
    n = 0
    vw = {x for x in p.w if x[0] in "va"}
    sw = {x for x in p.w if x[0] == "s"}
    if p.valu:
        if c.mfma and vw & c.r: n = max(n, 3 if p.dot else 2)
        if p.dot and c.op != p.op and (vw & (c.r | c.w)): n = max(n, 3)
        if p.dot and c.op == p.op:
            ab = set()
            for x in c.ops[1:3]: ab |= regs(x)
            if vw & ab: n = max(n, 3)
        if c.perml and vw & c.r: n = max(n, 2)
        if c.dpp and vw & regs(c.ops[1]): n = max(n, 2)
        if c.rdlane and vw & c.r: n = max(n, 1)
        if p.trans and c.valu and not c.trans and vw & c.r: n = max(n, 1)
        if p.trans and c.mfma and vw & c.r: n = max(n, 2)
        if sw:
            if (c.valu or c.mfma) and sw & c.r: n = max(n, 4 if c.rdlane else 2)
            if c.valu and c.op.startswith("v_cndmask") and len(c.ops) == 3 and sw & regs("vcc"): n = max(n, 2)
            if c.vmem and sw & c.r: n = max(n, 5)
            if c.salu and sw & c.r: n = max(n, 1)
    if p.mfma:
        big = {4: 8, 8: 12}[p.passes]
        if c.mfma:
            if vw & c.srcAB: n = max(n, big)
            if vw & c.srcC:
                if not (c.srcC == vw and c.passes == p.passes): n = max(n, {4: 6, 8: 10}[p.passes])
            if vw & c.w and not (vw & c.srcC): n = max(n, {4: 6, 8: 10}[p.passes])
        elif (c.valu or c.vmem or c.dsop) and vw & (c.r | c.w): n = max(n, big)
        if c.valu and p.srcC & c.w: n = max(n, {4: 3, 8: 7}[p.passes])
        if (c.dsop or c.vmem) and p.srcC & c.w: n = max(n, {4: 3, 8: 7}[p.passes])
    if p.salu and ("s", 124) in p.w and c.dma: n = max(n, 1)
    if p.vmem and getattr(p, "wide", False) and (c.valu or c.dsop or c.vmem) and regs(p.ops[0]) & c.w: n = max(n, 2)
    return n

def autonop(lines):
    out = []; hist = []; ins = 0
    for ln in lines:
        t = ln.strip()
        if t.endswith(":") and not ln.startswith(" "):
            for k in range(len(hist) - 1, -1, -1):
                if hist[k].op.startswith("s_cbranch") and hist[k].ops and hist[k].ops[0] == t[:-1]:
                    for p in hist[k+1:]: p.states = 0
                    break
        if not t or t.startswith((";", ".")) or t.endswith(":") or not ln.startswith("    "):
            out.append(ln); continue
        c = I(ln)
        dist = 0; pad = 0
        for p in reversed(hist):
            nd = need(p, c)
            if nd > dist: pad = max(pad, nd - dist)
            dist += p.states
            if dist >= 20: break
        while pad > 0:
            k = min(pad, 16)
            nop = I(f"    s_nop {k-1}")
            out.append(nop.line); hist.append(nop); pad -= k; ins += 1
        out.append(ln); hist.append(c)
        if c.op in ("s_branch", "s_endpgm"): hist = []
        if len(hist) > 200: hist = hist[-200:]
    return out
```

```python
import os, sys, math
sys.path.insert(0, os.path.dirname(os.path.abspath(__file__)))
from asmlib import *

STAMPS = int(os.environ.get("STAMPS", "0"))
def P(name, d): return int(os.environ.get(name, d))
SWZ = P("SWZ", 2); SKEW = P("SKEW", 0); RSLEEP = P("RSLEEP", 8); RATOM = P("RATOM", 0)
KN = "standalone__deep_cross_fibinet__recsys_kernel"
A = Asm(); e = A.e; lab = A.lab; cm = A.cm

S_IDX, S_TAB, S_W1, S_WC, S_WBI, S_SW1, S_SW2, S_W2, S_OUT, S_DBG, S_WS = [8 + 4*i for i in range(11)]
SIZE = {S_IDX: 4096*104, S_TAB: 100000*128, S_W1: 1664*512, S_WC: 86528*2, S_WBI: 8192, S_SW1: 676, S_SW2: 676, S_W2: 512,
        S_OUT: 8192, S_DBG: 256, S_WS: 1 << 28}
sW, sRG, sHF, sX16 = 52, 53, 54, 55
sT0, sT1, sT2, sT3 = 56, 57, 58, 59
sMB, sMB2, sK6, sM6 = 60, 61, 62, 63
sMa, sMa3, sMb, sKa3 = 6, 7, 3, 55
sLO, sHI, sC0, sC1, sMSK, sNL = 64, 65, 66, 67, 68, 69
KT = 84
def srd(b): return f"s[{b}:{b+3}]"

nst = [0]
FS = P("FS", 6)
fst = [0]
def fstamp(force=False):
    if STAMPS != 3 or (FS == -2 and not force): return
    k = fst[0]; fst[0] += 1
    e("s_memtime s[100:101]")
    e("s_waitcnt lgkmcnt(0)")
    e(f"v_writelane_b32 v{VST[0]}, s100, {k + 1}")
    A.ds_done = len(A.ds) - 1
def stamp():
    if STAMPS != 1: return
    k = nst[0]; nst[0] += 1
    assert k < 24
    e("s_memtime s[100:101]")
    e("s_waitcnt lgkmcnt(0)")
    e(f"v_writelane_b32 v{VST[0]}, s100, {k + 1}")
    e("s_memrealtime s[100:101]")
    e("s_waitcnt lgkmcnt(0)")
    e(f"v_writelane_b32 v{VST[0]}, s100, {k + 33}")
    A.ds_done = len(A.ds) - 1
VST = [26]

def mf16(d, a, b, c=None):
    e(f"v_mfma_f32_16x16x32_bf16 {vr(d,4)}, {vr(a,4)}, {vr(b,4)}, {'0' if c is None else vr(c,4)}")
def mf32(d, a, b, c=None):
    e(f"v_mfma_f32_32x32x16_bf16 {vr(d,16)}, {vr(a,4)}, {vr(b,4)}, {'0' if c is None else vr(c,16)}")

def mksrd(b):
    e(f"s_mov_b32 s{b+2}, {SIZE[b]}")
    e(f"s_mov_b32 s{b+3}, 0x00020000")
def cpsrd(b, k):
    e(f"s_mov_b64 s[{b}:{b+1}], s[{KT+2*k}:{KT+2*k+1}]")

def entry():
    e("s_cmp_ge_u32 s2, 256")
    e("s_cbranch_scc1 L_exit")
    if SKEW:
        cm("diagnostic: start one group late")
        e("s_and_b32 s3, s2, 7")
        e(f"s_cmp_lt_u32 s3, {P('SKG', 4)}")
        e("s_cbranch_scc1 L_nosk")
        for _ in range(SKEW): e("s_sleep 16")
        lab("L_nosk")
    if STAMPS:
        e("s_memtime s[4:5]")
        e("s_memrealtime s[70:71]")
    e(f"s_load_dwordx2 s[{S_IDX}:{S_IDX+1}], s[0:1], 0")
    e(f"s_load_dwordx2 s[{S_W1}:{S_W1+1}], s[0:1], 48")
    e(f"s_load_dwordx2 s[{S_TAB}:{S_TAB+1}], s[0:1], 8")
    e(f"s_load_dwordx8 s[{KT}:{KT+7}], s[0:1], 16")
    e(f"s_load_dwordx8 s[{KT+8}:{KT+15}], s[0:1], 56")
    if SWZ:
        cm("spread the two roles over the shader engines: swap bit 4 with a higher bit of the workgroup id")
        e(f"s_lshr_b32 s{sT0}, s2, {SWZ}")
        e(f"s_xor_b32 s{sT0}, s{sT0}, s2")
        e(f"s_bfe_u32 s{sT0}, s{sT0}, 0x10004")
        e(f"s_mul_i32 s{sT0}, s{sT0}, {0x10 | (0x10 << SWZ)}")
        e(f"s_xor_b32 s2, s2, s{sT0}")
    e("v_lshrrev_b32 v1, 6, v0")
    e(f"s_lshr_b32 s{sT0}, s2, 5")
    e(f"v_readfirstlane_b32 s{sW}, v1")
    e(f"s_and_b32 s{sT1}, s2, 7")
    e(f"s_lshl3_add_u32 s{sRG}, s{sT0}, s{sT1}")
    e(f"s_bfe_u32 s{sHF}, s2, 0x10003")
    if CPF:
        cm("pull the kernel's code into L2: one 128-byte line per wave")
        e(f"s_getpc_b64 s[{S_WC}:{S_WC+1}]")
        lab("L_pc")
        e(f"s_mov_b32 s{S_WC+2}, L_codeend-L_pc")
        e(f"s_mov_b32 s{S_WC+3}, 0x00020000")
        e(f"s_andn2_b32 s{sT0}, s2, 7")
        e(f"s_add_u32 s{sT0}, s{sT0}, s{sW}")
        e(f"s_lshl_b32 s{sT0}, s{sT0}, 7")
        e("s_mov_b64 exec, 1")
        e(f"buffer_load_dword v8, off, {srd(S_WC)}, s{sT0}")
        e("s_mov_b64 exec, -1")
    mksrd(S_IDX); mksrd(S_W1); mksrd(S_TAB)
    e("s_bitcmp1_b32 s2, 4")
    e("s_cbranch_scc1 L_B")

def rest_srds():
    for b in (S_SW1, S_SW2, S_WBI, S_WC, S_W2, S_OUT, S_DBG, S_WS): mksrd(b)
def rest_srds2():
    for k, b in enumerate((S_SW1, S_SW2, S_WBI, S_WC, S_W2, S_OUT, S_DBG, S_WS)): cpsrd(b, k)

def consts():
    c0 = -2.0 * math.sqrt(2.0 / math.pi) * math.log2(math.e)
    e(f"s_mov_b32 s{sLO}, 0x05040100")
    e(f"s_mov_b32 s{sHI}, 0x07060302")
    e(f"s_mov_b32 s{sC0}, {fbits(c0)}")
    e(f"s_mov_b32 s{sC1}, {fbits(c0 * 0.044715)}")
    e(f"s_mov_b32 s{sMSK}, 0xffff0000")
    e(f"s_mov_b32 s{sNL}, {fbits(-math.log2(math.e))}")

R0, R1, R2 = 0, 53248, 106496
MISC = 147456
L_WBI, L_SE1, L_SE2, L_AV = MISC - 8192, MISC + 8192, MISC + 9216, MISC + 10240
LDS_TOTAL = 163840
L_CNT = LDS_TOTAL - 64
vSw, vI, vG, vPf, vDum = 1, 2, [6, 9], 7, 8
sMG = 78
aE = [[10, 11], [12, 13]]
aC, aC6, aC2 = [14, 15], [16, 17], [22, 23]
vJ = [18, 19]
vFl, vPw = 22, 23
WFB = 0x40000
L_PST = R2
aAw = 28; aAr = [29, 30]; aRed = 31; sSt = 7
vTag2 = 26 if not STAMPS else 28
vHo, vTag, vPo = 20, 21, 24
XF, CAP, RAW, WF, T = 32, 96, 152, 180, 196
AF, DD, WB, ZF, SE1F, SE2F = T, WF, RAW, RAW + 8, RAW + 12, RAW + 16
RING = [96, 100, 104, 108, 112, 116, RAW + 20, RAW + 24]
UH, XQ, AJ = 120, RAW, WF
TS = [[T + 4*i for i in range(8)], [228, 232, 236, 240, 244, 248, 252, RAW + 16]]
ACC = [2, 10]
IMG = R2
aXw, aXr = 27, 25
ONES, DZ = CAP + 32, RAW + 24
AKL = [[1, 6, 7], [8, 9, 27]]
LF = [[[2, 3], [4, 5]], [[10, 11], [12, 13]]]
def xf(el, t, q): return XF + el*8 + t*4 + q
GAHEAD = P("GAHEAD", 6)
G0 = P("G0", 5)
TOUCH = P("TOUCH", 0)
CPF = P("CPF", 1)
X = os.environ.get("X", "").split(",")
NPF0 = P("NPF0", 2)
PFAT = P("PFAT", 7)
SPEC = P("SPEC", 14)
NPB = 0
BPF = P("BPF", 0)
PF0 = 16 if BPF else 8
FLD = P("FLD", 7)
FSIG = P("FSIG", 2)
FCHK = P("FCHK", 10)
ABAR = P("ABAR", 3)
LATE0 = P("LATE0", 1)
EVEN = P("EVEN", 0)
PRIO = P("PRIO", 0)
W2PF = P("W2PF", 1)
PP = P("PP", 0)
PPU = P("PPU", 5)
DW = P("DW", 1)
W1W = P("W1W", 1)
OPS = 0
PKZ = P("PKZ", 1)
FW = P("FW", 2)
RB = P("RB", 0)
PK2 = P("PK2", 0)
MERGE = P("MERGE", 1) and FCHK != 12
BLAG = P("BLAG", 1)
LL = P("LL", 23)
DBLST = P("DBLST", 0)
NST = P("NST", 0)
NPS = P("NPS", 2)
SPF = P("SPF", -1)
PFB = [(S_W1, 512 + 1024*k) for k in range(6)] + [(S_WC, 0), (S_WC, 1024)]

def a_gaddr(k, h):
    g = vG[k & 1]
    def one(c, r):
        if h == 0: e(f"v_add_u32_dpp v{g}, v{r}, v{vSw} row_newbcast:{c} row_mask:0xf bank_mask:0x3")
        else: e(f"v_add_u32_dpp v{g}, v{r}, v{vSw} row_newbcast:{8+c} row_mask:0xf bank_mask:0xc")
    if k < 12: one(2*(k >> 2), vI + (k & 3))
    else: one(6, vI)
def a_gm0(k):
    if k < 12: e(f"s_add_u32 m0, s{sMG}, {(8*(k >> 2) + (k & 3))*4096}")
    else: e(f"s_add_u32 m0, s{sMB}, {24*4096}")
def a_gissue(k):
    A.vmem(f"buffer_load_dwordx4 v{vG[k & 1]}, {srd(S_TAB)}, 0 offen lds", f"g{k}")
def a_gather(k):
    a_gaddr(k, 0)
    a_gm0(k)
    a_gaddr(k, 1)
    a_gissue(k)

def gelu(dst, x, t0, vc0):
    e(f"v_mul_f32 v{t0}, v{x}, v{x}")
    e(f"v_fma_f32 v{t0}, v{t0}, s{sC1}, v{vc0}")
    e(f"v_mul_f32 v{t0}, v{t0}, v{x}")
    e(f"v_exp_f32 v{t0}, v{t0}")
    e(f"v_add_f32 v{t0}, 1.0, v{t0}")
    e(f"v_rcp_f32 v{t0}, v{t0}")
    e(f"v_mul_f32 v{dst}, v{x}, v{t0}")

def zipl(lists):
    n = max(len(x) for x in lists)
    for i in range(n):
        for x in lists:
            if i < len(x): A.L.append(x[i])
class Cap:
    def __enter__(s): s.sv = A.L; A.L = []; s.l = A.L; return s
    def __exit__(s, *a): A.L = s.sv

ob = [0]
class Older:
    def __enter__(s):
        ob[0] += 1; s.n = ob[0]
        e(f"s_cmp_ge_u32 s{sW}, 4"); e(f"s_cbranch_scc1 L_o{s.n}")
    def __exit__(s, *a): lab(f"L_o{s.n}")
class Younger:
    def __enter__(s):
        ob[0] += 1; s.n = ob[0]
        e(f"s_cmp_lt_u32 s{sW}, 4"); e(f"s_cbranch_scc1 L_o{s.n}")
    def __exit__(s, *a): lab(f"L_o{s.n}")

def setexec(m32):
    e(f"s_mov_b32 exec_lo, {m32:#x}")
    e(f"s_mov_b32 exec_hi, {m32:#x}")

def role_a():
    A.reset()
    U, AK, ACCP = 228, 236, 252
    t0, t1, t2, t3, t4, t5 = U, U+1, U+2, U+3, U+4, U+5
    L15, G, aWb, GP, R01 = CAP + 51, CAP + 52, CAP + 53, CAP + 54, CAP + 55
    aS1, aS1t, aS2 = CAP + 48, CAP + 49, CAP + 50
    PA = CAP
    sKb, sJt, sWF, sPc = sM6, 55, sK6, 3
    cm("===== role A")
    e(f"v_bfe_u32 v{t0}, v0, 3, 5")
    e(f"v_mul_u32_u24 v{t0}, 104, v{t0}")
    e(f"v_and_b32 v{t1}, 7, v0")
    e(f"v_lshl_add_u32 v{t0}, v{t1}, 4, v{t0}")
    e(f"v_lshrrev_b32 v{t2}, 8, v0")
    e(f"v_lshl_add_u32 v{t0}, v{t2}, 4, v{t0}")
    cm("waves 4..7 read 16 bytes further; their lane 6 reads from field 25 instead")
    e(f"v_mul_u32_u24 v{t2}, 12, v{t2}")
    setexec(0x40404040)
    e(f"v_sub_u32 v{t0}, v{t0}, v{t2}")
    e("s_mov_b64 exec, -1")
    e(f"s_lshl1_add_u32 s{sT2}, s{sRG}, s{sHF}")
    e(f"s_mul_i32 s{sT2}, s{sT2}, {32*104}")
    e(f"s_lshl_b32 s{sMB}, s{sW}, 10")
    cm("producers (wg & 4 == 0): piece of w_cross, task = (part, jt, kb, g'); wave t loads line i(t) for 4 columns (lanes 0..31)")
    sG, sNP = 79, 82
    e(f"s_and_b32 s{sG}, s{sRG}, 3")
    e(f"s_bfe_u32 s{sKb}, s{sRG}, 0x10003")
    e(f"s_lshl1_add_u32 s{sKb}, s{sKb}, s{sHF}")
    e(f"s_bfe_u32 s{sJt}, s{sRG}, 0x10004")
    e(f"s_and_b32 s{sNP}, s{sRG}, 4")
    e(f"s_lshl_b32 s{sNP}, s{sNP}, 26")
    e(f"v_bfe_u32 v{t1}, v0, 4, 1")
    e(f"v_bfe_u32 v{t2}, v0, 3, 1")
    e(f"v_lshl_add_u32 v{t1}, v{t1}, 3, v{t2}")
    e(f"s_lshl3_add_u32 s{sT0}, s{sJt}, s{sG}")
    e(f"s_lshl_b32 s{sT0}, s{sT0}, 1")
    e(f"v_add_u32 v{t1}, s{sT0}, v{t1}")
    e(f"s_add_u32 s{sT0}, s{sG}, 24")
    e(f"v_min_u32 v{t1}, s{sT0}, v{t1}")
    e(f"v_and_b32 v{t2}, 7, v0")
    e(f"v_lshl_add_u32 v{t1}, v{t1}, 3, v{t2}")
    e(f"v_lshlrev_b32 v{t1}, 4, v{t1}")
    e(f"s_lshr_b32 s{sT0}, s{sW}, 1")
    e(f"s_lshl2_add_u32 s{sT0}, s{sT0}, s{sKb}")
    e(f"s_min_u32 s{sT0}, s{sT0}, 12")
    e(f"s_and_b32 s{sT1}, s{sW}, 1")
    e(f"s_lshl1_add_u32 s{sT0}, s{sT0}, s{sT1}")
    e(f"s_lshr_b32 s{sT1}, s{sRG}, 5")
    e(f"s_mul_i32 s{sT1}, s{sT1}, 26")
    e(f"s_add_u32 s{sT0}, s{sT0}, s{sT1}")
    e(f"s_mul_i32 s{sT0}, s{sT0}, 3328")
    e(f"s_add_u32 s{sPc}, s{sT0}, s{sNP}")
    e(f"s_mov_b32 s{S_SW2+2}, {SIZE[S_WC]}")
    e(f"s_mov_b32 s{S_SW2+3}, 0x00020000")
    e(f"s_lshr_b32 s{sT1}, s{sMB}, 1")
    e(f"s_add_u32 m0, s{sT1}, {L_PST}")
    e(f"s_lshr_b32 s6, s2, 5")
    e(f"s_lshl1_add_u32 s6, s6, s{sHF}")
    e("s_waitcnt lgkmcnt(0)")
    A.vmem(f"buffer_load_dwordx4 {vr(vI,4)}, v{t0}, {srd(S_IDX)}, s{sT2} offen", "idx")
    cpsrd(S_SW2, 3)
    fstamp()
    e("s_mov_b32 exec_hi, 0")
    A.vmem(f"buffer_load_dwordx4 v{t1}, {srd(S_SW2)}, s{sPc} offen lds", "pc")
    e("s_mov_b64 exec, -1")
    mksrd(S_WBI); cpsrd(S_WBI, 2)
    e(f"v_lshlrev_b32 v{t3}, 4, v0")
    e(f"s_add_u32 m0, s{sMB}, {L_WBI}")
    e(f"s_lshl_b32 s{sT0}, s6, 13")
    A.vmem(f"buffer_load_dwordx4 v{t3}, {srd(S_WBI)}, 0 offen lds", "sm")
    e(f"v_and_b32 v{t2}, 63, v0")
    e(f"v_lshl_add_u32 v{vPf}, v{t2}, 7, s{sT0}")
    e(f"s_sub_u32 s{sT1}, s{sW}, {8 - NPF0}")
    e(f"s_lshl_b32 s{sT1}, s{sT1}, 17")
    e(f"s_add_u32 s{sT1}, s{sT1}, s{sT0}")
    e(f"s_add_u32 s{sT1}, s{sT1}, {PF0*32768}")
    e(f"s_cmp_lt_u32 s{sW}, {8 - NPF0}")
    e(f"s_cselect_b32 s{sT1}, 0x7f000000, s{sT1}")
    e(f"s_cmp_eq_u32 s{sW}, 0")
    e(f"s_cselect_b64 s[{S_SW1}:{S_SW1+1}], s[{KT}:{KT+1}], s[{KT+2}:{KT+3}]")
    e(f"s_min_u32 s{sT0}, s{sMB}, 2048")
    e(f"s_add_u32 m0, s{sT0}, {L_SE1}")
    e(f"s_cmp_lt_u32 s{sW}, 2")
    e(f"s_cselect_b64 s[{S_SW1}:{S_SW1+1}], s[{S_SW1}:{S_SW1+1}], s[{S_W1}:{S_W1+1}]")
    e(f"s_cselect_b32 s{S_SW1+2}, 676, s{S_W1+2}")
    e(f"s_cselect_b32 s{sT1}, 0, s{sT1}")
    e(f"s_cselect_b32 s{sT3}, 4, 7")
    e(f"s_mov_b32 s{S_SW1+3}, 0x00020000")
    e(f"v_lshlrev_b32 v{t4}, s{sT3}, v{t2}")
    A.vmem(f"buffer_load_dwordx4 v{t4}, {srd(S_SW1)}, s{sT1} offen lds", "se")
    fstamp()
    e("s_branch L_A2")
    sv = (A.vm, A.ds, A.vm_done, A.ds_done, nst[0])
    b_head()
    A.vm, A.ds, A.vm_done, A.ds_done, nst[0] = sv
    lab("L_A2")
    e(f"s_and_b32 s{sT0}, s{sMB}, 0x1000")
    e(f"s_mul_i32 s{sT0}, s{sT0}, 3")
    e(f"s_add_u32 s{sMG}, s{sMB}, s{sT0}")
    e(f"v_lshrrev_b32 v{t1}, 4, v0")
    e(f"v_xor_b32 v{t1}, v{t1}, v0")
    e(f"v_and_b32 v{t1}, 7, v{t1}")
    e(f"v_lshlrev_b32 v{vSw}, 4, v{t1}")
    e(f"v_and_b32 v{L15}, 15, v0")
    e(f"v_bfe_u32 v{G}, v0, 4, 2")
    e(f"v_bfe_u32 v{t0}, v0, 1, 3")
    e(f"s_and_b32 s{sT0}, s{sMB}, 0x400")
    e(f"s_lshl_b32 s{sT0}, s{sT0}, 1")
    e(f"v_lshl_add_u32 v{aC[1]}, v{L15}, 7, s{sT0}")
    e(f"v_xor_b32 v{t2}, v{G}, v{t0}")
    e(f"v_lshl_add_u32 v{aE[0][0]}, v{t2}, 4, v{aC[1]}")
    e(f"v_xor_b32 v{aE[1][0]}, 64, v{aE[0][0]}")
    e(f"v_xor_b32 v{aE[0][1]}, 0x800, v{aE[0][0]}")
    e(f"v_xor_b32 v{aE[1][1]}, 0x800, v{aE[1][0]}")
    e(f"v_bfe_u32 v{GP}, v0, 2, 2")
    e(f"v_and_b32 v{t1}, 1, v0")
    e(f"v_lshl_add_u32 v{t1}, v{GP}, 1, v{t1}")
    e(f"v_bfe_u32 v{t4}, v0, 1, 1")
    e(f"v_lshl_add_u32 v{R01}, v{t4}, 3, v{t1}")
    e(f"s_lshl_b32 s{sT0}, s{sW}, 3")
    e(f"v_xor_b32 v{t3}, s{sT0}, v{R01}")
    e(f"v_lshl_add_u32 v{t3}, v{G}, 9, v{t3}")
    e(f"s_mov_b32 s{sT0}, {L_WBI}")
    e(f"v_lshl_add_u32 v{aWb}, v{t3}, 1, s{sT0}")
    e(f"s_lshl_b32 s{sT0}, s{sW}, 11")
    e(f"s_add_u32 s{sT0}, s{sT0}, {IMG}")
    e(f"s_xor_b32 s{sT1}, s{sT0}, 0x800")
    e(f"v_lshl_add_u32 v{t3}, v{G}, 7, v{L15}")
    e(f"v_lshl_add_u32 v{aXw}, v{t3}, 2, s{sT1}")
    e(f"v_and_b32 v{t3}, 63, v0")
    e(f"v_lshl_add_u32 v{aXr}, v{t3}, 2, s{sT0}")
    e(f"v_and_b32 v{t4}, 3, v0")
    e(f"v_bfe_u32 v{t5}, v0, 2, 3")
    e(f"v_lshl_add_u32 v{t3}, v{t4}, 6, v{t5}")
    e(f"s_lshl_b32 s{sT0}, s{sW}, 4")
    e(f"s_add_u32 s{sT0}, s{sT0}, {L_PST}")
    e(f"v_lshl_add_u32 v{PA}, v{t3}, 1, s{sT0}")
    e(f"v_mul_u32_u24 v{t3}, 3328, v{t5}")
    e(f"v_lshl_add_u32 v{PA+1}, v{t4}, 4, v{t3}")
    e(f"v_mov_b32 v{PA + 7}, 0")
    e(f"s_lshl2_add_u32 s{sT1}, s{sKb}, s{sG}")
    e(f"s_lshl_b32 s{sT1}, s{sT1}, 2")
    e(f"s_mul_i32 s{sT0}, s{sG}, 3")
    e(f"s_min_u32 s{sT0}, s{sT0}, 8")
    e(f"s_mul_i32 s{sT2}, s{sKb}, 10")
    e(f"s_add_u32 s{sT0}, s{sT0}, s{sT2}")
    e(f"s_add_u32 s{sT0}, s{sT0}, 64")
    e(f"s_cmp_lt_u32 s{sG}, 2")
    e(f"s_mov_b32 s{sG}, 0x33333333")
    e(f"s_cselect_b32 s{sG}, 0x77777777, s{sG}")
    e(f"s_cmp_eq_u32 s{sJt}, 0")
    e(f"s_cselect_b32 s{sT0}, s{sT1}, s{sT0}")
    e(f"s_cselect_b32 s{sG}, -1, s{sG}")
    e(f"s_lshr_b32 s{sT1}, s{sRG}, 5")
    e(f"s_mul_i32 s{sT1}, s{sT1}, 104")
    e(f"s_add_u32 s{sT0}, s{sT0}, s{sT1}")
    e(f"s_lshl_b32 s{sT0}, s{sT0}, 4")
    e(f"s_mul_i32 s{sMB2}, s{sW}, {8*3328}")
    e(f"s_add_u32 s{sMB2}, s{sMB2}, {WFB}")
    e(f"s_add_u32 s{sT0}, s{sT0}, s{sMB2}")
    e(f"s_add_u32 s{sWF}, s{sT0}, s{sNP}")
    e(f"s_lshl_b32 s{sT0}, s{sKb}, 3")
    e(f"s_lshl_b32 s{sJt}, 0xff, s{sT0}")
    mksrd(S_WS); cpsrd(S_WS, 7)
    e(f"v_and_b32 v{t3}, 31, v0")
    e(f"v_bfe_u32 v{t4}, v0, 5, 1")
    e(f"v_lshl_add_u32 v{t3}, v{t4}, 6, v{t3}")
    e(f"s_lshl2_add_u32 s{sT0}, s{sRG}, s{sHF}")
    e(f"s_lshl_b32 s{sT0}, s{sT0}, 8")
    e(f"v_lshl_add_u32 v{vHo}, v{t3}, 3, s{sT0}")
    def late_setup():
        u0, u1, u2 = PA + 2, PA + 3, aWb
        e(f"v_bfe_u32 v{u0}, v0, 1, 3")
        e(f"v_xor_b32 v{u0}, s{sW}, v{u0}")
        e(f"v_lshl_add_u32 v{u0}, v{u0}, 4, v{aC[1]}")
        e(f"v_lshl_add_u32 v{aC[0]}, v{G}, 13, v{u0}")
        e(f"v_xor_b32 v{aC[1]}, 0x800, v{aC[0]}")
        e(f"v_min_u32 v{u1}, 1, v{G}")
        e(f"v_add_u32 v{u1}, 24, v{u1}")
        e(f"v_lshl_add_u32 v{aC6[0]}, v{u1}, 12, v{u0}")
        e(f"v_xor_b32 v{aC6[1]}, 0x800, v{aC6[0]}")
        e(f"v_and_b32 v{u0}, 63, v0")
        e(f"v_lshlrev_b32 v{vJ[0]}, 4, v{u0}")
        e(f"s_lshl3_add_u32 s{sT0}, s6, s{sW}")
        e(f"s_mul_i32 s{sT0}, s{sT0}, {13*128}")
        e(f"s_add_u32 s{sT0}, s{sT0}, {WFB}")
        e(f"v_lshl_add_u32 v{vPw}, v{u0}, 7, s{sT0}")
        e(f"v_mul_u32_u24 v{u0}, 3, v{GP}")
        e(f"v_min_u32 v{u0}, 8, v{u0}")
        e(f"v_mad_u32_u24 v{u0}, v{G}, 10, v{u0}")
        e(f"v_and_b32 v{u1}, 3, v0")
        e(f"v_bfrev_b32 v{vJ[1]}, 2")
        setexec(0x33773377)
        e(f"v_add_lshl_u32 v{vJ[1]}, v{u0}, v{u1}, 4")
        e("s_mov_b64 exec, -1")
        e(f"s_and_b32 s{sT0}, s{sW}, 1")
        e(f"s_mul_i32 s{sT2}, s{sT0}, {16*144}")
        e(f"s_sub_u32 s{sT3}, {16*144 + L_AV}, s{sT2}")
        e(f"s_add_u32 s{sT2}, s{sT2}, {L_AV}")
        e(f"v_mul_u32_u24 v{u0}, 144, v{L15}")
        e(f"v_lshl_add_u32 v{u0}, v{G}, 5, v{u0}")
        e(f"v_add_u32 v{aAr[0]}, s{sT2}, v{u0}")
        e(f"v_add_u32 v{aAr[1]}, s{sT3}, v{u0}")
        e(f"s_lshl_b32 s{sSt}, s{sW}, 11")
        e(f"s_add_u32 s{sSt}, s{sSt}, {R2}")
        e(f"v_add_u32 v{aRed}, s{sSt}, v{vJ[0]}")
        with Older():
            e(f"s_and_b32 s{sT1}, s{sW}, 2")
            e(f"s_lshl_b32 s{sT1}, s{sT1}, 3")
            e(f"v_add_u32 v{u0}, s{sT1}, v{R01}")
            e(f"v_add_u32 v{u1}, 24, v{GP}")
            e(f"v_min_u32 v{u0}, v{u0}, v{u1}")
            e(f"v_mov_b32 v{u2}, {L_SE1}")
            e(f"s_movk_i32 s{sT3}, 208")
            e(f"v_mad_u32_u24 v{u1}, v{G}, s{sT3}, v{u2}")
            e(f"v_lshl_add_u32 v{aS2}, v{u0}, 1, v{u1}")
            e(f"v_lshl_add_u32 v{u2}, v{L15}, 1, v{u2}")
            e(f"v_mad_u32_u24 v{aS1t}, v{G}, 26, v{u2}")
            e(f"v_mad_u32_u24 v{aS1}, v{G}, 52, v{u2}")
            e(f"v_add_u32 v{aAw}, s{sT1}, v{aAr[0]}")
            for b in (S_OUT, S_DBG): mksrd(b)
            for k, b in enumerate((S_OUT, S_DBG)): cpsrd(b, k + 5)
            c0 = -2.0 * math.sqrt(2.0 / math.pi) * math.log2(math.e)
            e(f"s_mov_b32 s{sC0}, {fbits(c0)}")
            e(f"s_mov_b32 s{sC1}, {fbits(c0 * 0.044715)}")
            e(f"s_mov_b32 s{sMSK}, 0xffff0000")
            e(f"s_mov_b32 s{sNL}, {fbits(-math.log2(math.e))}")
            e(f"v_mov_b32 v{ZF+3}, 0")
    stamp()
    fstamp()
    A.vm_wait("idx")
    stamp()
    fs0 = (lambda: fstamp()) if FS == -1 else (lambda: None)
    fs0()
    for d in range(4): e(f"v_lshlrev_b32 v{vI+d}, 7, v{vI+d}")
    for s in range(G0): a_gather(s)
    fs0()
    def pfbatch():
        e(f"s_lshl_b32 s{sT1}, s{sW}, 17")
        e(f"s_add_u32 s{sT1}, s{sT1}, {PF0*32768 + NPF0*131072}")
        assert NPF0 >= 1
        A.vmem(f"buffer_load_dword v{vDum}, v{vPf}, {srd(S_W1)}, s{sT1} offen", "o:pf")
    A.vm_wait("sm")
    fs0()
    e("s_barrier")
    fs0()
    for t in range(8):
        A.lds(f"ds_read_u16 v{PA + 12 + t}, v{PA} offset:{t*512}", "pr")
    for k in range(16):
        A.lds(f"ds_read_u16 v{T + k}, v{aWb} offset:{(32*(k >> 3) + (k & 7))*128}", "wb")
    with Older():
        e(f"s_lshl_b32 s{sT0}, s{sW}, 28")
        A.vmem(f"buffer_load_dword v{vTag}, v{vHo}, {srd(S_WS)}, s{sT0} offen offset:4 sc1", "o:snap")
        e(f"s_add_u32 s{sT0}, s{sT0}, 0x10000")
        A.vmem(f"buffer_load_dword v{vTag2 if not STAMPS else vPo}, v{vHo}, {srd(S_WS)}, s{sT0} offen offset:4 sc1", "o:snap")
    fs0()
    A.ds_wait("pr")
    for q in range(3): e(f"v_lshl_or_b32 v{PA + 4 + q}, v{PA + 13 + 2*q}, 16, v{PA + 12 + 2*q}")
    e("s_mov_b32 exec_hi, 0")
    e(f"s_mov_b32 exec_lo, s{sJt}")
    e(f"v_lshl_or_b32 v{PA + 7}, v{PA + 19}, 16, v{PA + 18}")
    e(f"s_mov_b32 exec_lo, s{sG}")
    A.vmem(f"buffer_store_dwordx4 {vr(PA + 4, 4)}, v{PA + 1}, {srd(S_WS)}, s{sWF} offen sc1", "st")
    e("s_mov_b64 exec, -1")
    A.ds_all()
    for d in range(8): e(f"v_lshl_or_b32 v{WB + d}, v{T + 2*d + 1}, 16, v{T + 2*d}")
    with Older():
        cm("ONES quad r: 1/64 in the rows with (m&3) == r")
        e(f"v_and_b32 v{t4}, 3, v0")
        e(f"v_mov_b32 v{t5}, 0x3c803c80")
        for r in range(4):
            e(f"v_cmp_eq_u32 vcc, {r}, v{t4}")
            e(f"v_cndmask_b32 v{ONES + 4*r}, 0, v{t5}, vcc")
            for d in range(1, 4): e(f"v_mov_b32 v{ONES + 4*r + d}, v{ONES + 4*r}")
    if not LATE0: late_setup()
    def se_frags():
        TM2 = CAP + 20
        with Older():
            e("s_waitcnt lgkmcnt(4)")
            for t in range(6):
                e(f"ds_read_u16 v{TM2 + t}, v{CAP + 48} offset:{(8*(t >> 1) + (t & 1))*26}")
            e(f"ds_read_u16 v{SE1F + 3}, v{CAP + 49} offset:{24*26}")
            for kk in range(4):
                e(f"ds_read_u16 v{TM2 + 8 + kk}, v{CAP + 50} offset:{1024 + kk*52}")
            e("s_waitcnt lgkmcnt(0)")
            for q in range(3): e(f"v_lshl_or_b32 v{SE1F + q}, v{TM2 + 2*q + 1}, 16, v{TM2 + 2*q}")
            for q in range(2): e(f"v_lshl_or_b32 v{SE2F + q}, v{TM2 + 8 + 2*q + 1}, 16, v{TM2 + 8 + 2*q}")
    deferred = []
    fs0()
    stamp()
    def swaps(q, tls=(0, 1)):
        for tl in tls:
            for r in range(2):
                R = [xf(2*g + r, tl, q) for g in range(4)]
                e(f"v_permlane32_swap_b32 v{R[0]}, v{R[2]}")
                e(f"v_permlane32_swap_b32 v{R[1]}, v{R[3]}")
        for tl in tls:
            for r in range(2):
                R = [xf(2*g + r, tl, q) for g in range(4)]
                e(f"v_permlane16_swap_b32 v{R[0]}, v{R[1]}")
                e(f"v_permlane16_swap_b32 v{R[2]}, v{R[3]}")
    def pack(s):
        q, Gq = s >> 2, s & 3
        d = DD + (s & 1)*8
        if s in (4, 8): e(f"v_add_u32 v{aXw}, 0x4000, v{aXw}")
        for r in range(2):
            e(f"v_cvt_pk_bf16_f32 v{d + 2 + r}, v{d + 2 + r}, v{d + 6 + r}")
        A.lds(f"ds_write2_b32 v{aXw}, v{d + 2}, v{d + 3} offset0:{(s & 3)*16} offset1:{(s & 3)*16 + 64}", "xw")
        for r in range(2):
            e(f"v_cvt_pk_bf16_f32 v{xf(2*Gq + r, 0, q)}, v{d + r}, v{d + 4 + r}")
    def packz(sg, dz=None):
        dz = DZ if dz is None else dz
        for h in range(2): e(f"v_cvt_pk_bf16_f32 v{dz + 2*h}, v{dz + 2*h}, v{dz + 2*h + 1}")
        for h in range(2):
            s_ = 2*sg + h
            e(f"v_mov_b32_dpp v{ZF + (s_ >> 2)}, v{dz + 2*h} quad_perm:[0,1,2,3] row_mask:{1 << (s_ & 3):#x} bank_mask:0xf")
    wl = [0]
    def wload():
        k = wl[0]
        if k >= 32: return
        wl[0] += 1
        u, part, x = k >> 2, (k >> 1) & 1, k & 1
        ep, jt = u >> 1, u & 1
        if 8 <= k < 8 + NST:
            A.vm_wait(f"ws{k}")
            A.lds(f"ds_read_b128 {vr(RING[k % 8], 4)}, v{aRed} offset:{stoff(k)}", f"w{k >> 1}")
            return
        if "nowl" in X and k >= 8:
            A.vm.append(f"w{k >> 1}"); A.vm_done = len(A.vm) - 1
            return
        if "j0" in X: jt = 0
        if k % 8 < 2: e(f"s_add_u32 s{80 + x}, s{sMB2}, {(2*ep + x)*3328}")
        A.vmem(f"buffer_load_dwordx4 {vr(RING[k % 8], 4)}, v{vJ[jt]}, {srd(S_WS)}, s{80 + x} offen offset:{part*1664 + jt*1024} sc1", f"w{k >> 1}")
    def stoff(k): return ((k - 8) >> 1)*16384 + ((k - 8) & 1)*1024
    sl = [8]
    def wstage():
        k = sl[0]
        if k >= 8 + NST: return
        sl[0] += 1
        u, part, x = k >> 2, (k >> 1) & 1, k & 1
        ep, jt = u >> 1, u & 1
        e(f"s_add_u32 m0, s{sSt}, {stoff(k)}")
        e(f"s_add_u32 s{sT0}, s{sMB2}, {(2*ep + x)*3328 + part*1664 + jt*1024}")
        A.vmem(f"buffer_load_dwordx4 v{vJ[jt]}, {srd(S_WS)}, s{sT0} offen sc1 lds", f"ws{k}")
    def early():
        for _ in range(NPS):
            if wl[0] < 4: wload()
            else: wstage()
    QB = [[AF + 4*i for i in range(8)], [AK, AK+4, AK+8, AK+12, U, U+4, ACCP, RAW+20]]
    def rd(sg, i):
        f = 4*sg + (i >> 1)
        A.lds(f"ds_read_b128 {vr(QB[sg & 1][i], 4)}, v{aE[i & 1][0]} offset:{(f & 15)*4096}", f"e{sg}_{i >> 1}")
    def mmi(sg, i):
        d = DD + (i >> 1)*4
        if i & 1: mf16(d, WB + 4, QB[sg & 1][i], d)
        else:
            A.ds_wait(f"e{sg}_{i >> 1}")
            mf16(d, WB, QB[sg & 1][i])
    def zmm(sg):
        for i in range(8): mf16(DZ, ONES + 4*(i >> 1), QB[sg & 1][i], DZ if i else None)
    def zblock(sg):
        with Older():
            if sg: packz(sg - 1)
            zmm(sg)
    def issue(s):
        if s + GAHEAD < 13:
            a_gather(s + GAHEAD)
    swq = []
    def take(lst, n):
        for _ in range(n):
            if lst: A.L.append(lst.pop(0))
    for s in range(G0, GAHEAD): a_gather(s)
    def signal(prod):
        with Older():
            cm("signal (wave 0 only stays in range): snapshot taken" + (", fragments stored" if prod else ""))
            e(f"s_lshl_b32 s{sT0}, s{sHF}, 4")
            e(f"s_lshl_b32 s{sT0}, 0x100, s{sT0}")
            e(f"v_mov_b32 v{vSg}, s{sT0}")
            e(f"s_lshl_b32 s{sT0}, s{sW}, 6")
            e(f"s_add_u32 s{sT0}, s{sT0}, s{sRG}")
            e(f"s_lshl2_add_u32 s{sT0}, s{sT0}, s{sNP}")
            if not prod: e(f"s_xor_b32 s{sT0}, s{sT0}, 0x10000000")
            e("s_mov_b64 exec, 1")
            A.vmem(f"buffer_atomic_or v{vSg}, off, {srd(S_DBG)}, s{sT0} sc1", "o:sig")
            e("s_mov_b64 exec, -1")
    vSg = CAP + 55
    def flagcheck():
        cm("wave 0: every producer of this group's W-fragment image has signalled")
        e(f"s_cmp_lg_u32 s{sW}, 0")
        e("s_cbranch_scc1 L_flok")
        lab("L_flp")
        e(f"v_and_b32 v{vFl}, 0x01000100, v{vFl}")
        e(f"v_cmp_ne_u32 vcc, 0x01000100, v{vFl}")
        e("s_or_b32 vcc_lo, vcc_lo, vcc_hi")
        e("s_and_b32 vcc_lo, vcc_lo, 0x0f0f0f0f")
        e("s_cbranch_scc0 L_flok")
        e(f"s_sleep {RSLEEP}")
        e(f"v_lshrrev_b32 v{vFl}, 2, v{vJ[0]}")
        e(f"buffer_load_dword v{vFl}, v{vFl}, {srd(S_DBG)}, 0 offen sc1")
        e("s_waitcnt vmcnt(0)")
        e("s_branch L_flp")
        lab("L_flok")
    def body(s):
        sg = s >> 1
        if s == 12: return
        if s % 2 == 0:
            for i in range(8):
                if sg: mmi(sg - 1, i)
                rd(sg, i)
            return
        if sg:
            pack(2*sg - 2); pack(2*sg - 1)
        if sg in (2, 4): swaps((sg >> 1) - 1, (0,))
        if sg == 5:
            for el in range(8):
                A.lds(f"ds_read2st64_b32 {vr(xf(el, 1, 0), 2)}, v{aXr} offset0:{el} offset1:{64 + el}", "xr")
    if PRIO:
        e(f"s_cmp_lt_u32 s{sW}, 4")
        e("s_cbranch_scc1 L_prio")
        e("s_setprio 1")
        lab("L_prio")
    for s in range(13):
        cm(f"-- A step {s}")
        if s % 2 == 0:
            if s < 12 or not MERGE:
                need_o, need_y = [], []
                if s == 12 or (s == 10 and MERGE): need_o.append("g12"); need_y.append("g12")
                elif s & 2: need_y.append(f"g{4*(s >> 2) + 3}")
                else: need_o.append(f"g{4*(s >> 2) + 3}")
                if s == FSIG: need_o.append("st"); need_y.append("st")
                if s == FCHK: need_o.append("o:fl")
                no = min([A.vm_count(t, True) for t in need_o]) if need_o else None
                ny = min([A.vm_count(t, False) for t in need_y]) if need_y else None
                if no is not None and no == ny: e(f"s_waitcnt vmcnt({no})")
                else:
                    if no is not None:
                        with Older(): e(f"s_waitcnt vmcnt({no})")
                    if ny is not None:
                        with Younger(): e(f"s_waitcnt vmcnt({ny})")
                if s == 10: A.ds_wait("xw")
                if s == FCHK: flagcheck()
                if s == 0: fs0()
                if FS == -2: fstamp(True)
                e("s_barrier")
                if FS == -2: fstamp(True)
                if s == 0: fs0()
            if s in (0, 4, 8, 12): stamp()
            if s == FSIG: signal(True)
            if s == FCHK:
                e("s_mov_b64 exec, 0x1fff")
                A.vmem(f"buffer_load_dword v{vDum}, v{vPw}, {srd(S_WS)}, 0 offen sc1", "pf")
                e("s_mov_b64 exec, -1")
            body(s)
            issue(s)
            if s == 0 and LATE0: late_setup()
            if s >= FCHK and s < 12: early()
            continue
        body(s)
        issue(s)
        if s in (FLD, PFAT):
            with Older():
                if s == FLD:
                    e(f"v_lshrrev_b32 v{vFl}, 2, v{vJ[0]}")
                    e(f"s_lshl_b32 s{sT0}, s{sW}, 8")
                    A.vmem(f"buffer_load_dword v{vFl}, v{vFl}, {srd(S_DBG)}, s{sT0} offen sc1", "o:fl")
                if s == PFAT: pfbatch()
        if s > FCHK: early()
        if s == 7:
            for r in aE[0] + aE[1]: e(f"v_add_u32 v{r}, 0x10000, v{r}")
        if s == 11: signal(False)
        if s == 1: se_frags()
        if s >= 3: zblock((s >> 1) - 1)
    cm("last two fields: both row tiles; then the fragments of super-step 5")
    DL = 228
    DT = CAP + 16
    LF = [[[DL + tl*8 + fi*4 + r for r in range(2)] for fi in range(2)] for tl in range(2)]
    for tl in range(2):
        for i in range(4):
            A.lds(f"ds_read_b128 {vr(AF + tl*16 + 4*i, 4)}, v{aE[i & 1][tl]} offset:{(8 + (i >> 1))*4096}", f"l{tl}{i >> 1}")
    for tl in range(2): e(f"v_add_u32 v{aC2[tl]}, 0x10000, v{aC[tl]}")
    def lastmm():
        for tl in range(2):
            for i in range(4):
                d = DL + tl*8 + (i >> 1)*4
                if not i & 1: A.ds_wait(f"l{tl}{i >> 1}")
                mf16(d, WB + 4*(i & 1), AF + tl*16 + 4*i, d if i & 1 else None)
    def tailwork():
        swaps(2, (0,))
        for tl in range(2):
            for el in range(8):
                if el < 2: e(f"v_cvt_pk_bf16_f32 v{xf(el, tl, 3)}, v{DL + tl*8 + (el & 1)}, v{DL + tl*8 + 4 + (el & 1)}")
                else: e(f"v_mov_b32 v{xf(el, tl, 3)}, v{xf(el & 1, tl, 3)}")
        while wl[0] < 8: wload()
        for tl in range(2):
            for p in range(2): e(f"v_mov_b32 v{UH + tl*16 + 14 + p}, 0")
    if PRIO == 1: e("s_setprio 0")
    e(f"s_cmp_ge_u32 s{sW}, 4")
    e("s_cbranch_scc1 L_nosenet")
    cm("waves 0..3: SENET first")
    sv = (list(A.vm), A.vm_done, wl[0], sl[0], list(A.ds), A.ds_done)
    A.ds_wait("e5_3")
    packz(4)
    zmm(5)
    A.ds_wait("l01")
    for i in range(4): mf16(DT, ONES + 4*(i >> 1), AF + 4*i, DT if i else None)
    for i in range(4): mmi(5, i)
    packz(5)
    e(f"v_cvt_pk_bf16_f32 v{DT}, v{DT}, 0")
    e(f"v_cvt_pk_bf16_f32 v{DT + 1}, v{DT + 1}, 0")
    for h in range(2): e(f"v_mov_b32_dpp v{ZF + 3}, v{DT + h} quad_perm:[0,1,2,3] row_mask:{1 << h:#x} bank_mask:0xf")
    b = 128
    mf16(b, SE1F, ZF)
    for i in range(4, 8): mmi(5, i)
    pack(10)
    e(f"v_mov_b32 v{b+20}, s{sC0}")
    e(f"v_cvt_pk_bf16_f32 v{b+8}, v{b+0}, v{b+1}")
    e(f"v_cvt_pk_bf16_f32 v{b+9}, v{b+2}, v{b+3}")
    for d in range(2):
        e(f"v_lshlrev_b32 v{b+2*d}, 16, v{b+8+d}")
        e(f"v_and_b32 v{b+2*d+1}, s{sMSK}, v{b+8+d}")
    ls = []
    for r in range(4):
        with Cap() as c: gelu(b + 4 + r, b + r, b + 12 + r, b + 20)
        ls.append(c.l)
    zipl(ls)
    e(f"v_cvt_pk_bf16_f32 v{b+10}, v{b+4}, v{b+5}")
    e(f"v_cvt_pk_bf16_f32 v{b+11}, v{b+6}, v{b+7}")
    e(f"v_mfma_f32_16x16x16_bf16 {vr(b+16,4)}, {vr(SE2F,2)}, {vr(b+10,2)}, 0")
    pack(11)
    e(f"v_cvt_pk_bf16_f32 v{b+8}, v{b+16}, v{b+17}")
    e(f"v_cvt_pk_bf16_f32 v{b+9}, v{b+18}, v{b+19}")
    for d in range(2):
        e(f"v_lshlrev_b32 v{b+2*d}, 16, v{b+8+d}")
        e(f"v_and_b32 v{b+2*d+1}, s{sMSK}, v{b+8+d}")
    for r in range(4): e(f"v_mul_f32 v{b+r}, s{sNL}, v{b+r}")
    for r in range(4): e(f"v_exp_f32 v{b+r}, v{b+r}")
    for r in range(4): e(f"v_add_f32 v{b+r}, 1.0, v{b+r}")
    for r in range(4): e(f"v_rcp_f32 v{b+r}, v{b+r}")
    for r in range(4): e(f"v_cvt_pk_bf16_f32 v{b+4+r}, 0, v{b+r}")
    e(f"ds_write_b128 v{aAw}, {vr(b+4,4)}")
    e("s_waitcnt lgkmcnt(0)")
    A.ds_done = len(A.ds) - 1
    stamp()
    e("s_barrier")
    lastmm()
    tailwork()
    e("s_branch L_post")
    lab("L_nosenet")
    e("s_nop 7")
    if PP & 1: e("s_setprio 1")
    A.vm, A.vm_done, wl[0], sl[0], A.ds, A.ds_done = list(sv[0]), sv[1], sv[2], sv[3], list(sv[4]), sv[5]
    for i in range(8): mmi(5, i)
    lastmm()
    pack(10); pack(11)
    tailwork()
    e("s_waitcnt lgkmcnt(0)")
    e("s_barrier")
    lab("L_post")
    A.ds_done = len(A.ds) - 1
    for el in range(2):
        A.lds(f"ds_read_b32 v{xf(el, 1, 2)}, v{aXr} offset:{32768 + el*256}", "x2")
    for tl in range(2):
        for u in range(2):
            A.lds(f"ds_read_b128 {vr(AJ + tl*8 + u*4, 4)}, v{aAr[tl]} offset:{u*16}", "ak")
    e(f"v_bfe_u32 v{XQ}, v0, 4, 2")
    e(f"v_lshlrev_b32 v{XQ}, 5, v{XQ}")
    for tl in range(2):
        e(f"v_sub_u32 v{aAr[tl]}, v{aAr[tl]}, v{XQ}")
        A.lds(f"ds_read2_b32 {vr(XQ + 4 + 2*tl, 2)}, v{aAr[tl]} offset0:6 offset1:14", "ak")
    def mms(u, part):
        ep = u >> 1
        tg = f"w{2*u + (1 if W1W and u else part)}"
        if tg in A.vm: A.vm_wait(tg)
        if tg in A.ds: A.ds_wait(tg)
        for x in range(2):
            for tl in range(2):
                mf16(TS[u & 1][part*4 + x*2 + tl], RING[(4*u + 2*part + x) % 8], XQ + x*8 + tl*4 if part else xf(2*ep + x, tl, 0))
    def xq(ep):
        tmp = TS[0][4]
        for x in range(2):
            for tl in range(2):
                src = xf(2*ep + x, tl, 0)
                for qq in range(3):
                    if OPS: e(f"v_dot2_f32_bf16 v{tmp + tl*6 + 2*qq}, v{src + qq}, v{AJ + tl*8 + 2*qq}, 0 op_sel:[0,1,0] op_sel_hi:[1,0,0]")
                    else: e(f"v_dot2_f32_bf16 v{tmp + tl*6 + 2*qq}, v{src + qq}, v{AKL[tl][qq]}, 0")
                    e(f"v_dot2_f32_bf16 v{tmp + tl*6 + 2*qq + 1}, v{src + qq}, v{AJ + tl*8 + 2*qq + 1}, 0")
            for tl in range(2):
                dst = XQ + x*8 + tl*4
                if ep == 0: e(f"v_cvt_pk_bf16_f32 v{dst + 3}, v{LF[tl][0][x]}, v{LF[tl][1][x]}")
                for qq in range(3):
                    e(f"v_cvt_pk_bf16_f32 v{dst + qq}, v{tmp + tl*6 + 2*qq}, v{tmp + tl*6 + 2*qq + 1}")
    def fin(u):
        ep, jt = u >> 1, u & 1
        S_ = TS[u & 1]
        for tl in range(2):
            for x in range(2):
                p, q_, a = S_[x*2 + tl], S_[4 + x*2 + tl], AJ + tl*8 + 4*jt
                for r in range(3 if jt else 4): e(f"v_fmac_f32 v{p+r}, v{q_+r}, v{a+r}")
            for r in range(3 if jt else 4):
                e(f"v_cvt_pk_bf16_f32 v{UH + tl*16 + (4*jt + r)*2 + (ep & 1)}, v{S_[tl] + r}, v{S_[2 + tl] + r}")
    def cq(hf):
        for tl in range(2):
            for t in range(7):
                base = aC6[tl] if t == 6 else (aC2[tl] if t >= 4 else aC[tl])
                off = 0 if t == 6 else ((t >> 1) & 1)*32768 + (t & 1)*4096
                A.lds(f"ds_read_b64 {vr(XF + tl*16 + 2*t, 2)}, v{base} offset:{off + 8*hf}", "cq")
    def diag(hf):
        A.ds_wait("cq")
        for k in range(4):
            for tl in range(2):
                mf16(ACC[tl], UH + tl*16 + 4*k, XF + tl*16 + 4*k, ACC[tl] if (hf or k) else None)
    def weave(ml, fl):
        k = 0; nm = sum(1 for m in ml if "v_mfma" in m); i = 0
        for m in ml:
            A.L.append(m)
            if "v_mfma" in m:
                i += 1
                tgt = i * len(fl) // nm
                while k < tgt:
                    A.L.append(fl[k]); k += 1
    for el in range(2, 8):
        A.lds(f"ds_read_b32 v{xf(el, 1, 2)}, v{aXr} offset:{32768 + el*256}", "x3")
    A.ds_wait("x2")
    mms(0, 0)
    A.ds_wait("ak")
    for tl in range(2):
        if not OPS:
            for qq in range(3): e(f"v_lshrrev_b32 v{AKL[tl][qq]}, 16, v{AJ + tl*8 + 2*qq}")
        for fi in range(2):
            for r in range(2): e(f"v_mul_f32 v{LF[tl][fi][r]}, v{LF[tl][fi][r]}, v{XQ + 4 + 2*tl + fi}")
    for u in range(8):
        ep, jt = u >> 1, u & 1
        cm(f"-- block ep {ep} jt {jt}")
        if jt == 0:
            stamp()
            if ep == 1: A.ds_wait("x3")
            with Cap() as cx: xq(ep)
            if PKZ and u:
                S_ = TS[1]
                for tl in range(2):
                    for x in range(2):
                        p, q_, a = S_[x*2 + tl], S_[4 + x*2 + tl], AJ + tl*8 + 4
                        e(f"v_pk_fma_f32 {vr(p,2)}, {vr(q_,2)}, {vr(a,2)}, {vr(p,2)}")
                A.L.extend(cx.l[:-6])
            else: A.L.extend(cx.l)
        with Cap() as c2:
            if u: fin(u - 1)
        if PKZ and u and jt == 0:
            keep = []; n = 0
            for x in c2.l:
                if "v_fmac" in x:
                    n += 1
                    if n % 3: continue
                keep.append(x)
            c2.l[:] = cx.l[-6:] + keep
        if DW and u == 5:
            fm = [x for x in c2.l if "v_fmac" in x]; cv = [x for x in c2.l if "v_fmac" not in x]
            with Cap() as c0: diag(0)
            weave(c0.l, fm)
            c2.l[:] = cv
        post = []
        if PK2 and jt == 1 and not (DW and u == 5):
            S_ = TS[0]
            with Cap() as cp:
                for x in range(2):
                    p, q_, a = S_[x*2 + 1], S_[4 + x*2 + 1], AJ + 8
                    e(f"v_pk_fma_f32 {vr(p+2,2)}, {vr(q_+2,2)}, {vr(a+2,2)}, {vr(p+2,2)}")
            l = list(c2.l)
            c2.l[:] = l[:14] + l[16:18] + l[20:22]
            post = cp.l + l[22:24]
        with Cap() as c1:
            if u: mms(u, 0)
            mms(u, 1)
        weave(c1.l, c2.l)
        for _ in range(4): wload()
        A.L.extend(post)
        if u == PPU and PP & 2:
            with Younger(): e("s_setprio 1")
        if u == PPU and PP & 4: e("s_setprio 0")
        if u == 3: cq(0)
        if u == 4 and not DW: diag(0)
        if u == 5: cq(1)
    e(f"s_and_b32 s{sT0}, s{sMB}, 0x400")
    e(f"v_add_u32 v{aRed}, s{sT0}, v{aRed}")
    e(f"v_xor_b32 v{aAr[0]}, 0x400, v{aRed}")
    if STAMPS: e(f"v_mov_b32 v{vTag2}, v{vPo}")
    e(f"s_lshl_b32 s{sT0}, s{sW}, 28")
    e(f"buffer_load_dwordx2 {vr(vPo,2)}, v{vHo}, {srd(S_WS)}, s{sT0} offen sc1")
    with Cap() as c2: fin(7)
    with Cap() as c0: diag(1)
    if FW == 2:
        S_ = TS[1]
        for tl in range(2):
            for x in range(2):
                p, q_, a = S_[x*2 + tl], S_[4 + x*2 + tl], AJ + tl*8 + 4
                e(f"v_pk_fma_f32 {vr(p,2)}, {vr(q_,2)}, {vr(a,2)}, {vr(p,2)}")
        keep = []; n = 0
        for x in c2.l:
            if "v_fmac" in x:
                n += 1
                if n % 3: continue
            keep.append(x)
        w_, m = c0.l[:-8], c0.l[-8:]
        A.L.extend(w_)
        weave(m[:4], keep)
        A.L.extend(m[4:])
    elif FW:
        w_, m = c0.l[:-8], c0.l[-8:]
        A.L.extend(w_)
        weave(m[:4], c2.l[:11])
        weave([m[4], m[6]], c2.l[11:])
        A.L.extend([m[5], m[7]])
    else: A.L.extend(c2.l + c0.l)
    stamp()
    e(f"s_cmp_lg_u32 s{sW}, 0")
    e(f"ds_write_b128 v{aRed}, {vr(ACC[0], 4)}")
    e(f"ds_write_b128 v{aAr[0]}, {vr(ACC[1], 4)}")
    e("s_cbranch_scc0 L_w0")
    e("s_waitcnt lgkmcnt(0)")
    e("s_barrier")
    e("s_branch L_end")
    lab("L_w0")
    P2 = 40
    if not RB: e(f"buffer_load_dwordx2 {vr(P2,2)}, v{vHo}, {srd(S_WS)}, 0 offen sc1")
    e(f"v_and_b32 v1, 31, v0")
    e(f"v_and_b32 v6, 15, v0")
    e(f"v_lshrrev_b32 v7, 2, v6")
    e(f"v_lshl_add_u32 v7, v7, 4, v6")
    e(f"v_lshlrev_b32 v7, 4, v7")
    e(f"v_and_b32 v6, 3, v0")
    e(f"v_lshl_add_u32 v7, v6, 2, v7")
    e(f"v_bfe_u32 v6, v0, 4, 1")
    e(f"v_lshl_add_u32 v7, v6, 10, v7")
    e(f"v_bfe_u32 v6, v0, 5, 1")
    e(f"v_lshl_add_u32 v7, v6, 13, v7")
    e(f"v_add_u32 v7, {R2}, v7")
    e(f"s_lshl1_add_u32 s{sT0}, s{sRG}, s{sHF}")
    e(f"s_lshl_b32 s{sT0}, s{sT0}, 6")
    e(f"v_lshlrev_b32 v9, 1, v1")
    e(f"s_lshl_b32 s{sT1}, s{sRG}, 2")
    cm("wait for both deep partials: a lane is done when its tag differs from the snapshot or its producer's arrival flag is set")
    e(f"s_mov_b32 s{sT3}, 0")
    if RB:
        e("s_waitcnt lgkmcnt(0)")
        e("s_barrier")
        e(f"buffer_load_dwordx2 {vr(P2,2)}, v{vHo}, {srd(S_WS)}, 0 offen sc1")
        for k in range(4): e(f"ds_read_b32 v{32 + k}, v7 offset:{2048*k}")
        e("s_waitcnt lgkmcnt(0)")
        e("v_add_f32 v32, v32, v33")
        e("v_add_f32 v34, v34, v35")
        e("v_add_f32 v32, v32, v34")
    lab("L_poll")
    e("s_waitcnt vmcnt(1)")
    e(f"v_cmp_eq_u32 vcc, v{vPo+1}, v{vTag}")
    e("s_cbranch_vccz L_got")
    if "noB" in X or "nopoll" in X: e("s_branch L_got")
    e(f"buffer_load_dwordx2 {vr(vPo,2)}, v{vHo}, {srd(S_WS)}, 0 offen sc1")
    e("s_waitcnt vmcnt(1)")
    e(f"v_cmp_eq_u32 vcc, v{P2+1}, v{vTag}")
    e("s_cbranch_vccz L_got2")
    e(f"buffer_load_dwordx2 {vr(P2,2)}, v{vHo}, {srd(S_WS)}, 0 offen sc1")
    e(f"s_add_u32 s{sT3}, s{sT3}, 1")
    e(f"s_and_b32 s{sT2}, s{sT3}, 15")
    e("s_cbranch_scc1 L_poll")
    cm("now and then: the write-through copy (producer on another die), and the flags (a partial was already there at the snapshot)")
    e("s_mov_b64 exec, 1")
    e(f"buffer_load_dword v{vPo+3}, off, {srd(S_DBG)}, s{sT1} sc1")
    e("s_waitcnt vmcnt(0)")
    e(f"v_readfirstlane_b32 s{sT2}, v{vPo+3}")
    e("s_mov_b64 exec, -1")
    e(f"s_bitcmp1_b32 s{sT2}, 1")
    e("s_cselect_b32 s6, 0, -1")
    e(f"s_bitcmp1_b32 s{sT2}, 17")
    e("s_cselect_b32 s7, 0, -1")
    e(f"s_mov_b32 s{sT2}, 0x10000")
    e(f"buffer_load_dwordx2 {vr(vPo,2)}, v{vHo}, {srd(S_WS)}, s{sT2} offen sc1")
    e("s_waitcnt vmcnt(0)")
    e(f"v_cmp_eq_u32 vcc, v{vPo+1}, v{vTag2}")
    e("s_and_b64 vcc, vcc, s[6:7]")
    e("s_cbranch_scc0 L_got")
    e(f"buffer_load_dwordx2 {vr(vPo,2)}, v{vHo}, {srd(S_WS)}, 0 offen sc1")
    e(f"buffer_load_dwordx2 {vr(P2,2)}, v{vHo}, {srd(S_WS)}, 0 offen sc1")
    e("s_branch L_poll")
    if RB:
        lab("L_got")
        e(f"v_add_f32 v32, v32, v{vPo}")
        e("s_branch L_got3")
        lab("L_got2")
        e(f"v_add_f32 v32, v32, v{P2}")
        lab("L_got3")
        stamp()
    else:
        lab("L_got")
        e(f"v_mov_b32 v8, v{vPo}")
        e("s_branch L_got3")
        lab("L_got2")
        e(f"v_mov_b32 v8, v{P2}")
        lab("L_got3")
        stamp()
        e("s_waitcnt lgkmcnt(0)")
        e("s_barrier")
        for k in range(4): e(f"ds_read_b32 v{32 + k}, v7 offset:{2048*k}")
        e("s_waitcnt lgkmcnt(2)")
        e("v_add_f32 v32, v32, v33")
        e("v_add_f32 v32, v32, v8")
        e("s_waitcnt lgkmcnt(0)")
        e("v_add_f32 v34, v34, v35")
        e("v_add_f32 v32, v32, v34")
    e("v_mov_b32 v33, v32")
    e("v_permlane32_swap_b32 v32, v33")
    e("v_add_f32 v4, v32, v33")
    e("v_cvt_pk_bf16_f32 v4, v4, v4")
    e("s_mov_b32 exec_hi, 0")
    e(f"buffer_store_short v4, v9, {srd(S_OUT)}, s{sT0} offen")
    if STAMPS:
        e("s_mov_b64 exec, -1")
    e("s_branch L_end")

NWS, NGS = 8, 4
WBASE, GBASE = 0, NWS*16384
B_RED = 4*16384
LEAD = P("LEAD", 8)

BST = {}
vW, vS, vIa, vGt = 1, 2, [4, 8], [12, 13]
def b_head():
    lab("L_B")
    cm("===== role B")
    if "noB" in X: e("s_branch L_exit")
    e(f"s_cmp_lt_u32 s{sW}, 4")
    e("s_cbranch_scc1 L_Bc")
    A.reset(); nst[0] = 0
    t0, t1, t2 = 14, 15, 16
    e("s_setprio 3")
    e(f"v_bfe_u32 v{t0}, v0, 4, 4")
    e(f"v_lshlrev_b32 v{t0}, 9, v{t0}")
    e(f"v_bfe_u32 v{t1}, v0, 4, 2")
    e(f"v_lshlrev_b32 v{t1}, 2, v{t1}")
    e(f"s_and_b32 s{sT0}, s{sW}, 2")
    e(f"v_xor_b32 v{t1}, v{t1}, v0")
    e(f"v_xor_b32 v{t1}, s{sT0}, v{t1}")
    e(f"v_and_b32 v{t1}, 15, v{t1}")
    e(f"v_lshl_add_u32 v{t0}, v{t1}, 4, v{t0}")
    e(f"s_lshl_b32 s{sT0}, s{sHF}, 8")
    e(f"v_add_u32 v{vW}, s{sT0}, v{t0}")
    e(f"s_and_b32 s{sMB}, s{sW}, 3")
    e(f"s_lshl_b32 s{sMB}, s{sMB}, 10")
    e(f"v_bfe_u32 v{t0}, v0, 3, 5")
    e(f"v_mul_u32_u24 v{t0}, 104, v{t0}")
    e(f"v_and_b32 v{t1}, 7, v0")
    e(f"v_lshl_add_u32 v{t0}, v{t1}, 4, v{t0}")
    e(f"s_mul_i32 s{sT1}, s{sRG}, {64*104}")
    assert LEAD == 8
    e(f"s_lshr_b32 s{sT2}, s2, 5")
    e(f"s_lshl_b32 s{sT0}, s{sT2}, 15")
    e(f"s_mov_b32 s{sT3}, 0")
    if BPF:
        e(f"v_bfe_u32 v{t1}, v0, 1, 4")
        e(f"v_bfe_u32 v{t2}, v0, 6, 2")
        e(f"v_lshl_add_u32 v{t1}, v{t2}, 4, v{t1}")
        e(f"v_lshlrev_b32 v{t1}, 9, v{t1}")
        e(f"v_and_b32 v{t2}, 1, v0")
        e(f"v_lshl_add_u32 v{t1}, v{t2}, 7, v{t1}")
        e(f"s_lshl_b32 s{sT2}, s{sHF}, 8")
        e(f"s_add_u32 s{sT2}, s{sT2}, s{sT0}")
        e(f"s_add_u32 s{sT2}, s{sT2}, {8*32768}")
    e("s_waitcnt lgkmcnt(0)")
    stamp()
    A.vmem(f"buffer_load_dwordx4 {vr(vIa[0],4)}, v{t0}, {srd(S_IDX)}, s{sT1} offen", "idx")
    A.vmem(f"buffer_load_dwordx4 {vr(vIa[1],4)}, v{t0}, {srd(S_IDX)}, s{sT1} offen offset:{32*104}", "idx")
    if W2PF:
        mksrd(S_W2); cpsrd(S_W2, 4)
        e(f"s_lshr_b32 s{sT2}, s{sMB}, 3")
        e("s_mov_b64 exec, 1")
        A.vmem(f"buffer_load_dword v{t2}, off, {srd(S_W2)}, s{sT2}", "pf")
        e("s_mov_b64 exec, -1")
    if BPF:
        e("s_mov_b32 exec_hi, 0")
        A.vmem(f"buffer_load_dword v{t2}, v{t1}, {srd(S_W1)}, s{sT2} offen", "pf")
        e("s_mov_b64 exec, -1")
    lab("L_lead")
    e(f"s_lshr_b32 s{sT2}, s{sT0}, 1")
    e(f"s_add_u32 m0, s{sT2}, s{sMB}")
    e(f"s_add_u32 s{sT3}, s{sT3}, 1")
    for n in range(4):
        e(f"buffer_load_dwordx4 v{vW}, {srd(S_W1)}, s{sT0} offen lds")
        if n < 3: e("s_addk_i32 m0, 0x1000")
        e(f"s_addk_i32 s{sT0}, 0x2000")
    e(f"s_and_b32 s{sT0}, s{sT0}, {8*32768 - 1}")
    e(f"s_cmp_lt_u32 s{sT3}, 8")
    e("s_cbranch_scc1 L_lead")
    for k in range(4*LEAD - LEAD): A.vm.append("lead")
    for f in range(LEAD): A.vm.append(f"w{f}")
    e("s_branch L_Bl2")
    BST["sv"] = (A.vm, A.ds, A.vm_done, A.ds_done, nst[0])

def role_b():
    A.vm, A.ds, A.vm_done, A.ds_done, nst[0] = BST["sv"]
    lab("L_Bl2")
    t1 = 15
    e(f"v_lshrrev_b32 v{t1}, 4, v0")
    e(f"v_xor_b32 v{t1}, v{t1}, v0")
    e(f"v_and_b32 v{t1}, 7, v{t1}")
    e(f"v_lshlrev_b32 v{vS}, 4, v{t1}")
    if STAMPS:
        rest_srds(); rest_srds2()
    if TOUCH == 2:
        for k in (4, 5, 6, 7):
            e(f"s_load_dword s{sT3}, s[{KT+2*k}:{KT+2*k+1}], 0")
    wq = [(f, n) for f in range(LEAD, 26) for n in range(4)]
    def wpiece():
        f, n = wq.pop(0)
        e(f"s_add_u32 m0, s{sMB}, {WBASE + (f % NWS)*16384 + n*4096}")
        e(f"s_mov_b32 s{sT0}, {f*32768 + n*8192}")
        A.vmem(f"buffer_load_dwordx4 v{vW}, {srd(S_W1)}, s{sT0} offen lds", f"w{f}")
    def gpiece(f):
        c = f >> 2
        for u in range(2):
            e(f"v_add_u32_dpp v{vGt[u]}, v{vIa[u] + (f & 3)}, v{vS} row_newbcast:{c} row_mask:0xf bank_mask:0x3")
        e(f"s_add_u32 m0, s{sMB}, {GBASE + (f % NGS)*8192}")
        for u in range(2):
            e(f"v_add_u32_dpp v{vGt[u]}, v{vIa[u] + (f & 3)}, v{vS} row_newbcast:{8+c} row_mask:0xf bank_mask:0xc")
        A.vmem(f"buffer_load_dwordx4 v{vGt[0]}, {srd(S_TAB)}, 0 offen lds", f"g{f}")
        e("s_addk_i32 m0, 0x1000")
        A.vmem(f"buffer_load_dwordx4 v{vGt[1]}, {srd(S_TAB)}, 0 offen lds", f"g{f}")
    A.vm_wait("idx")
    for u in range(2):
        for d in range(4): e(f"v_lshlrev_b32 v{vIa[u]+d}, 7, v{vIa[u]+d}")
    stamp()
    for f in range(NGS): gpiece(f)
    tot = len(wq); done = 0
    nsteps = 26 - NGS
    for f in range(26):
        A.vm_wait(f"g{f}"); A.vm_wait(f"w{f}")
        e("s_barrier")
        if f in (0, 6, 12, 18, 25): stamp()
        if f >= 1 and f - 1 + NGS < 26:
            tgt = f * tot // nsteps
            while done < tgt and wq and wq[0][0] <= f - 1 + NWS:
                wpiece(); done += 1
            gpiece(f - 1 + NGS)
    assert not wq
    e("s_branch L_end")
    lab("L_Bc")
    A.reset(); nst[0] = 0
    aEm = [1, 2]; aW = [[3, 4], [5, 6]]
    W2 = 176; ACC = 32
    EF = lambda st, ks, rt: 64 + st*32 + ks*16 + rt*4
    WFr = lambda st, ks, ct: 128 + st*16 + ks*8 + ct*4
    t0, t1, t2, t3 = 7, 9, 10, 11
    rest_srds()
    consts()
    e(f"v_and_b32 v{t0}, 15, v0")
    e(f"v_bfe_u32 v{t1}, v0, 4, 2")
    e(f"v_bfe_u32 v{t2}, v0, 1, 3")
    e(f"v_xor_b32 v{t2}, v{t2}, v{t1}")
    e(f"v_lshlrev_b32 v{t2}, 4, v{t2}")
    e(f"v_lshl_add_u32 v{t2}, v{t0}, 7, v{t2}")
    e(f"v_add_u32 v{aEm[0]}, {GBASE}, v{t2}")
    e(f"v_xor_b32 v{aEm[1]}, 64, v{aEm[0]}")
    e(f"v_bfe_u32 v{t0}, v0, 2, 2")
    e(f"v_lshl_add_u32 v{t2}, v{t1}, 3, v{t0}")
    e(f"v_lshlrev_b32 v{t2}, 8, v{t2}")
    e(f"v_xor_b32 v{t0}, s{sW}, v{t0}")
    e(f"v_lshl_add_u32 v{t2}, v{t0}, 6, v{t2}")
    e(f"v_bfe_u32 v{t0}, v0, 4, 1")
    e(f"v_lshl_add_u32 v{t2}, v{t0}, 5, v{t2}")
    e(f"v_and_b32 v{t0}, 3, v0")
    e(f"v_lshl_add_u32 v{aW[0][0]}, v{t0}, 3, v{t2}")
    e(f"v_xor_b32 v{aW[0][1]}, 32, v{aW[0][0]}")
    for ct in range(2): e(f"v_add_u32 v{aW[1][ct]}, 0x10000, v{aW[0][ct]}")
    e(f"s_lshl_b32 s{sT0}, s{sHF}, 8")
    e(f"s_lshl_b32 s{sT1}, s{sW}, 6")
    e(f"s_add_u32 s{sT0}, s{sT0}, s{sT1}")
    e(f"v_lshlrev_b32 v{t1}, 3, v{t1}")
    e("s_waitcnt lgkmcnt(0)")
    rest_srds2()
    e(f"s_mov_b32 s{sT2}, s{sT0}")
    if NPB:
        cm("weight prefetch into L2: 16 lines per wave and block")
        e(f"s_lshr_b32 s{sT0}, s2, 5")
        e(f"s_lshl1_add_u32 s{sT0}, s{sT0}, s{sHF}")
        e(f"s_lshl2_add_u32 s{sT0}, s{sT0}, s{sW}")
        e(f"s_lshl_b32 s{sT0}, s{sT0}, 11")
        e(f"v_and_b32 v{t0}, 15, v0")
        e(f"v_lshl_add_u32 v{t0}, v{t0}, 7, s{sT0}")
        e(f"v_bfe_u32 v{t2}, v0, 4, 2")
        e(f"v_lshl_add_u32 v{t0}, v{t2}, 17, v{t0}")
        nw1 = min(NPB, 6 - NPF0)
        for b0 in range(0, nw1, 4):
            n = min(4, nw1 - b0)
            if n < 4: e(f"s_mov_b64 exec, {hex((1 << (16*n)) - 1) if n < 3 else '-1'}")
            if n == 3: e("s_mov_b32 exec_hi, 0xffff")
            if n == 2: e("s_mov_b32 exec_lo, -1"); e("s_mov_b32 exec_hi, 0")
            e(f"s_mov_b32 s{sT0}, {65536 + (NPF0 + b0)*131072}")
            e(f"buffer_load_dword v{t3}, v{t0}, {srd(S_W1)}, s{sT0} offen")
            e("s_mov_b64 exec, -1")
    for i in range(32): e(f"v_mov_b32 v{ACC+i}, 0")
    C0 = 12
    e(f"v_mov_b32 v{C0}, s{sC0}"); e(f"v_mov_b32 v{C0+1}, s{sC0}")
    e(f"v_mov_b32 v{C0+2}, s{sC1}"); e(f"v_mov_b32 v{C0+3}, s{sC1}")
    W2R = 160
    vHo, vBt, vBt2 = 172, 175, 193
    e(f"v_lshlrev_b32 v{vHo}, 3, v0")
    e(f"s_lshl1_add_u32 s{sT3}, s{sRG}, s{sHF}")
    e(f"s_lshl_b32 s{sT3}, s{sT3}, 9")
    e(f"s_lshl_b32 s{sT0}, s{sW}, 28")
    e(f"s_add_u32 s{sT3}, s{sT3}, s{sT0}")
    def late_loads():
        for q in range(2):
            A.vmem(f"buffer_load_dwordx2 {vr(W2R + 2*q, 2)}, v{t1}, {srd(S_W2)}, s{sT2} offen offset:{32*q}", "w2")
        A.vmem(f"buffer_load_dword v{vBt}, v{vHo}, {srd(S_WS)}, s{sT3} offen offset:4 sc1", "tag")
        e(f"s_add_u32 s{sMB}, s{sT3}, 0x10000")
        A.vmem(f"buffer_load_dword v{vBt2}, v{vHo}, {srd(S_WS)}, s{sMB} offen offset:4 sc1", "tag")
        e(f"s_lshl_b32 s{sT0}, s{sW}, 6")
        e(f"s_add_u32 s{sT0}, s{sT0}, s{sRG}")
        e(f"s_lshl_b32 s{sT0}, s{sT0}, 2")
        e("s_mov_b64 exec, 1")
        A.vmem(f"buffer_load_dword v{vHo+1}, off, {srd(S_DBG)}, s{sT0} sc1", "afl")
        e("s_mov_b64 exec, -1")
    def w2_unpack():
        A.vm_wait("w2")
        for d in range(4):
            e(f"v_lshlrev_b32 v{W2 + 2*d}, 16, v{W2R + d}")
            e(f"v_and_b32 v{W2 + 2*d + 1}, s{sMSK}, v{W2R + d}")
    stamp()
    def rdl(f, ks):
        st = f & 1; ws = f % NWS
        out = []
        def w(ct, u): out.append((f"ds_read_b64_tr_b16 {vr(WFr(st, ks, ct) + 2*u, 2)}, v{aW[ws >> 2][ct]} offset:{(ws & 3)*16384 + ks*8192 + u*1024}", f"r{f}_{ks}a"))
        def em(rt, tag): out.append((f"ds_read_b128 {vr(EF(st, ks, rt), 4)}, v{aEm[ks]} offset:{(f % NGS)*8192 + rt*2048}", tag))
        w(0, 0); w(0, 1); w(1, 0); w(1, 1); em(0, f"r{f}_{ks}a"); em(1, f"r{f}_{ks}b"); em(2, f"r{f}_{ks}c"); em(3, f"r{f}_{ks}d")
        return out
    def mm1(f, ks, rt, ct):
        st = f & 1
        if "bnomm" in X: return
        if "snake" in X and rt & 1: ct ^= 1
        if "rtin" in X:
            k_ = rt*2 + ct; rt, ct = (k_ & 3) if k_ < 4 else 3 - (k_ & 3), k_ >> 2
        d = ACC + rt*8 + ct*4
        if "swapab" in X: mf16(d, EF(st, ks, rt), WFr(st, ks, ct), d)
        else: mf16(d, WFr(st, ks, ct), EF(st, ks, rt), d)
    for f in range(26):
        cm(f"-- B step {f}")
        e("s_barrier")
        if f in (0, 6, 12, 18, 25): stamp()
        if "bidle" in X:
            if f == 23: late_loads()
            continue
        r0, r1 = rdl(f, 0), rdl(f, 1)
        if BLAG:
            rr = r0 + r1
            for k in range(16):
                if f: mm1(f - 1, k >> 3, (k >> 1) & 3, k & 1)
                for _ in range(2):
                    if rr: A.lds(*rr.pop(0))
            if f == LL: late_loads()
            A.ds_all()
            continue
        for k in range(8):
            A.lds(*r0[k])
            if k >= 4 and f: mm1(f - 1, 1, (k - 4) >> 1, k & 1)
        for k in range(4):
            if f: mm1(f - 1, 1, 2 + (k >> 1), k & 1)
            A.lds(*r1[k])
        for k in range(8):
            if "rtin" in X:
                if k < 4: A.ds_wait(f"r{f}_0" + "abcd"[k])
            elif not k & 1: A.ds_wait(f"r{f}_0" + "abcd"[k >> 1])
            mm1(f, 0, k >> 1, k & 1)
            if k < 4: A.lds(*r1[4 + k])
        if f == LL: late_loads()
        A.ds_all()
    if BLAG:
        for k in range(16): mm1(25, k & 1, k >> 2, (k >> 1) & 1)
    else:
        for k in range(8): mm1(25, 1, k >> 1, k & 1)
    w2_unpack()
    stamp()
    S = 164
    TT = 64
    for hf in range(2):
        ls = []
        for p in range(8):
            rt = 2*hf + (p >> 2); pp = p & 3
            x = ACC + rt*8 + 2*pp; t = TT + 2*p
            with Cap() as c:
                e(f"v_pk_mul_f32 {vr(t,2)}, {vr(x,2)}, {vr(x,2)}")
                e(f"v_pk_fma_f32 {vr(t,2)}, {vr(t,2)}, {vr(C0+2,2)}, {vr(C0,2)}")
                e(f"v_pk_mul_f32 {vr(t,2)}, {vr(t,2)}, {vr(x,2)}")
                e(f"v_exp_f32 v{t}, v{t}")
                e(f"v_exp_f32 v{t+1}, v{t+1}")
                e(f"v_pk_mul_f32 {vr(x,2)}, {vr(x,2)}, {vr(W2 + 2*pp,2)}")
                e(f"v_pk_add_f32 {vr(t,2)}, {vr(t,2)}, 1.0 op_sel_hi:[1,0]")
                e(f"v_rcp_f32 v{t}, v{t}")
                e(f"v_rcp_f32 v{t+1}, v{t+1}")
                if pp == 0: e(f"v_pk_mul_f32 {vr(S + 2*rt,2)}, {vr(x,2)}, {vr(t,2)}")
                else: e(f"v_pk_fma_f32 {vr(S + 2*rt,2)}, {vr(x,2)}, {vr(t,2)}, {vr(S + 2*rt,2)}")
            ls.append(c.l)
        zipl(ls)
    for rt in range(4): e(f"v_add_f32 v{S + 2*rt}, v{S + 2*rt}, v{S + 2*rt + 1}")
    e(f"v_lshlrev_b32 v1, 2, v0")
    e(f"v_add_u32 v1, {B_RED}, v1")
    e(f"v_permlane32_swap_b32 v{S}, v{S+4}")
    e(f"v_permlane32_swap_b32 v{S+2}, v{S+6}")
    e(f"v_add_f32 v{S}, v{S}, v{S+4}")
    e(f"v_add_f32 v{S+2}, v{S+2}, v{S+6}")
    e(f"v_permlane16_swap_b32 v{S}, v{S+2}")
    e(f"v_add_f32 v{S}, v{S}, v{S+2}")
    e(f"ds_write_b32 v1, v{S}")
    e("s_waitcnt lgkmcnt(0)")
    e("s_barrier")
    stamp()
    e(f"s_cmp_lg_u32 s{sW}, 0")
    e("s_cbranch_scc1 L_end")
    for k in range(1, 4): e(f"ds_read_b32 v{16+k}, v1 offset:{256*k}")
    e(f"s_lshl_b32 s{sT1}, s{sRG}, 2")
    e(f"s_lshl_b32 s{sT2}, s{sHF}, 4")
    e(f"s_lshl_b32 s{sT2}, 2, s{sT2}")
    e(f"v_mov_b32 v6, s{sT2}")
    e("s_waitcnt vmcnt(0) lgkmcnt(0)")
    e(f"v_add_u32 v{vBt}, 1, v{vBt}")
    e(f"v_add_u32 v{vBt2}, 1, v{vBt2}")
    e(f"v_add_f32 v{S}, v{S}, v17")
    e(f"v_add_f32 v18, v18, v19")
    e(f"v_add_f32 v{vBt-1}, v{S}, v18")
    e(f"buffer_store_dwordx2 {vr(vBt-1,2)}, v{vHo}, {srd(S_WS)}, s{sT3} offen")
    e(f"v_mov_b32 v{vBt2-1}, v{vBt-1}")
    e(f"buffer_store_dwordx2 {vr(vBt2-1,2)}, v{vHo}, {srd(S_WS)}, s{sMB} offen sc1")
    e(f"v_readfirstlane_b32 s{sT0}, v{vHo+1}")
    e(f"s_and_b32 s{sT0}, s{sT0}, 0x01000100")
    e(f"s_cmp_eq_u32 s{sT0}, 0x01000100")
    e("s_cbranch_scc1 L_end")
    e("s_waitcnt vmcnt(0)")
    e("s_mov_b64 exec, 1")
    e(f"buffer_atomic_or v6, off, {srd(S_DBG)}, s{sT1} sc1")
    if STAMPS: e("s_mov_b64 exec, -1")

def fin():
    lab("L_end")
    if STAMPS:
        e("s_waitcnt vmcnt(0)")
        e("s_memtime s[100:101]")
        e("s_memrealtime s[72:73]")
        e("s_waitcnt lgkmcnt(0)")
        e(f"v_writelane_b32 v{VST[0]}, s4, 0")
        e(f"v_writelane_b32 v{VST[0]}, s70, 32")
        e(f"v_writelane_b32 v{VST[0]}, s100, 25")
        e(f"v_writelane_b32 v{VST[0]}, s72, 57")
        e(f"s_lshl3_add_u32 s{sT0}, s2, s{sW}")
        e(f"s_lshl_b32 s{sT0}, s{sT0}, 8")
        e(f"s_add_u32 s{sT0}, s{sT0}, 0x400000")
        e("v_and_b32 v0, 63, v0")
        e("v_lshlrev_b32 v0, 2, v0")
        e(f"buffer_store_dword v{VST[0]}, v0, {srd(S_WS)}, s{sT0} offen")
    lab("L_exit")
    e("s_endpgm")
    lab("L_codeend")

def main():
    A.raw("; Kernarg: in0 idx, in1 table, in2 se_w1, in3 se_w2, in4 w_bi, in5 w_cross, in6 w_deep1, in7 w_deep2, out, debug, ws")
    A.raw(f"; @launch grid=(256,1,1) block=(512,1,1) lds={LDS_TOTAL}")
    for t in ['.amdgcn_target "amdgcn-amd-amdhsa--gfx950"', ".text", f".globl {KN}", ".p2align 12", f".type {KN},@function", f"{KN}:"]: A.raw(t)
    entry()
    role_a()
    role_b()
    fin()
    for t in ['.section .rodata,"a"', ".p2align 6", f".amdhsa_kernel {KN}", "  .amdhsa_next_free_vgpr 256", "  .amdhsa_next_free_sgpr 102",
              "  .amdhsa_accum_offset 256", "  .amdhsa_group_segment_fixed_size 0", "  .amdhsa_kernarg_size 88", "  .amdhsa_user_sgpr_count 2",
              "  .amdhsa_user_sgpr_kernarg_segment_ptr 1", "  .amdhsa_system_sgpr_workgroup_id_x 1", ".end_amdhsa_kernel"]: A.raw(t)
    if "nodot" in X:
        import re
        A.L = [re.sub(r"v_dot2c?_f32_bf16 (v\d+), (v\d+), (v\d+).*", r"v_cvt_pk_bf16_f32 \1, \2, \3", x) for x in A.L]
    for fl in ("sc1", "sc0", "nt"):
        if "bw" + fl in X: A.L = [x.replace(" offen lds", f" offen {fl} lds") if f"v{vW}, {srd(S_W1)}" in x else x for x in A.L]
        if "bg" + fl in X: A.L = [x.replace(" offen lds", f" offen {fl} lds") if (f"v12, {srd(S_TAB)}" in x or f"v13, {srd(S_TAB)}" in x) else x for x in A.L]
    out = autonop([x for x in A.L if x is not None])
    open(sys.argv[1], "w").write("\n".join(out) + "\n")
main()
```

```python
import os, sys, math
sys.path.insert(0, os.path.dirname(os.path.abspath(__file__)))
from asmlib import *

STAMPS = int(os.environ.get("STAMPS", "0"))
def P(name, d): return int(os.environ.get(name, d))
SWZ = P("SWZ", 2); SKEW = P("SKEW", 0); RSLEEP = P("RSLEEP", 8); RATOM = P("RATOM", 0)
KN = "standalone__deep_cross_fibinet__recsys_kernel"
A = Asm(); e = A.e; lab = A.lab; cm = A.cm

S_IDX, S_TAB, S_W1, S_WC, S_WBI, S_SW1, S_SW2, S_W2, S_OUT, S_DBG, S_WS = [8 + 4*i for i in range(11)]
SIZE = {S_IDX: 4096*104, S_TAB: 100000*128, S_W1: 1664*512, S_WC: 86528*2, S_WBI: 8192, S_SW1: 676, S_SW2: 676, S_W2: 512,
        S_OUT: 8192, S_DBG: 256, S_WS: 1 << 28}
sW, sRG, sHF, sX16 = 52, 53, 54, 55
sT0, sT1, sT2, sT3 = 56, 57, 58, 59
sMB, sMB2, sK6, sM6 = 60, 61, 62, 63
sMa, sMa3, sMb, sKa3 = 6, 7, 3, 55
sLO, sHI, sC0, sC1, sMSK, sNL = 64, 65, 66, 67, 68, 69
KT = 84
def srd(b): return f"s[{b}:{b+3}]"

nst = [0]
FS = P("FS", 6)
fst = [0]
def fstamp(force=False):
    if STAMPS != 3 or (FS == -2 and not force): return
    k = fst[0]; fst[0] += 1
    e("s_memtime s[100:101]")
    e("s_waitcnt lgkmcnt(0)")
    e(f"v_writelane_b32 v{VST[0]}, s100, {k + 1}")
    A.ds_done = len(A.ds) - 1
def stamp():
    if STAMPS != 1: return
    k = nst[0]; nst[0] += 1
    assert k < 24
    e("s_memtime s[100:101]")
    e("s_waitcnt lgkmcnt(0)")
    e(f"v_writelane_b32 v{VST[0]}, s100, {k + 1}")
    e("s_memrealtime s[100:101]")
    e("s_waitcnt lgkmcnt(0)")
    e(f"v_writelane_b32 v{VST[0]}, s100, {k + 33}")
    A.ds_done = len(A.ds) - 1
VST = [26]

def mf16(d, a, b, c=None):
    e(f"v_mfma_f32_16x16x32_bf16 {vr(d,4)}, {vr(a,4)}, {vr(b,4)}, {'0' if c is None else vr(c,4)}")
def mf32(d, a, b, c=None):
    e(f"v_mfma_f32_32x32x16_bf16 {vr(d,16)}, {vr(a,4)}, {vr(b,4)}, {'0' if c is None else vr(c,16)}")

def mksrd(b):
    e(f"s_mov_b32 s{b+2}, {SIZE[b]}")
    e(f"s_mov_b32 s{b+3}, 0x00020000")
def cpsrd(b, k):
    e(f"s_mov_b64 s[{b}:{b+1}], s[{KT+2*k}:{KT+2*k+1}]")

def entry():
    e("s_cmp_ge_u32 s2, 256")
    e("s_cbranch_scc1 L_exit")
    if SKEW:
        cm("diagnostic: start one group late")
        e("s_and_b32 s3, s2, 7")
        e(f"s_cmp_lt_u32 s3, {P('SKG', 4)}")
        e("s_cbranch_scc1 L_nosk")
        for _ in range(SKEW): e("s_sleep 16")
        lab("L_nosk")
    if STAMPS:
        e("s_memtime s[4:5]")
        e("s_memrealtime s[70:71]")
    e(f"s_load_dwordx2 s[{S_IDX}:{S_IDX+1}], s[0:1], 0")
    e(f"s_load_dwordx2 s[{S_W1}:{S_W1+1}], s[0:1], 48")
    e(f"s_load_dwordx2 s[{S_TAB}:{S_TAB+1}], s[0:1], 8")
    e(f"s_load_dwordx8 s[{KT}:{KT+7}], s[0:1], 16")
    e(f"s_load_dwordx8 s[{KT+8}:{KT+15}], s[0:1], 56")
    if SWZ:
        cm("spread the two roles over the shader engines: swap bit 4 with a higher bit of the workgroup id")
        e(f"s_lshr_b32 s{sT0}, s2, {SWZ}")
        e(f"s_xor_b32 s{sT0}, s{sT0}, s2")
        e(f"s_bfe_u32 s{sT0}, s{sT0}, 0x10004")
        e(f"s_mul_i32 s{sT0}, s{sT0}, {0x10 | (0x10 << SWZ)}")
        e(f"s_xor_b32 s2, s2, s{sT0}")
    e("v_lshrrev_b32 v1, 6, v0")
    e(f"s_lshr_b32 s{sT0}, s2, 5")
    e(f"v_readfirstlane_b32 s{sW}, v1")
    e(f"s_and_b32 s{sT1}, s2, 7")
    e(f"s_lshl3_add_u32 s{sRG}, s{sT0}, s{sT1}")
    e(f"s_bfe_u32 s{sHF}, s2, 0x10003")
    if CPF:
        cm("pull the kernel's code into L2: one 128-byte line per wave")
        e(f"s_getpc_b64 s[{S_WC}:{S_WC+1}]")
        lab("L_pc")
        e(f"s_mov_b32 s{S_WC+2}, L_codeend-L_pc")
        e(f"s_mov_b32 s{S_WC+3}, 0x00020000")
        e(f"s_andn2_b32 s{sT0}, s2, 7")
        e(f"s_add_u32 s{sT0}, s{sT0}, s{sW}")
        e(f"s_lshl_b32 s{sT0}, s{sT0}, 7")
        e("s_mov_b64 exec, 1")
        e(f"buffer_load_dword v8, off, {srd(S_WC)}, s{sT0}")
        e("s_mov_b64 exec, -1")
    mksrd(S_IDX); mksrd(S_W1); mksrd(S_TAB)
    if P("DELAY", 0):
        cm("diagnostic: delay the workgroups with (s2 & mask) == value")
        e(f"s_and_b32 s3, s2, {P('DMASK', 16)}")
        e(f"s_cmp_lg_u32 s3, {P('DVAL', 0)}")
        e("s_cbranch_scc1 L_nodl")
        for _ in range(P("DELAY", 0)): e("s_sleep 64")
        lab("L_nodl")
    e("s_bitcmp1_b32 s2, 4")
    e("s_cbranch_scc1 L_B")

def rest_srds():
    for b in (S_SW1, S_SW2, S_WBI, S_WC, S_W2, S_OUT, S_DBG, S_WS): mksrd(b)
def rest_srds2():
    for k, b in enumerate((S_SW1, S_SW2, S_WBI, S_WC, S_W2, S_OUT, S_DBG, S_WS)): cpsrd(b, k)

def consts():
    c0 = -2.0 * math.sqrt(2.0 / math.pi) * math.log2(math.e)
    e(f"s_mov_b32 s{sLO}, 0x05040100")
    e(f"s_mov_b32 s{sHI}, 0x07060302")
    e(f"s_mov_b32 s{sC0}, {fbits(c0)}")
    e(f"s_mov_b32 s{sC1}, {fbits(c0 * 0.044715)}")
    e(f"s_mov_b32 s{sMSK}, 0xffff0000")
    e(f"s_mov_b32 s{sNL}, {fbits(-math.log2(math.e))}")

R0, R1, R2 = 0, 53248, 106496
MISC = 147456
L_WBI, L_SE1, L_SE2, L_AV = MISC - 8192, MISC + 8192, MISC + 9216, MISC + 10240
LDS_TOTAL = 163840
L_CNT = LDS_TOTAL - 64
vSw, vI, vG, vPf, vDum = 1, 2, [6, 9], 7, 8
sMG = 78
aE = [[10, 11], [12, 13]]
aC, aC6, aC2 = [14, 15], [16, 17], [22, 23]
vJ = [18, 19]
vFl, vPw = 22, 23
WFB = 0x40000
L_PST = R2
aAw = 28; aAr = [29, 30]; aRed = 31; sSt = 7
vTag2 = 26 if not STAMPS else 28
vHo, vTag, vPo = 20, 21, 24
XF, CAP, RAW, WF, T = 32, 96, 152, 180, 196
AF, DD, WB, ZF, SE1F, SE2F = T, WF, RAW, RAW + 8, RAW + 12, RAW + 16
RING = [96, 100, 104, 108, 112, 116, RAW + 20, RAW + 24]
UH, XQ, AJ = 120, RAW, WF
TS = [[T + 4*i for i in range(8)], [228, 232, 236, 240, 244, 248, 252, RAW + 16]]
ACC = [2, 10]
IMG = R2
aXw, aXr = 27, 25
ONES, DZ = CAP + 32, RAW + 24
AKL = [[1, 6, 7], [8, 9, 27]]
LF = [[[2, 3], [4, 5]], [[10, 11], [12, 13]]]
def xf(el, t, q): return XF + el*8 + t*4 + q
GAHEAD = P("GAHEAD", 6)
G0 = P("G0", 5)
TOUCH = P("TOUCH", 0)
CPF = P("CPF", 1)
X = os.environ.get("X", "").split(",")
NPF0 = P("NPF0", 2)
PFAT = P("PFAT", 9)
SPEC = P("SPEC", 14)
NPB = 0
BPF = P("BPF", 0)
PF0 = 16 if BPF else 8
FLD = P("FLD", 7)
FSIG = P("FSIG", 2)
FCHK = P("FCHK", 10)
ABAR = P("ABAR", 3)
LATE0 = P("LATE0", 1)
EVEN = P("EVEN", 0)
PRIO = P("PRIO", 0)
W2PF = P("W2PF", 1)
PP = P("PP", 0)
PPU = P("PPU", 5)
DW = P("DW", 1)
W1W = P("W1W", 1)
OPS = 0
PKZ = P("PKZ", 1)
FW = P("FW", 2)
RB = P("RB", 0)
PK2 = P("PK2", 0)
MERGE = P("MERGE", 1) and FCHK != 12
BLAG = P("BLAG", 0)
LL = P("LL", 23)
DBLST = P("DBLST", 0)
NST = P("NST", 0)
NPS = P("NPS", 2)
SPF = P("SPF", -1)
PFB = [(S_W1, 512 + 1024*k) for k in range(6)] + [(S_WC, 0), (S_WC, 1024)]

def a_gaddr(k, h):
    g = vG[k & 1]
    def one(c, r):
        if h == 0: e(f"v_add_u32_dpp v{g}, v{r}, v{vSw} row_newbcast:{c} row_mask:0xf bank_mask:0x3")
        else: e(f"v_add_u32_dpp v{g}, v{r}, v{vSw} row_newbcast:{8+c} row_mask:0xf bank_mask:0xc")
    if k < 12: one(2*(k >> 2), vI + (k & 3))
    else: one(6, vI)
def a_gm0(k):
    if k < 12: e(f"s_add_u32 m0, s{sMG}, {(8*(k >> 2) + (k & 3))*4096}")
    else: e(f"s_add_u32 m0, s{sMB}, {24*4096}")
def a_gissue(k):
    A.vmem(f"buffer_load_dwordx4 v{vG[k & 1]}, {srd(S_TAB)}, 0 offen lds", f"g{k}")
def a_gather(k):
    a_gaddr(k, 0)
    a_gm0(k)
    a_gaddr(k, 1)
    a_gissue(k)

def gelu(dst, x, t0, vc0):
    e(f"v_mul_f32 v{t0}, v{x}, v{x}")
    e(f"v_fma_f32 v{t0}, v{t0}, s{sC1}, v{vc0}")
    e(f"v_mul_f32 v{t0}, v{t0}, v{x}")
    e(f"v_exp_f32 v{t0}, v{t0}")
    e(f"v_add_f32 v{t0}, 1.0, v{t0}")
    e(f"v_rcp_f32 v{t0}, v{t0}")
    e(f"v_mul_f32 v{dst}, v{x}, v{t0}")

def zipl(lists):
    n = max(len(x) for x in lists)
    for i in range(n):
        for x in lists:
            if i < len(x): A.L.append(x[i])
class Cap:
    def __enter__(s): s.sv = A.L; A.L = []; s.l = A.L; return s
    def __exit__(s, *a): A.L = s.sv

ob = [0]
class Older:
    def __enter__(s):
        ob[0] += 1; s.n = ob[0]
        e(f"s_cmp_ge_u32 s{sW}, 4"); e(f"s_cbranch_scc1 L_o{s.n}")
    def __exit__(s, *a): lab(f"L_o{s.n}")
class Younger:
    def __enter__(s):
        ob[0] += 1; s.n = ob[0]
        e(f"s_cmp_lt_u32 s{sW}, 4"); e(f"s_cbranch_scc1 L_o{s.n}")
    def __exit__(s, *a): lab(f"L_o{s.n}")

def setexec(m32):
    e(f"s_mov_b32 exec_lo, {m32:#x}")
    e(f"s_mov_b32 exec_hi, {m32:#x}")

def role_a():
    A.reset()
    U, AK, ACCP = 228, 236, 252
    t0, t1, t2, t3, t4, t5 = U, U+1, U+2, U+3, U+4, U+5
    L15, G, aWb, GP, R01 = CAP + 51, CAP + 52, CAP + 53, CAP + 54, CAP + 55
    aS1, aS1t, aS2 = CAP + 48, CAP + 49, CAP + 50
    PA = CAP
    sKb, sJt, sWF, sPc = sM6, 55, sK6, 3
    cm("===== role A")
    e(f"v_bfe_u32 v{t0}, v0, 3, 5")
    e(f"v_mul_u32_u24 v{t0}, 104, v{t0}")
    e(f"v_and_b32 v{t1}, 7, v0")
    e(f"v_lshl_add_u32 v{t0}, v{t1}, 4, v{t0}")
    e(f"v_lshrrev_b32 v{t2}, 8, v0")
    e(f"v_lshl_add_u32 v{t0}, v{t2}, 4, v{t0}")
    cm("waves 4..7 read 16 bytes further; their lane 6 reads from field 25 instead")
    e(f"v_mul_u32_u24 v{t2}, 12, v{t2}")
    setexec(0x40404040)
    e(f"v_sub_u32 v{t0}, v{t0}, v{t2}")
    e("s_mov_b64 exec, -1")
    e(f"s_lshl1_add_u32 s{sT2}, s{sRG}, s{sHF}")
    e(f"s_mul_i32 s{sT2}, s{sT2}, {32*104}")
    e(f"s_lshl_b32 s{sMB}, s{sW}, 10")
    cm("producers (wg & 4 == 0): piece of w_cross, task = (part, jt, kb, g'); wave t loads line i(t) for 4 columns (lanes 0..31)")
    sG, sNP = 79, 82
    e(f"s_and_b32 s{sG}, s{sRG}, 3")
    e(f"s_bfe_u32 s{sKb}, s{sRG}, 0x10003")
    e(f"s_lshl1_add_u32 s{sKb}, s{sKb}, s{sHF}")
    e(f"s_bfe_u32 s{sJt}, s{sRG}, 0x10004")
    e(f"s_and_b32 s{sNP}, s{sRG}, 4")
    e(f"s_lshl_b32 s{sNP}, s{sNP}, 26")
    e(f"v_bfe_u32 v{t1}, v0, 4, 1")
    e(f"v_bfe_u32 v{t2}, v0, 3, 1")
    e(f"v_lshl_add_u32 v{t1}, v{t1}, 3, v{t2}")
    e(f"s_lshl3_add_u32 s{sT0}, s{sJt}, s{sG}")
    e(f"s_lshl_b32 s{sT0}, s{sT0}, 1")
    e(f"v_add_u32 v{t1}, s{sT0}, v{t1}")
    e(f"s_add_u32 s{sT0}, s{sG}, 24")
    e(f"v_min_u32 v{t1}, s{sT0}, v{t1}")
    e(f"v_and_b32 v{t2}, 7, v0")
    e(f"v_lshl_add_u32 v{t1}, v{t1}, 3, v{t2}")
    e(f"v_lshlrev_b32 v{t1}, 4, v{t1}")
    e(f"s_lshr_b32 s{sT0}, s{sW}, 1")
    e(f"s_lshl2_add_u32 s{sT0}, s{sT0}, s{sKb}")
    e(f"s_min_u32 s{sT0}, s{sT0}, 12")
    e(f"s_and_b32 s{sT1}, s{sW}, 1")
    e(f"s_lshl1_add_u32 s{sT0}, s{sT0}, s{sT1}")
    e(f"s_lshr_b32 s{sT1}, s{sRG}, 5")
    e(f"s_mul_i32 s{sT1}, s{sT1}, 26")
    e(f"s_add_u32 s{sT0}, s{sT0}, s{sT1}")
    e(f"s_mul_i32 s{sT0}, s{sT0}, 3328")
    e(f"s_add_u32 s{sPc}, s{sT0}, s{sNP}")
    e(f"s_mov_b32 s{S_SW2+2}, {SIZE[S_WC]}")
    e(f"s_mov_b32 s{S_SW2+3}, 0x00020000")
    e(f"s_lshr_b32 s{sT1}, s{sMB}, 1")
    e(f"s_add_u32 m0, s{sT1}, {L_PST}")
    e(f"s_lshr_b32 s6, s2, 5")
    e(f"s_lshl1_add_u32 s6, s6, s{sHF}")
    e("s_waitcnt lgkmcnt(0)")
    A.vmem(f"buffer_load_dwordx4 {vr(vI,4)}, v{t0}, {srd(S_IDX)}, s{sT2} offen", "idx")
    cpsrd(S_SW2, 3)
    fstamp()
    e("s_mov_b32 exec_hi, 0")
    A.vmem(f"buffer_load_dwordx4 v{t1}, {srd(S_SW2)}, s{sPc} offen lds", "pc")
    e("s_mov_b64 exec, -1")
    mksrd(S_WBI); cpsrd(S_WBI, 2)
    e(f"v_lshlrev_b32 v{t3}, 4, v0")
    e(f"s_add_u32 m0, s{sMB}, {L_WBI}")
    e(f"s_lshl_b32 s{sT0}, s6, 13")
    A.vmem(f"buffer_load_dwordx4 v{t3}, {srd(S_WBI)}, 0 offen lds", "sm")
    e(f"v_and_b32 v{t2}, 63, v0")
    e(f"v_lshl_add_u32 v{vPf}, v{t2}, 7, s{sT0}")
    e(f"s_sub_u32 s{sT1}, s{sW}, {8 - NPF0}")
    e(f"s_lshl_b32 s{sT1}, s{sT1}, 17")
    e(f"s_add_u32 s{sT1}, s{sT1}, s{sT0}")
    e(f"s_add_u32 s{sT1}, s{sT1}, {PF0*32768}")
    e(f"s_cmp_lt_u32 s{sW}, {8 - NPF0}")
    e(f"s_cselect_b32 s{sT1}, 0x7f000000, s{sT1}")
    e(f"s_cmp_eq_u32 s{sW}, 0")
    e(f"s_cselect_b64 s[{S_SW1}:{S_SW1+1}], s[{KT}:{KT+1}], s[{KT+2}:{KT+3}]")
    e(f"s_min_u32 s{sT0}, s{sMB}, 2048")
    e(f"s_add_u32 m0, s{sT0}, {L_SE1}")
    e(f"s_cmp_lt_u32 s{sW}, 2")
    e(f"s_cselect_b64 s[{S_SW1}:{S_SW1+1}], s[{S_SW1}:{S_SW1+1}], s[{S_W1}:{S_W1+1}]")
    e(f"s_cselect_b32 s{S_SW1+2}, 676, s{S_W1+2}")
    e(f"s_cselect_b32 s{sT1}, 0, s{sT1}")
    e(f"s_cselect_b32 s{sT3}, 4, 7")
    e(f"s_mov_b32 s{S_SW1+3}, 0x00020000")
    e(f"v_lshlrev_b32 v{t4}, s{sT3}, v{t2}")
    A.vmem(f"buffer_load_dwordx4 v{t4}, {srd(S_SW1)}, s{sT1} offen lds", "se")
    fstamp()
    e("s_branch L_A2")
    sv = (A.vm, A.ds, A.vm_done, A.ds_done, nst[0])
    b_head()
    A.vm, A.ds, A.vm_done, A.ds_done, nst[0] = sv
    lab("L_A2")
    e(f"s_and_b32 s{sT0}, s{sMB}, 0x1000")
    e(f"s_mul_i32 s{sT0}, s{sT0}, 3")
    e(f"s_add_u32 s{sMG}, s{sMB}, s{sT0}")
    e(f"v_lshrrev_b32 v{t1}, 4, v0")
    e(f"v_xor_b32 v{t1}, v{t1}, v0")
    e(f"v_and_b32 v{t1}, 7, v{t1}")
    e(f"v_lshlrev_b32 v{vSw}, 4, v{t1}")
    e(f"v_and_b32 v{L15}, 15, v0")
    e(f"v_bfe_u32 v{G}, v0, 4, 2")
    e(f"v_bfe_u32 v{t0}, v0, 1, 3")
    e(f"s_and_b32 s{sT0}, s{sMB}, 0x400")
    e(f"s_lshl_b32 s{sT0}, s{sT0}, 1")
    e(f"v_lshl_add_u32 v{aC[1]}, v{L15}, 7, s{sT0}")
    e(f"v_xor_b32 v{t2}, v{G}, v{t0}")
    e(f"v_lshl_add_u32 v{aE[0][0]}, v{t2}, 4, v{aC[1]}")
    e(f"v_xor_b32 v{aE[1][0]}, 64, v{aE[0][0]}")
    e(f"v_xor_b32 v{aE[0][1]}, 0x800, v{aE[0][0]}")
    e(f"v_xor_b32 v{aE[1][1]}, 0x800, v{aE[1][0]}")
    e(f"v_bfe_u32 v{GP}, v0, 2, 2")
    e(f"v_and_b32 v{t1}, 1, v0")
    e(f"v_lshl_add_u32 v{t1}, v{GP}, 1, v{t1}")
    e(f"v_bfe_u32 v{t4}, v0, 1, 1")
    e(f"v_lshl_add_u32 v{R01}, v{t4}, 3, v{t1}")
    e(f"s_lshl_b32 s{sT0}, s{sW}, 3")
    e(f"v_xor_b32 v{t3}, s{sT0}, v{R01}")
    e(f"v_lshl_add_u32 v{t3}, v{G}, 9, v{t3}")
    e(f"s_mov_b32 s{sT0}, {L_WBI}")
    e(f"v_lshl_add_u32 v{aWb}, v{t3}, 1, s{sT0}")
    e(f"s_lshl_b32 s{sT0}, s{sW}, 11")
    e(f"s_add_u32 s{sT0}, s{sT0}, {IMG}")
    e(f"s_xor_b32 s{sT1}, s{sT0}, 0x800")
    e(f"v_lshl_add_u32 v{t3}, v{G}, 7, v{L15}")
    e(f"v_lshl_add_u32 v{aXw}, v{t3}, 2, s{sT1}")
    e(f"v_and_b32 v{t3}, 63, v0")
    e(f"v_lshl_add_u32 v{aXr}, v{t3}, 2, s{sT0}")
    e(f"v_and_b32 v{t4}, 3, v0")
    e(f"v_bfe_u32 v{t5}, v0, 2, 3")
    e(f"v_lshl_add_u32 v{t3}, v{t4}, 6, v{t5}")
    e(f"s_lshl_b32 s{sT0}, s{sW}, 4")
    e(f"s_add_u32 s{sT0}, s{sT0}, {L_PST}")
    e(f"v_lshl_add_u32 v{PA}, v{t3}, 1, s{sT0}")
    e(f"v_mul_u32_u24 v{t3}, 3328, v{t5}")
    e(f"v_lshl_add_u32 v{PA+1}, v{t4}, 4, v{t3}")
    e(f"v_mov_b32 v{PA + 7}, 0")
    e(f"s_lshl2_add_u32 s{sT1}, s{sKb}, s{sG}")
    e(f"s_lshl_b32 s{sT1}, s{sT1}, 2")
    e(f"s_mul_i32 s{sT0}, s{sG}, 3")
    e(f"s_min_u32 s{sT0}, s{sT0}, 8")
    e(f"s_mul_i32 s{sT2}, s{sKb}, 10")
    e(f"s_add_u32 s{sT0}, s{sT0}, s{sT2}")
    e(f"s_add_u32 s{sT0}, s{sT0}, 64")
    e(f"s_cmp_lt_u32 s{sG}, 2")
    e(f"s_mov_b32 s{sG}, 0x33333333")
    e(f"s_cselect_b32 s{sG}, 0x77777777, s{sG}")
    e(f"s_cmp_eq_u32 s{sJt}, 0")
    e(f"s_cselect_b32 s{sT0}, s{sT1}, s{sT0}")
    e(f"s_cselect_b32 s{sG}, -1, s{sG}")
    e(f"s_lshr_b32 s{sT1}, s{sRG}, 5")
    e(f"s_mul_i32 s{sT1}, s{sT1}, 104")
    e(f"s_add_u32 s{sT0}, s{sT0}, s{sT1}")
    e(f"s_lshl_b32 s{sT0}, s{sT0}, 4")
    e(f"s_mul_i32 s{sMB2}, s{sW}, {8*3328}")
    e(f"s_add_u32 s{sMB2}, s{sMB2}, {WFB}")
    e(f"s_add_u32 s{sT0}, s{sT0}, s{sMB2}")
    e(f"s_add_u32 s{sWF}, s{sT0}, s{sNP}")
    e(f"s_lshl_b32 s{sT0}, s{sKb}, 3")
    e(f"s_lshl_b32 s{sJt}, 0xff, s{sT0}")
    mksrd(S_WS); cpsrd(S_WS, 7)
    e(f"v_and_b32 v{t3}, 31, v0")
    e(f"v_bfe_u32 v{t4}, v0, 5, 1")
    e(f"v_lshl_add_u32 v{t3}, v{t4}, 6, v{t3}")
    e(f"s_lshl2_add_u32 s{sT0}, s{sRG}, s{sHF}")
    e(f"s_lshl_b32 s{sT0}, s{sT0}, 8")
    e(f"v_lshl_add_u32 v{vHo}, v{t3}, 3, s{sT0}")
    def late_setup():
        u0, u1, u2 = PA + 2, PA + 3, aWb
        e(f"v_bfe_u32 v{u0}, v0, 1, 3")
        e(f"v_xor_b32 v{u0}, s{sW}, v{u0}")
        e(f"v_lshl_add_u32 v{u0}, v{u0}, 4, v{aC[1]}")
        e(f"v_lshl_add_u32 v{aC[0]}, v{G}, 13, v{u0}")
        e(f"v_xor_b32 v{aC[1]}, 0x800, v{aC[0]}")
        e(f"v_min_u32 v{u1}, 1, v{G}")
        e(f"v_add_u32 v{u1}, 24, v{u1}")
        e(f"v_lshl_add_u32 v{aC6[0]}, v{u1}, 12, v{u0}")
        e(f"v_xor_b32 v{aC6[1]}, 0x800, v{aC6[0]}")
        e(f"v_and_b32 v{u0}, 63, v0")
        e(f"v_lshlrev_b32 v{vJ[0]}, 4, v{u0}")
        e(f"s_lshl3_add_u32 s{sT0}, s6, s{sW}")
        e(f"s_mul_i32 s{sT0}, s{sT0}, {13*128}")
        e(f"s_add_u32 s{sT0}, s{sT0}, {WFB}")
        e(f"v_lshl_add_u32 v{vPw}, v{u0}, 7, s{sT0}")
        e(f"v_mul_u32_u24 v{u0}, 3, v{GP}")
        e(f"v_min_u32 v{u0}, 8, v{u0}")
        e(f"v_mad_u32_u24 v{u0}, v{G}, 10, v{u0}")
        e(f"v_and_b32 v{u1}, 3, v0")
        e(f"v_bfrev_b32 v{vJ[1]}, 2")
        setexec(0x33773377)
        e(f"v_add_lshl_u32 v{vJ[1]}, v{u0}, v{u1}, 4")
        e("s_mov_b64 exec, -1")
        e(f"s_and_b32 s{sT0}, s{sW}, 1")
        e(f"s_mul_i32 s{sT2}, s{sT0}, {16*144}")
        e(f"s_sub_u32 s{sT3}, {16*144 + L_AV}, s{sT2}")
        e(f"s_add_u32 s{sT2}, s{sT2}, {L_AV}")
        e(f"v_mul_u32_u24 v{u0}, 144, v{L15}")
        e(f"v_lshl_add_u32 v{u0}, v{G}, 5, v{u0}")
        e(f"v_add_u32 v{aAr[0]}, s{sT2}, v{u0}")
        e(f"v_add_u32 v{aAr[1]}, s{sT3}, v{u0}")
        e(f"s_lshl_b32 s{sSt}, s{sW}, 11")
        e(f"s_add_u32 s{sSt}, s{sSt}, {R2}")
        e(f"v_add_u32 v{aRed}, s{sSt}, v{vJ[0]}")
        with Older():
            e(f"s_and_b32 s{sT1}, s{sW}, 2")
            e(f"s_lshl_b32 s{sT1}, s{sT1}, 3")
            e(f"v_add_u32 v{u0}, s{sT1}, v{R01}")
            e(f"v_add_u32 v{u1}, 24, v{GP}")
            e(f"v_min_u32 v{u0}, v{u0}, v{u1}")
            e(f"v_mov_b32 v{u2}, {L_SE1}")
            e(f"s_movk_i32 s{sT3}, 208")
            e(f"v_mad_u32_u24 v{u1}, v{G}, s{sT3}, v{u2}")
            e(f"v_lshl_add_u32 v{aS2}, v{u0}, 1, v{u1}")
            e(f"v_lshl_add_u32 v{u2}, v{L15}, 1, v{u2}")
            e(f"v_mad_u32_u24 v{aS1t}, v{G}, 26, v{u2}")
            e(f"v_mad_u32_u24 v{aS1}, v{G}, 52, v{u2}")
            e(f"v_add_u32 v{aAw}, s{sT1}, v{aAr[0]}")
            for b in (S_OUT, S_DBG): mksrd(b)
            for k, b in enumerate((S_OUT, S_DBG)): cpsrd(b, k + 5)
            c0 = -2.0 * math.sqrt(2.0 / math.pi) * math.log2(math.e)
            e(f"s_mov_b32 s{sC0}, {fbits(c0)}")
            e(f"s_mov_b32 s{sC1}, {fbits(c0 * 0.044715)}")
            e(f"s_mov_b32 s{sMSK}, 0xffff0000")
            e(f"s_mov_b32 s{sNL}, {fbits(-math.log2(math.e))}")
            e(f"v_mov_b32 v{ZF+3}, 0")
    stamp()
    fstamp()
    A.vm_wait("idx")
    stamp()
    fs0 = (lambda: fstamp()) if FS == -1 else (lambda: None)
    fs0()
    for d in range(4): e(f"v_lshlrev_b32 v{vI+d}, 7, v{vI+d}")
    for s in range(G0): a_gather(s)
    fs0()
    def pfbatch():
        e(f"s_lshl_b32 s{sT1}, s{sW}, 17")
        e(f"s_add_u32 s{sT1}, s{sT1}, {PF0*32768 + NPF0*131072}")
        assert NPF0 >= 1
        A.vmem(f"buffer_load_dword v{vDum}, v{vPf}, {srd(S_W1)}, s{sT1} offen", "o:pf")
    A.vm_wait("sm")
    fs0()
    e("s_barrier")
    fs0()
    for t in range(8):
        A.lds(f"ds_read_u16 v{PA + 12 + t}, v{PA} offset:{t*512}", "pr")
    for k in range(16):
        A.lds(f"ds_read_u16 v{T + k}, v{aWb} offset:{(32*(k >> 3) + (k & 7))*128}", "wb")
    with Older():
        e(f"s_lshl_b32 s{sT0}, s{sW}, 28")
        A.vmem(f"buffer_load_dword v{vTag}, v{vHo}, {srd(S_WS)}, s{sT0} offen offset:4 sc1", "o:snap")
        e(f"s_add_u32 s{sT0}, s{sT0}, 0x10000")
        A.vmem(f"buffer_load_dword v{vTag2 if not STAMPS else vPo}, v{vHo}, {srd(S_WS)}, s{sT0} offen offset:4 sc1", "o:snap")
    fs0()
    A.ds_wait("pr")
    for q in range(3): e(f"v_lshl_or_b32 v{PA + 4 + q}, v{PA + 13 + 2*q}, 16, v{PA + 12 + 2*q}")
    e("s_mov_b32 exec_hi, 0")
    e(f"s_mov_b32 exec_lo, s{sJt}")
    e(f"v_lshl_or_b32 v{PA + 7}, v{PA + 19}, 16, v{PA + 18}")
    e(f"s_mov_b32 exec_lo, s{sG}")
    A.vmem(f"buffer_store_dwordx4 {vr(PA + 4, 4)}, v{PA + 1}, {srd(S_WS)}, s{sWF} offen sc1", "st")
    e("s_mov_b64 exec, -1")
    A.ds_all()
    for d in range(8): e(f"v_lshl_or_b32 v{WB + d}, v{T + 2*d + 1}, 16, v{T + 2*d}")
    with Older():
        cm("ONES quad r: 1/64 in the rows with (m&3) == r")
        e(f"v_and_b32 v{t4}, 3, v0")
        e(f"v_mov_b32 v{t5}, 0x3c803c80")
        for r in range(4):
            e(f"v_cmp_eq_u32 vcc, {r}, v{t4}")
            e(f"v_cndmask_b32 v{ONES + 4*r}, 0, v{t5}, vcc")
            for d in range(1, 4): e(f"v_mov_b32 v{ONES + 4*r + d}, v{ONES + 4*r}")
    if not LATE0: late_setup()
    def se_frags():
        TM2 = CAP + 20
        with Older():
            e("s_waitcnt lgkmcnt(4)")
            for t in range(6):
                e(f"ds_read_u16 v{TM2 + t}, v{CAP + 48} offset:{(8*(t >> 1) + (t & 1))*26}")
            e(f"ds_read_u16 v{SE1F + 3}, v{CAP + 49} offset:{24*26}")
            for kk in range(4):
                e(f"ds_read_u16 v{TM2 + 8 + kk}, v{CAP + 50} offset:{1024 + kk*52}")
            e("s_waitcnt lgkmcnt(0)")
            for q in range(3): e(f"v_lshl_or_b32 v{SE1F + q}, v{TM2 + 2*q + 1}, 16, v{TM2 + 2*q}")
            for q in range(2): e(f"v_lshl_or_b32 v{SE2F + q}, v{TM2 + 8 + 2*q + 1}, 16, v{TM2 + 8 + 2*q}")
    deferred = []
    fs0()
    stamp()
    def swaps(q, tls=(0, 1)):
        for tl in tls:
            for r in range(2):
                R = [xf(2*g + r, tl, q) for g in range(4)]
                e(f"v_permlane32_swap_b32 v{R[0]}, v{R[2]}")
                e(f"v_permlane32_swap_b32 v{R[1]}, v{R[3]}")
        for tl in tls:
            for r in range(2):
                R = [xf(2*g + r, tl, q) for g in range(4)]
                e(f"v_permlane16_swap_b32 v{R[0]}, v{R[1]}")
                e(f"v_permlane16_swap_b32 v{R[2]}, v{R[3]}")
    def pack(s):
        q, Gq = s >> 2, s & 3
        d = DD + (s & 1)*8
        if s in (4, 8): e(f"v_add_u32 v{aXw}, 0x4000, v{aXw}")
        for r in range(2):
            e(f"v_cvt_pk_bf16_f32 v{d + 2 + r}, v{d + 2 + r}, v{d + 6 + r}")
        A.lds(f"ds_write2_b32 v{aXw}, v{d + 2}, v{d + 3} offset0:{(s & 3)*16} offset1:{(s & 3)*16 + 64}", "xw")
        for r in range(2):
            e(f"v_cvt_pk_bf16_f32 v{xf(2*Gq + r, 0, q)}, v{d + r}, v{d + 4 + r}")
    def packz(sg, dz=None):
        dz = DZ if dz is None else dz
        for h in range(2): e(f"v_cvt_pk_bf16_f32 v{dz + 2*h}, v{dz + 2*h}, v{dz + 2*h + 1}")
        for h in range(2):
            s_ = 2*sg + h
            e(f"v_mov_b32_dpp v{ZF + (s_ >> 2)}, v{dz + 2*h} quad_perm:[0,1,2,3] row_mask:{1 << (s_ & 3):#x} bank_mask:0xf")
    wl = [0]
    def wload():
        k = wl[0]
        if k >= 32: return
        wl[0] += 1
        u, part, x = k >> 2, (k >> 1) & 1, k & 1
        ep, jt = u >> 1, u & 1
        if 8 <= k < 8 + NST:
            A.vm_wait(f"ws{k}")
            A.lds(f"ds_read_b128 {vr(RING[k % 8], 4)}, v{aRed} offset:{stoff(k)}", f"w{k >> 1}")
            return
        if "nowl" in X and k >= 8:
            A.vm.append(f"w{k >> 1}"); A.vm_done = len(A.vm) - 1
            return
        if "j0" in X: jt = 0
        if k % 8 < 2: e(f"s_add_u32 s{80 + x}, s{sMB2}, {(2*ep + x)*3328}")
        A.vmem(f"buffer_load_dwordx4 {vr(RING[k % 8], 4)}, v{vJ[jt]}, {srd(S_WS)}, s{80 + x} offen offset:{part*1664 + jt*1024} sc1", f"w{k >> 1}")
    def stoff(k): return ((k - 8) >> 1)*16384 + ((k - 8) & 1)*1024
    sl = [8]
    def wstage():
        k = sl[0]
        if k >= 8 + NST: return
        sl[0] += 1
        u, part, x = k >> 2, (k >> 1) & 1, k & 1
        ep, jt = u >> 1, u & 1
        e(f"s_add_u32 m0, s{sSt}, {stoff(k)}")
        e(f"s_add_u32 s{sT0}, s{sMB2}, {(2*ep + x)*3328 + part*1664 + jt*1024}")
        A.vmem(f"buffer_load_dwordx4 v{vJ[jt]}, {srd(S_WS)}, s{sT0} offen sc1 lds", f"ws{k}")
    def early():
        for _ in range(NPS):
            if wl[0] < 4: wload()
            else: wstage()
    QB = [[AF + 4*i for i in range(8)], [AK, AK+4, AK+8, AK+12, U, U+4, ACCP, RAW+20]]
    def rd(sg, i):
        f = 4*sg + (i >> 1)
        A.lds(f"ds_read_b128 {vr(QB[sg & 1][i], 4)}, v{aE[i & 1][0]} offset:{(f & 15)*4096}", f"e{sg}_{i >> 1}")
    def mmi(sg, i):
        d = DD + (i >> 1)*4
        if i & 1: mf16(d, WB + 4, QB[sg & 1][i], d)
        else:
            A.ds_wait(f"e{sg}_{i >> 1}")
            mf16(d, WB, QB[sg & 1][i])
    def zmm(sg):
        for i in range(8): mf16(DZ, ONES + 4*(i >> 1), QB[sg & 1][i], DZ if i else None)
    def zblock(sg):
        with Older():
            if sg: packz(sg - 1)
            zmm(sg)
    def issue(s):
        if s + GAHEAD < 13:
            a_gather(s + GAHEAD)
    swq = []
    def take(lst, n):
        for _ in range(n):
            if lst: A.L.append(lst.pop(0))
    for s in range(G0, GAHEAD): a_gather(s)
    def signal(prod):
        with Older():
            cm("signal (wave 0 only stays in range): snapshot taken" + (", fragments stored" if prod else ""))
            e(f"s_lshl_b32 s{sT0}, s{sHF}, 4")
            e(f"s_lshl_b32 s{sT0}, 0x100, s{sT0}")
            e(f"v_mov_b32 v{vSg}, s{sT0}")
            e(f"s_lshl_b32 s{sT0}, s{sW}, 6")
            e(f"s_add_u32 s{sT0}, s{sT0}, s{sRG}")
            e(f"s_lshl2_add_u32 s{sT0}, s{sT0}, s{sNP}")
            if not prod: e(f"s_xor_b32 s{sT0}, s{sT0}, 0x10000000")
            e("s_mov_b64 exec, 1")
            A.vmem(f"buffer_atomic_or v{vSg}, off, {srd(S_DBG)}, s{sT0} sc1", "o:sig")
            e("s_mov_b64 exec, -1")
    vSg = CAP + 55
    def flagcheck():
        cm("wave 0: every producer of this group's W-fragment image has signalled")
        e(f"s_cmp_lg_u32 s{sW}, 0")
        e("s_cbranch_scc1 L_flok")
        lab("L_flp")
        e(f"v_and_b32 v{vFl}, 0x01000100, v{vFl}")
        e(f"v_cmp_ne_u32 vcc, 0x01000100, v{vFl}")
        e("s_or_b32 vcc_lo, vcc_lo, vcc_hi")
        e("s_and_b32 vcc_lo, vcc_lo, 0x0f0f0f0f")
        e("s_cbranch_scc0 L_flok")
        e(f"s_sleep {RSLEEP}")
        e(f"v_lshrrev_b32 v{vFl}, 2, v{vJ[0]}")
        e(f"buffer_load_dword v{vFl}, v{vFl}, {srd(S_DBG)}, 0 offen sc1")
        e("s_waitcnt vmcnt(0)")
        e("s_branch L_flp")
        lab("L_flok")
    def body(s):
        sg = s >> 1
        if s == 12: return
        if s % 2 == 0:
            for i in range(8):
                if sg: mmi(sg - 1, i)
                rd(sg, i)
            return
        if sg:
            pack(2*sg - 2); pack(2*sg - 1)
        if sg in (2, 4): swaps((sg >> 1) - 1, (0,))
        if sg == 5:
            for el in range(8):
                A.lds(f"ds_read2st64_b32 {vr(xf(el, 1, 0), 2)}, v{aXr} offset0:{el} offset1:{64 + el}", "xr")
    if PRIO:
        e(f"s_cmp_lt_u32 s{sW}, 4")
        e("s_cbranch_scc1 L_prio")
        e("s_setprio 1")
        lab("L_prio")
    for s in range(13):
        cm(f"-- A step {s}")
        if s % 2 == 0:
            if s < 12 or not MERGE:
                need_o, need_y = [], []
                if s == 12 or (s == 10 and MERGE): need_o.append("g12"); need_y.append("g12")
                elif s & 2: need_y.append(f"g{4*(s >> 2) + 3}")
                else: need_o.append(f"g{4*(s >> 2) + 3}")
                if s == FSIG: need_o.append("st"); need_y.append("st")
                if s == FCHK: need_o.append("o:fl")
                no = min([A.vm_count(t, True) for t in need_o]) if need_o else None
                ny = min([A.vm_count(t, False) for t in need_y]) if need_y else None
                if no is not None and no == ny: e(f"s_waitcnt vmcnt({no})")
                else:
                    if no is not None:
                        with Older(): e(f"s_waitcnt vmcnt({no})")
                    if ny is not None:
                        with Younger(): e(f"s_waitcnt vmcnt({ny})")
                if s == 10: A.ds_wait("xw")
                if s == FCHK: flagcheck()
                if s == 0: fs0()
                if FS == -2: fstamp(True)
                e("s_barrier")
                if FS == -2: fstamp(True)
                if s == 0: fs0()
            if s in (0, 4, 8, 12): stamp()
            if s == FSIG: signal(True)
            if s == FCHK:
                e("s_mov_b64 exec, 0x1fff")
                A.vmem(f"buffer_load_dword v{vDum}, v{vPw}, {srd(S_WS)}, 0 offen sc1", "pf")
                e("s_mov_b64 exec, -1")
            body(s)
            issue(s)
            if s == 0 and LATE0: late_setup()
            if s >= FCHK and s < 12: early()
            continue
        body(s)
        issue(s)
        if s in (FLD, PFAT):
            with Older():
                if s == FLD:
                    e(f"v_lshrrev_b32 v{vFl}, 2, v{vJ[0]}")
                    e(f"s_lshl_b32 s{sT0}, s{sW}, 8")
                    A.vmem(f"buffer_load_dword v{vFl}, v{vFl}, {srd(S_DBG)}, s{sT0} offen sc1", "o:fl")
                if s == PFAT: pfbatch()
        if s > FCHK: early()
        if s == 7:
            for r in aE[0] + aE[1]: e(f"v_add_u32 v{r}, 0x10000, v{r}")
        if s == 11: signal(False)
        if s == 1: se_frags()
        if s >= 3: zblock((s >> 1) - 1)
    cm("last two fields: both row tiles; then the fragments of super-step 5")
    DL = 228
    DT = CAP + 16
    LF = [[[DL + tl*8 + fi*4 + r for r in range(2)] for fi in range(2)] for tl in range(2)]
    for tl in range(2):
        for i in range(4):
            A.lds(f"ds_read_b128 {vr(AF + tl*16 + 4*i, 4)}, v{aE[i & 1][tl]} offset:{(8 + (i >> 1))*4096}", f"l{tl}{i >> 1}")
    for tl in range(2): e(f"v_add_u32 v{aC2[tl]}, 0x10000, v{aC[tl]}")
    def lastmm():
        for tl in range(2):
            for i in range(4):
                d = DL + tl*8 + (i >> 1)*4
                if not i & 1: A.ds_wait(f"l{tl}{i >> 1}")
                mf16(d, WB + 4*(i & 1), AF + tl*16 + 4*i, d if i & 1 else None)
    def tailwork():
        swaps(2, (0,))
        for tl in range(2):
            for el in range(8):
                if el < 2: e(f"v_cvt_pk_bf16_f32 v{xf(el, tl, 3)}, v{DL + tl*8 + (el & 1)}, v{DL + tl*8 + 4 + (el & 1)}")
                else: e(f"v_mov_b32 v{xf(el, tl, 3)}, v{xf(el & 1, tl, 3)}")
        while wl[0] < 8: wload()
        for tl in range(2):
            for p in range(2): e(f"v_mov_b32 v{UH + tl*16 + 14 + p}, 0")
    if PRIO == 1: e("s_setprio 0")
    e(f"s_cmp_ge_u32 s{sW}, 4")
    e("s_cbranch_scc1 L_nosenet")
    cm("waves 0..3: SENET first")
    sv = (list(A.vm), A.vm_done, wl[0], sl[0], list(A.ds), A.ds_done)
    A.ds_wait("e5_3")
    packz(4)
    zmm(5)
    A.ds_wait("l01")
    for i in range(4): mf16(DT, ONES + 4*(i >> 1), AF + 4*i, DT if i else None)
    for i in range(4): mmi(5, i)
    packz(5)
    e(f"v_cvt_pk_bf16_f32 v{DT}, v{DT}, 0")
    e(f"v_cvt_pk_bf16_f32 v{DT + 1}, v{DT + 1}, 0")
    for h in range(2): e(f"v_mov_b32_dpp v{ZF + 3}, v{DT + h} quad_perm:[0,1,2,3] row_mask:{1 << h:#x} bank_mask:0xf")
    b = 128
    mf16(b, SE1F, ZF)
    for i in range(4, 8): mmi(5, i)
    pack(10)
    e(f"v_mov_b32 v{b+20}, s{sC0}")
    e(f"v_cvt_pk_bf16_f32 v{b+8}, v{b+0}, v{b+1}")
    e(f"v_cvt_pk_bf16_f32 v{b+9}, v{b+2}, v{b+3}")
    for d in range(2):
        e(f"v_lshlrev_b32 v{b+2*d}, 16, v{b+8+d}")
        e(f"v_and_b32 v{b+2*d+1}, s{sMSK}, v{b+8+d}")
    ls = []
    for r in range(4):
        with Cap() as c: gelu(b + 4 + r, b + r, b + 12 + r, b + 20)
        ls.append(c.l)
    zipl(ls)
    e(f"v_cvt_pk_bf16_f32 v{b+10}, v{b+4}, v{b+5}")
    e(f"v_cvt_pk_bf16_f32 v{b+11}, v{b+6}, v{b+7}")
    e(f"v_mfma_f32_16x16x16_bf16 {vr(b+16,4)}, {vr(SE2F,2)}, {vr(b+10,2)}, 0")
    pack(11)
    e(f"v_cvt_pk_bf16_f32 v{b+8}, v{b+16}, v{b+17}")
    e(f"v_cvt_pk_bf16_f32 v{b+9}, v{b+18}, v{b+19}")
    for d in range(2):
        e(f"v_lshlrev_b32 v{b+2*d}, 16, v{b+8+d}")
        e(f"v_and_b32 v{b+2*d+1}, s{sMSK}, v{b+8+d}")
    for r in range(4): e(f"v_mul_f32 v{b+r}, s{sNL}, v{b+r}")
    for r in range(4): e(f"v_exp_f32 v{b+r}, v{b+r}")
    for r in range(4): e(f"v_add_f32 v{b+r}, 1.0, v{b+r}")
    for r in range(4): e(f"v_rcp_f32 v{b+r}, v{b+r}")
    for r in range(4): e(f"v_cvt_pk_bf16_f32 v{b+4+r}, 0, v{b+r}")
    e(f"ds_write_b128 v{aAw}, {vr(b+4,4)}")
    e("s_waitcnt lgkmcnt(0)")
    A.ds_done = len(A.ds) - 1
    stamp()
    e("s_barrier")
    lastmm()
    tailwork()
    e("s_branch L_post")
    lab("L_nosenet")
    e("s_nop 7")
    if PP & 1: e("s_setprio 1")
    A.vm, A.vm_done, wl[0], sl[0], A.ds, A.ds_done = list(sv[0]), sv[1], sv[2], sv[3], list(sv[4]), sv[5]
    for i in range(8): mmi(5, i)
    lastmm()
    pack(10); pack(11)
    tailwork()
    e("s_waitcnt lgkmcnt(0)")
    e("s_barrier")
    lab("L_post")
    A.ds_done = len(A.ds) - 1
    for el in range(2):
        A.lds(f"ds_read_b32 v{xf(el, 1, 2)}, v{aXr} offset:{32768 + el*256}", "x2")
    for tl in range(2):
        for u in range(2):
            A.lds(f"ds_read_b128 {vr(AJ + tl*8 + u*4, 4)}, v{aAr[tl]} offset:{u*16}", "ak")
    e(f"v_bfe_u32 v{XQ}, v0, 4, 2")
    e(f"v_lshlrev_b32 v{XQ}, 5, v{XQ}")
    for tl in range(2):
        e(f"v_sub_u32 v{aAr[tl]}, v{aAr[tl]}, v{XQ}")
        A.lds(f"ds_read2_b32 {vr(XQ + 4 + 2*tl, 2)}, v{aAr[tl]} offset0:6 offset1:14", "ak")
    def mms(u, part):
        ep = u >> 1
        tg = f"w{2*u + (1 if W1W and u else part)}"
        if tg in A.vm: A.vm_wait(tg)
        if tg in A.ds: A.ds_wait(tg)
        for x in range(2):
            for tl in range(2):
                mf16(TS[u & 1][part*4 + x*2 + tl], RING[(4*u + 2*part + x) % 8], XQ + x*8 + tl*4 if part else xf(2*ep + x, tl, 0))
    def xq(ep):
        tmp = TS[0][4]
        for x in range(2):
            for tl in range(2):
                src = xf(2*ep + x, tl, 0)
                for qq in range(3):
                    if OPS: e(f"v_dot2_f32_bf16 v{tmp + tl*6 + 2*qq}, v{src + qq}, v{AJ + tl*8 + 2*qq}, 0 op_sel:[0,1,0] op_sel_hi:[1,0,0]")
                    else: e(f"v_dot2_f32_bf16 v{tmp + tl*6 + 2*qq}, v{src + qq}, v{AKL[tl][qq]}, 0")
                    e(f"v_dot2_f32_bf16 v{tmp + tl*6 + 2*qq + 1}, v{src + qq}, v{AJ + tl*8 + 2*qq + 1}, 0")
            for tl in range(2):
                dst = XQ + x*8 + tl*4
                if ep == 0: e(f"v_cvt_pk_bf16_f32 v{dst + 3}, v{LF[tl][0][x]}, v{LF[tl][1][x]}")
                for qq in range(3):
                    e(f"v_cvt_pk_bf16_f32 v{dst + qq}, v{tmp + tl*6 + 2*qq}, v{tmp + tl*6 + 2*qq + 1}")
    def fin(u):
        ep, jt = u >> 1, u & 1
        S_ = TS[u & 1]
        for tl in range(2):
            for x in range(2):
                p, q_, a = S_[x*2 + tl], S_[4 + x*2 + tl], AJ + tl*8 + 4*jt
                for r in range(3 if jt else 4): e(f"v_fmac_f32 v{p+r}, v{q_+r}, v{a+r}")
            for r in range(3 if jt else 4):
                e(f"v_cvt_pk_bf16_f32 v{UH + tl*16 + (4*jt + r)*2 + (ep & 1)}, v{S_[tl] + r}, v{S_[2 + tl] + r}")
    def cq(hf):
        for tl in range(2):
            for t in range(7):
                base = aC6[tl] if t == 6 else (aC2[tl] if t >= 4 else aC[tl])
                off = 0 if t == 6 else ((t >> 1) & 1)*32768 + (t & 1)*4096
                A.lds(f"ds_read_b64 {vr(XF + tl*16 + 2*t, 2)}, v{base} offset:{off + 8*hf}", "cq")
    def diag(hf):
        A.ds_wait("cq")
        for k in range(4):
            for tl in range(2):
                mf16(ACC[tl], UH + tl*16 + 4*k, XF + tl*16 + 4*k, ACC[tl] if (hf or k) else None)
    def weave(ml, fl):
        k = 0; nm = sum(1 for m in ml if "v_mfma" in m); i = 0
        for m in ml:
            A.L.append(m)
            if "v_mfma" in m:
                i += 1
                tgt = i * len(fl) // nm
                while k < tgt:
                    A.L.append(fl[k]); k += 1
    for el in range(2, 8):
        A.lds(f"ds_read_b32 v{xf(el, 1, 2)}, v{aXr} offset:{32768 + el*256}", "x3")
    A.ds_wait("x2")
    mms(0, 0)
    A.ds_wait("ak")
    for tl in range(2):
        if not OPS:
            for qq in range(3): e(f"v_lshrrev_b32 v{AKL[tl][qq]}, 16, v{AJ + tl*8 + 2*qq}")
        for fi in range(2):
            for r in range(2): e(f"v_mul_f32 v{LF[tl][fi][r]}, v{LF[tl][fi][r]}, v{XQ + 4 + 2*tl + fi}")
    for u in range(8):
        ep, jt = u >> 1, u & 1
        cm(f"-- block ep {ep} jt {jt}")
        if jt == 0:
            stamp()
            if ep == 1: A.ds_wait("x3")
            with Cap() as cx: xq(ep)
            if PKZ and u:
                S_ = TS[1]
                for tl in range(2):
                    for x in range(2):
                        p, q_, a = S_[x*2 + tl], S_[4 + x*2 + tl], AJ + tl*8 + 4
                        e(f"v_pk_fma_f32 {vr(p,2)}, {vr(q_,2)}, {vr(a,2)}, {vr(p,2)}")
                A.L.extend(cx.l[:-6])
            else: A.L.extend(cx.l)
        with Cap() as c2:
            if u: fin(u - 1)
        if PKZ and u and jt == 0:
            keep = []; n = 0
            for x in c2.l:
                if "v_fmac" in x:
                    n += 1
                    if n % 3: continue
                keep.append(x)
            c2.l[:] = cx.l[-6:] + keep
        if DW and u == 5:
            fm = [x for x in c2.l if "v_fmac" in x]; cv = [x for x in c2.l if "v_fmac" not in x]
            with Cap() as c0: diag(0)
            weave(c0.l, fm)
            c2.l[:] = cv
        post = []
        if PK2 and jt == 1 and not (DW and u == 5):
            S_ = TS[0]
            with Cap() as cp:
                for x in range(2):
                    p, q_, a = S_[x*2 + 1], S_[4 + x*2 + 1], AJ + 8
                    e(f"v_pk_fma_f32 {vr(p+2,2)}, {vr(q_+2,2)}, {vr(a+2,2)}, {vr(p+2,2)}")
            l = list(c2.l)
            c2.l[:] = l[:14] + l[16:18] + l[20:22]
            post = cp.l + l[22:24]
        with Cap() as c1:
            if u: mms(u, 0)
            mms(u, 1)
        weave(c1.l, c2.l)
        for _ in range(4): wload()
        A.L.extend(post)
        if u == PPU and PP & 2:
            with Younger(): e("s_setprio 1")
        if u == PPU and PP & 4: e("s_setprio 0")
        if u == 3: cq(0)
        if u == 4 and not DW: diag(0)
        if u == 5: cq(1)
    e(f"s_and_b32 s{sT0}, s{sMB}, 0x400")
    e(f"v_add_u32 v{aRed}, s{sT0}, v{aRed}")
    e(f"v_xor_b32 v{aAr[0]}, 0x400, v{aRed}")
    if STAMPS: e(f"v_mov_b32 v{vTag2}, v{vPo}")
    e(f"s_lshl_b32 s{sT0}, s{sW}, 28")
    e(f"buffer_load_dwordx2 {vr(vPo,2)}, v{vHo}, {srd(S_WS)}, s{sT0} offen sc1")
    with Cap() as c2: fin(7)
    with Cap() as c0: diag(1)
    if FW == 2:
        S_ = TS[1]
        for tl in range(2):
            for x in range(2):
                p, q_, a = S_[x*2 + tl], S_[4 + x*2 + tl], AJ + tl*8 + 4
                e(f"v_pk_fma_f32 {vr(p,2)}, {vr(q_,2)}, {vr(a,2)}, {vr(p,2)}")
        keep = []; n = 0
        for x in c2.l:
            if "v_fmac" in x:
                n += 1
                if n % 3: continue
            keep.append(x)
        w_, m = c0.l[:-8], c0.l[-8:]
        A.L.extend(w_)
        weave(m[:4], keep)
        A.L.extend(m[4:])
    elif FW:
        w_, m = c0.l[:-8], c0.l[-8:]
        A.L.extend(w_)
        weave(m[:4], c2.l[:11])
        weave([m[4], m[6]], c2.l[11:])
        A.L.extend([m[5], m[7]])
    else: A.L.extend(c2.l + c0.l)
    stamp()
    e(f"s_cmp_lg_u32 s{sW}, 0")
    e(f"ds_write_b128 v{aRed}, {vr(ACC[0], 4)}")
    e(f"ds_write_b128 v{aAr[0]}, {vr(ACC[1], 4)}")
    e("s_cbranch_scc0 L_w0")
    e("s_waitcnt lgkmcnt(0)")
    e("s_barrier")
    e("s_branch L_end")
    lab("L_w0")
    P2 = 40
    if not RB: e(f"buffer_load_dwordx2 {vr(P2,2)}, v{vHo}, {srd(S_WS)}, 0 offen sc1")
    e(f"v_and_b32 v1, 31, v0")
    e(f"v_and_b32 v6, 15, v0")
    e(f"v_lshrrev_b32 v7, 2, v6")
    e(f"v_lshl_add_u32 v7, v7, 4, v6")
    e(f"v_lshlrev_b32 v7, 4, v7")
    e(f"v_and_b32 v6, 3, v0")
    e(f"v_lshl_add_u32 v7, v6, 2, v7")
    e(f"v_bfe_u32 v6, v0, 4, 1")
    e(f"v_lshl_add_u32 v7, v6, 10, v7")
    e(f"v_bfe_u32 v6, v0, 5, 1")
    e(f"v_lshl_add_u32 v7, v6, 13, v7")
    e(f"v_add_u32 v7, {R2}, v7")
    e(f"s_lshl1_add_u32 s{sT0}, s{sRG}, s{sHF}")
    e(f"s_lshl_b32 s{sT0}, s{sT0}, 6")
    e(f"v_lshlrev_b32 v9, 1, v1")
    e(f"s_lshl_b32 s{sT1}, s{sRG}, 2")
    cm("wait for both deep partials: a lane is done when its tag differs from the snapshot or its producer's arrival flag is set")
    e(f"s_mov_b32 s{sT3}, 0")
    if RB:
        e("s_waitcnt lgkmcnt(0)")
        e("s_barrier")
        e(f"buffer_load_dwordx2 {vr(P2,2)}, v{vHo}, {srd(S_WS)}, 0 offen sc1")
        for k in range(4): e(f"ds_read_b32 v{32 + k}, v7 offset:{2048*k}")
        e("s_waitcnt lgkmcnt(0)")
        e("v_add_f32 v32, v32, v33")
        e("v_add_f32 v34, v34, v35")
        e("v_add_f32 v32, v32, v34")
    lab("L_poll")
    e("s_waitcnt vmcnt(1)")
    e(f"v_cmp_eq_u32 vcc, v{vPo+1}, v{vTag}")
    e("s_cbranch_vccz L_got")
    if "noB" in X or "nopoll" in X: e("s_branch L_got")
    e(f"buffer_load_dwordx2 {vr(vPo,2)}, v{vHo}, {srd(S_WS)}, 0 offen sc1")
    e("s_waitcnt vmcnt(1)")
    e(f"v_cmp_eq_u32 vcc, v{P2+1}, v{vTag}")
    e("s_cbranch_vccz L_got2")
    e(f"buffer_load_dwordx2 {vr(P2,2)}, v{vHo}, {srd(S_WS)}, 0 offen sc1")
    e(f"s_add_u32 s{sT3}, s{sT3}, 1")
    e(f"s_and_b32 s{sT2}, s{sT3}, 15")
    e("s_cbranch_scc1 L_poll")
    cm("now and then: the write-through copy (producer on another die), and the flags (a partial was already there at the snapshot)")
    e("s_mov_b64 exec, 1")
    e(f"buffer_load_dword v{vPo+3}, off, {srd(S_DBG)}, s{sT1} sc1")
    e("s_waitcnt vmcnt(0)")
    e(f"v_readfirstlane_b32 s{sT2}, v{vPo+3}")
    e("s_mov_b64 exec, -1")
    e(f"s_bitcmp1_b32 s{sT2}, 1")
    e("s_cselect_b32 s6, 0, -1")
    e(f"s_bitcmp1_b32 s{sT2}, 17")
    e("s_cselect_b32 s7, 0, -1")
    e(f"s_mov_b32 s{sT2}, 0x10000")
    e(f"buffer_load_dwordx2 {vr(vPo,2)}, v{vHo}, {srd(S_WS)}, s{sT2} offen sc1")
    e("s_waitcnt vmcnt(0)")
    e(f"v_cmp_eq_u32 vcc, v{vPo+1}, v{vTag2}")
    e("s_and_b64 vcc, vcc, s[6:7]")
    e("s_cbranch_scc0 L_got")
    e(f"buffer_load_dwordx2 {vr(vPo,2)}, v{vHo}, {srd(S_WS)}, 0 offen sc1")
    e(f"buffer_load_dwordx2 {vr(P2,2)}, v{vHo}, {srd(S_WS)}, 0 offen sc1")
    e("s_branch L_poll")
    if RB:
        lab("L_got")
        e(f"v_add_f32 v32, v32, v{vPo}")
        e("s_branch L_got3")
        lab("L_got2")
        e(f"v_add_f32 v32, v32, v{P2}")
        lab("L_got3")
        stamp()
    else:
        lab("L_got")
        e(f"v_mov_b32 v8, v{vPo}")
        e("s_branch L_got3")
        lab("L_got2")
        e(f"v_mov_b32 v8, v{P2}")
        lab("L_got3")
        stamp()
        e("s_waitcnt lgkmcnt(0)")
        e("s_barrier")
        for k in range(4): e(f"ds_read_b32 v{32 + k}, v7 offset:{2048*k}")
        e("s_waitcnt lgkmcnt(2)")
        e("v_add_f32 v32, v32, v33")
        e("v_add_f32 v32, v32, v8")
        e("s_waitcnt lgkmcnt(0)")
        e("v_add_f32 v34, v34, v35")
        e("v_add_f32 v32, v32, v34")
    e("v_mov_b32 v33, v32")
    e("v_permlane32_swap_b32 v32, v33")
    e("v_add_f32 v4, v32, v33")
    e("v_cvt_pk_bf16_f32 v4, v4, v4")
    e("s_mov_b32 exec_hi, 0")
    e(f"buffer_store_short v4, v9, {srd(S_OUT)}, s{sT0} offen")
    if STAMPS:
        e("s_mov_b64 exec, -1")
    e("s_branch L_end")

NWS, NGS = 8, 4
WBASE, GBASE = 0, NWS*16384
B_RED = 4*16384
LEAD = P("LEAD", 8)

BST = {}
vW, vS, vIa, vGt = 1, 2, [4, 8], [12, 13]
def b_head():
    lab("L_B")
    cm("===== role B")
    if "noB" in X: e("s_branch L_exit")
    e(f"s_cmp_lt_u32 s{sW}, 4")
    e("s_cbranch_scc1 L_Bc")
    A.reset(); nst[0] = 0
    t0, t1, t2 = 14, 15, 16
    e("s_setprio 3")
    e(f"v_bfe_u32 v{t0}, v0, 4, 4")
    e(f"v_lshlrev_b32 v{t0}, 9, v{t0}")
    e(f"v_bfe_u32 v{t1}, v0, 4, 2")
    e(f"v_lshlrev_b32 v{t1}, 2, v{t1}")
    e(f"s_and_b32 s{sT0}, s{sW}, 2")
    e(f"v_xor_b32 v{t1}, v{t1}, v0")
    e(f"v_xor_b32 v{t1}, s{sT0}, v{t1}")
    e(f"v_and_b32 v{t1}, 15, v{t1}")
    e(f"v_lshl_add_u32 v{t0}, v{t1}, 4, v{t0}")
    e(f"s_lshl_b32 s{sT0}, s{sHF}, 8")
    e(f"v_add_u32 v{vW}, s{sT0}, v{t0}")
    e(f"s_and_b32 s{sMB}, s{sW}, 3")
    e(f"s_lshl_b32 s{sMB}, s{sMB}, 10")
    e(f"v_bfe_u32 v{t0}, v0, 3, 5")
    e(f"v_mul_u32_u24 v{t0}, 104, v{t0}")
    e(f"v_and_b32 v{t1}, 7, v0")
    e(f"v_lshl_add_u32 v{t0}, v{t1}, 4, v{t0}")
    e(f"s_mul_i32 s{sT1}, s{sRG}, {64*104}")
    assert LEAD == 8
    e(f"s_lshr_b32 s{sT2}, s2, 5")
    e(f"s_lshl_b32 s{sT0}, s{sT2}, 15")
    e(f"s_mov_b32 s{sT3}, 0")
    if BPF:
        e(f"v_bfe_u32 v{t1}, v0, 1, 4")
        e(f"v_bfe_u32 v{t2}, v0, 6, 2")
        e(f"v_lshl_add_u32 v{t1}, v{t2}, 4, v{t1}")
        e(f"v_lshlrev_b32 v{t1}, 9, v{t1}")
        e(f"v_and_b32 v{t2}, 1, v0")
        e(f"v_lshl_add_u32 v{t1}, v{t2}, 7, v{t1}")
        e(f"s_lshl_b32 s{sT2}, s{sHF}, 8")
        e(f"s_add_u32 s{sT2}, s{sT2}, s{sT0}")
        e(f"s_add_u32 s{sT2}, s{sT2}, {8*32768}")
    e("s_waitcnt lgkmcnt(0)")
    stamp()
    A.vmem(f"buffer_load_dwordx4 {vr(vIa[0],4)}, v{t0}, {srd(S_IDX)}, s{sT1} offen", "idx")
    A.vmem(f"buffer_load_dwordx4 {vr(vIa[1],4)}, v{t0}, {srd(S_IDX)}, s{sT1} offen offset:{32*104}", "idx")
    if W2PF:
        mksrd(S_W2); cpsrd(S_W2, 4)
        e(f"s_lshr_b32 s{sT2}, s{sMB}, 3")
        e("s_mov_b64 exec, 1")
        A.vmem(f"buffer_load_dword v{t2}, off, {srd(S_W2)}, s{sT2}", "pf")
        e("s_mov_b64 exec, -1")
    if BPF:
        e("s_mov_b32 exec_hi, 0")
        A.vmem(f"buffer_load_dword v{t2}, v{t1}, {srd(S_W1)}, s{sT2} offen", "pf")
        e("s_mov_b64 exec, -1")
    lab("L_lead")
    e(f"s_lshr_b32 s{sT2}, s{sT0}, 1")
    e(f"s_add_u32 m0, s{sT2}, s{sMB}")
    e(f"s_add_u32 s{sT3}, s{sT3}, 1")
    for n in range(4):
        e(f"buffer_load_dwordx4 v{vW}, {srd(S_W1)}, s{sT0} offen lds")
        if n < 3: e("s_addk_i32 m0, 0x1000")
        e(f"s_addk_i32 s{sT0}, 0x2000")
    e(f"s_and_b32 s{sT0}, s{sT0}, {8*32768 - 1}")
    e(f"s_cmp_lt_u32 s{sT3}, 8")
    e("s_cbranch_scc1 L_lead")
    for k in range(4*LEAD - LEAD): A.vm.append("lead")
    for f in range(LEAD): A.vm.append(f"w{f}")
    e("s_branch L_Bl2")
    BST["sv"] = (A.vm, A.ds, A.vm_done, A.ds_done, nst[0])

def role_b():
    A.vm, A.ds, A.vm_done, A.ds_done, nst[0] = BST["sv"]
    lab("L_Bl2")
    t1 = 15
    e(f"v_lshrrev_b32 v{t1}, 4, v0")
    e(f"v_xor_b32 v{t1}, v{t1}, v0")
    e(f"v_and_b32 v{t1}, 7, v{t1}")
    e(f"v_lshlrev_b32 v{vS}, 4, v{t1}")
    if STAMPS:
        rest_srds(); rest_srds2()
    if TOUCH == 2:
        for k in (4, 5, 6, 7):
            e(f"s_load_dword s{sT3}, s[{KT+2*k}:{KT+2*k+1}], 0")
    wq = [(f, n) for f in range(LEAD, 26) for n in range(4)]
    def wpiece():
        f, n = wq.pop(0)
        e(f"s_add_u32 m0, s{sMB}, {WBASE + (f % NWS)*16384 + n*4096}")
        e(f"s_mov_b32 s{sT0}, {f*32768 + n*8192}")
        A.vmem(f"buffer_load_dwordx4 v{vW}, {srd(S_W1)}, s{sT0} offen lds", f"w{f}")
    def gpiece(f):
        c = f >> 2
        for u in range(2):
            e(f"v_add_u32_dpp v{vGt[u]}, v{vIa[u] + (f & 3)}, v{vS} row_newbcast:{c} row_mask:0xf bank_mask:0x3")
        e(f"s_add_u32 m0, s{sMB}, {GBASE + (f % NGS)*8192}")
        for u in range(2):
            e(f"v_add_u32_dpp v{vGt[u]}, v{vIa[u] + (f & 3)}, v{vS} row_newbcast:{8+c} row_mask:0xf bank_mask:0xc")
        A.vmem(f"buffer_load_dwordx4 v{vGt[0]}, {srd(S_TAB)}, 0 offen lds", f"g{f}")
        e("s_addk_i32 m0, 0x1000")
        A.vmem(f"buffer_load_dwordx4 v{vGt[1]}, {srd(S_TAB)}, 0 offen lds", f"g{f}")
    A.vm_wait("idx")
    for u in range(2):
        for d in range(4): e(f"v_lshlrev_b32 v{vIa[u]+d}, 7, v{vIa[u]+d}")
    stamp()
    for f in range(NGS): gpiece(f)
    tot = len(wq); done = 0
    nsteps = 26 - NGS
    for f in range(26):
        A.vm_wait(f"g{f}"); A.vm_wait(f"w{f}")
        e("s_barrier")
        if f in (0, 6, 12, 18, 25): stamp()
        if f >= 1 and f - 1 + NGS < 26:
            tgt = f * tot // nsteps
            while done < tgt and wq and wq[0][0] <= f - 1 + NWS:
                wpiece(); done += 1
            gpiece(f - 1 + NGS)
    assert not wq
    e("s_branch L_end")
    lab("L_Bc")
    A.reset(); nst[0] = 0
    aEm = [1, 2]; aW = [[3, 4], [5, 6]]
    W2 = 176; ACC = 32
    EF = lambda st, ks, rt: 64 + st*32 + ks*16 + rt*4
    WFr = lambda st, ks, ct: 128 + st*16 + ks*8 + ct*4
    t0, t1, t2, t3 = 7, 9, 10, 11
    rest_srds()
    consts()
    e(f"v_and_b32 v{t0}, 15, v0")
    e(f"v_bfe_u32 v{t1}, v0, 4, 2")
    e(f"v_bfe_u32 v{t2}, v0, 1, 3")
    e(f"v_xor_b32 v{t2}, v{t2}, v{t1}")
    e(f"v_lshlrev_b32 v{t2}, 4, v{t2}")
    e(f"v_lshl_add_u32 v{t2}, v{t0}, 7, v{t2}")
    e(f"v_add_u32 v{aEm[0]}, {GBASE}, v{t2}")
    e(f"v_xor_b32 v{aEm[1]}, 64, v{aEm[0]}")
    e(f"v_bfe_u32 v{t0}, v0, 2, 2")
    e(f"v_lshl_add_u32 v{t2}, v{t1}, 3, v{t0}")
    e(f"v_lshlrev_b32 v{t2}, 8, v{t2}")
    e(f"v_xor_b32 v{t0}, s{sW}, v{t0}")
    e(f"v_lshl_add_u32 v{t2}, v{t0}, 6, v{t2}")
    e(f"v_bfe_u32 v{t0}, v0, 4, 1")
    e(f"v_lshl_add_u32 v{t2}, v{t0}, 5, v{t2}")
    e(f"v_and_b32 v{t0}, 3, v0")
    e(f"v_lshl_add_u32 v{aW[0][0]}, v{t0}, 3, v{t2}")
    e(f"v_xor_b32 v{aW[0][1]}, 32, v{aW[0][0]}")
    for ct in range(2): e(f"v_add_u32 v{aW[1][ct]}, 0x10000, v{aW[0][ct]}")
    e(f"s_lshl_b32 s{sT0}, s{sHF}, 8")
    e(f"s_lshl_b32 s{sT1}, s{sW}, 6")
    e(f"s_add_u32 s{sT0}, s{sT0}, s{sT1}")
    e(f"v_lshlrev_b32 v{t1}, 3, v{t1}")
    e("s_waitcnt lgkmcnt(0)")
    rest_srds2()
    e(f"s_mov_b32 s{sT2}, s{sT0}")
    if NPB:
        cm("weight prefetch into L2: 16 lines per wave and block")
        e(f"s_lshr_b32 s{sT0}, s2, 5")
        e(f"s_lshl1_add_u32 s{sT0}, s{sT0}, s{sHF}")
        e(f"s_lshl2_add_u32 s{sT0}, s{sT0}, s{sW}")
        e(f"s_lshl_b32 s{sT0}, s{sT0}, 11")
        e(f"v_and_b32 v{t0}, 15, v0")
        e(f"v_lshl_add_u32 v{t0}, v{t0}, 7, s{sT0}")
        e(f"v_bfe_u32 v{t2}, v0, 4, 2")
        e(f"v_lshl_add_u32 v{t0}, v{t2}, 17, v{t0}")
        nw1 = min(NPB, 6 - NPF0)
        for b0 in range(0, nw1, 4):
            n = min(4, nw1 - b0)
            if n < 4: e(f"s_mov_b64 exec, {hex((1 << (16*n)) - 1) if n < 3 else '-1'}")
            if n == 3: e("s_mov_b32 exec_hi, 0xffff")
            if n == 2: e("s_mov_b32 exec_lo, -1"); e("s_mov_b32 exec_hi, 0")
            e(f"s_mov_b32 s{sT0}, {65536 + (NPF0 + b0)*131072}")
            e(f"buffer_load_dword v{t3}, v{t0}, {srd(S_W1)}, s{sT0} offen")
            e("s_mov_b64 exec, -1")
    for i in range(32): e(f"v_mov_b32 v{ACC+i}, 0")
    C0 = 12
    e(f"v_mov_b32 v{C0}, s{sC0}"); e(f"v_mov_b32 v{C0+1}, s{sC0}")
    e(f"v_mov_b32 v{C0+2}, s{sC1}"); e(f"v_mov_b32 v{C0+3}, s{sC1}")
    W2R = 160
    vHo, vBt, vBt2 = 172, 175, 193
    e(f"v_lshlrev_b32 v{vHo}, 3, v0")
    e(f"s_lshl1_add_u32 s{sT3}, s{sRG}, s{sHF}")
    e(f"s_lshl_b32 s{sT3}, s{sT3}, 9")
    e(f"s_lshl_b32 s{sT0}, s{sW}, 28")
    e(f"s_add_u32 s{sT3}, s{sT3}, s{sT0}")
    def late_loads():
        for q in range(2):
            A.vmem(f"buffer_load_dwordx2 {vr(W2R + 2*q, 2)}, v{t1}, {srd(S_W2)}, s{sT2} offen offset:{32*q}", "w2")
        A.vmem(f"buffer_load_dword v{vBt}, v{vHo}, {srd(S_WS)}, s{sT3} offen offset:4 sc1", "tag")
        e(f"s_add_u32 s{sMB}, s{sT3}, 0x10000")
        A.vmem(f"buffer_load_dword v{vBt2}, v{vHo}, {srd(S_WS)}, s{sMB} offen offset:4 sc1", "tag")
        e(f"s_lshl_b32 s{sT0}, s{sW}, 6")
        e(f"s_add_u32 s{sT0}, s{sT0}, s{sRG}")
        e(f"s_lshl_b32 s{sT0}, s{sT0}, 2")
        e("s_mov_b64 exec, 1")
        A.vmem(f"buffer_load_dword v{vHo+1}, off, {srd(S_DBG)}, s{sT0} sc1", "afl")
        e("s_mov_b64 exec, -1")
    def w2_unpack():
        A.vm_wait("w2")
        for d in range(4):
            e(f"v_lshlrev_b32 v{W2 + 2*d}, 16, v{W2R + d}")
            e(f"v_and_b32 v{W2 + 2*d + 1}, s{sMSK}, v{W2R + d}")
    stamp()
    def rdl(f, ks):
        st = f & 1; ws = f % NWS
        out = []
        def w(ct, u): out.append((f"ds_read_b64_tr_b16 {vr(WFr(st, ks, ct) + 2*u, 2)}, v{aW[ws >> 2][ct]} offset:{(ws & 3)*16384 + ks*8192 + u*1024}", f"r{f}_{ks}a"))
        def em(rt, tag): out.append((f"ds_read_b128 {vr(EF(st, ks, rt), 4)}, v{aEm[ks]} offset:{(f % NGS)*8192 + rt*2048}", tag))
        w(0, 0); w(0, 1); w(1, 0); w(1, 1); em(0, f"r{f}_{ks}a"); em(1, f"r{f}_{ks}b"); em(2, f"r{f}_{ks}c"); em(3, f"r{f}_{ks}d")
        return out
    def mm1(f, ks, rt, ct):
        st = f & 1
        if "bnomm" in X: return
        if "snake" in X and rt & 1: ct ^= 1
        if "rtin" in X:
            k_ = rt*2 + ct; rt, ct = (k_ & 3) if k_ < 4 else 3 - (k_ & 3), k_ >> 2
        d = ACC + rt*8 + ct*4
        if "swapab" in X: mf16(d, EF(st, ks, rt), WFr(st, ks, ct), d)
        else: mf16(d, WFr(st, ks, ct), EF(st, ks, rt), d)
    for f in range(26):
        cm(f"-- B step {f}")
        e("s_barrier")
        if f in (0, 6, 12, 18, 25): stamp()
        if "bidle" in X:
            if f == 23: late_loads()
            continue
        r0, r1 = rdl(f, 0), rdl(f, 1)
        if BLAG:
            rr = r0 + r1
            for k in range(16):
                if f: mm1(f - 1, k >> 3, (k >> 1) & 3, k & 1)
                for _ in range(2):
                    if rr: A.lds(*rr.pop(0))
            if f == LL: late_loads()
            A.ds_all()
            continue
        for k in range(8):
            A.lds(*r0[k])
            if k >= 4 and f: mm1(f - 1, 1, (k - 4) >> 1, k & 1)
        for k in range(4):
            if f: mm1(f - 1, 1, 2 + (k >> 1), k & 1)
            A.lds(*r1[k])
        for k in range(8):
            if "rtin" in X:
                if k < 4: A.ds_wait(f"r{f}_0" + "abcd"[k])
            elif not k & 1: A.ds_wait(f"r{f}_0" + "abcd"[k >> 1])
            mm1(f, 0, k >> 1, k & 1)
            if k < 4: A.lds(*r1[4 + k])
        if f == LL: late_loads()
        A.ds_all()
    if BLAG:
        for k in range(16): mm1(25, k & 1, k >> 2, (k >> 1) & 1)
    else:
        for k in range(8): mm1(25, 1, k >> 1, k & 1)
    w2_unpack()
    stamp()
    S = 164
    TT = 64
    for hf in range(2):
        ls = []
        for p in range(8):
            rt = 2*hf + (p >> 2); pp = p & 3
            x = ACC + rt*8 + 2*pp; t = TT + 2*p
            with Cap() as c:
                e(f"v_pk_mul_f32 {vr(t,2)}, {vr(x,2)}, {vr(x,2)}")
                e(f"v_pk_fma_f32 {vr(t,2)}, {vr(t,2)}, {vr(C0+2,2)}, {vr(C0,2)}")
                e(f"v_pk_mul_f32 {vr(t,2)}, {vr(t,2)}, {vr(x,2)}")
                e(f"v_exp_f32 v{t}, v{t}")
                e(f"v_exp_f32 v{t+1}, v{t+1}")
                e(f"v_pk_mul_f32 {vr(x,2)}, {vr(x,2)}, {vr(W2 + 2*pp,2)}")
                e(f"v_pk_add_f32 {vr(t,2)}, {vr(t,2)}, 1.0 op_sel_hi:[1,0]")
                e(f"v_rcp_f32 v{t}, v{t}")
                e(f"v_rcp_f32 v{t+1}, v{t+1}")
                if pp == 0: e(f"v_pk_mul_f32 {vr(S + 2*rt,2)}, {vr(x,2)}, {vr(t,2)}")
                else: e(f"v_pk_fma_f32 {vr(S + 2*rt,2)}, {vr(x,2)}, {vr(t,2)}, {vr(S + 2*rt,2)}")
            ls.append(c.l)
        zipl(ls)
    for rt in range(4): e(f"v_add_f32 v{S + 2*rt}, v{S + 2*rt}, v{S + 2*rt + 1}")
    e(f"v_lshlrev_b32 v1, 2, v0")
    e(f"v_add_u32 v1, {B_RED}, v1")
    e(f"v_permlane32_swap_b32 v{S}, v{S+4}")
    e(f"v_permlane32_swap_b32 v{S+2}, v{S+6}")
    e(f"v_add_f32 v{S}, v{S}, v{S+4}")
    e(f"v_add_f32 v{S+2}, v{S+2}, v{S+6}")
    e(f"v_permlane16_swap_b32 v{S}, v{S+2}")
    e(f"v_add_f32 v{S}, v{S}, v{S+2}")
    e(f"ds_write_b32 v1, v{S}")
    e("s_waitcnt lgkmcnt(0)")
    e("s_barrier")
    stamp()
    e(f"s_cmp_lg_u32 s{sW}, 0")
    e("s_cbranch_scc1 L_end")
    for k in range(1, 4): e(f"ds_read_b32 v{16+k}, v1 offset:{256*k}")
    e(f"s_lshl_b32 s{sT1}, s{sRG}, 2")
    e(f"s_lshl_b32 s{sT2}, s{sHF}, 4")
    e(f"s_lshl_b32 s{sT2}, 2, s{sT2}")
    e(f"v_mov_b32 v6, s{sT2}")
    e("s_waitcnt vmcnt(0) lgkmcnt(0)")
    e(f"v_add_u32 v{vBt}, 1, v{vBt}")
    e(f"v_add_u32 v{vBt2}, 1, v{vBt2}")
    e(f"v_add_f32 v{S}, v{S}, v17")
    e(f"v_add_f32 v18, v18, v19")
    e(f"v_add_f32 v{vBt-1}, v{S}, v18")
    e(f"buffer_store_dwordx2 {vr(vBt-1,2)}, v{vHo}, {srd(S_WS)}, s{sT3} offen")
    e(f"v_mov_b32 v{vBt2-1}, v{vBt-1}")
    e(f"buffer_store_dwordx2 {vr(vBt2-1,2)}, v{vHo}, {srd(S_WS)}, s{sMB} offen sc1")
    e(f"v_readfirstlane_b32 s{sT0}, v{vHo+1}")
    e(f"s_and_b32 s{sT0}, s{sT0}, 0x01000100")
    e(f"s_cmp_eq_u32 s{sT0}, 0x01000100")
    e("s_cbranch_scc1 L_end")
    e("s_waitcnt vmcnt(0)")
    e("s_mov_b64 exec, 1")
    e(f"buffer_atomic_or v6, off, {srd(S_DBG)}, s{sT1} sc1")
    if STAMPS: e("s_mov_b64 exec, -1")

def fin():
    lab("L_end")
    if STAMPS:
        e("s_waitcnt vmcnt(0)")
        e("s_memtime s[100:101]")
        e("s_memrealtime s[72:73]")
        e("s_waitcnt lgkmcnt(0)")
        e(f"v_writelane_b32 v{VST[0]}, s4, 0")
        e(f"v_writelane_b32 v{VST[0]}, s70, 32")
        e(f"v_writelane_b32 v{VST[0]}, s100, 25")
        e(f"v_writelane_b32 v{VST[0]}, s72, 57")
        e(f"s_lshl3_add_u32 s{sT0}, s2, s{sW}")
        e(f"s_lshl_b32 s{sT0}, s{sT0}, 8")
        e(f"s_add_u32 s{sT0}, s{sT0}, 0x400000")
        e("v_and_b32 v0, 63, v0")
        e("v_lshlrev_b32 v0, 2, v0")
        e(f"buffer_store_dword v{VST[0]}, v0, {srd(S_WS)}, s{sT0} offen")
    lab("L_exit")
    e("s_endpgm")
    lab("L_codeend")

def main():
    A.raw("; Kernarg: in0 idx, in1 table, in2 se_w1, in3 se_w2, in4 w_bi, in5 w_cross, in6 w_deep1, in7 w_deep2, out, debug, ws")
    A.raw(f"; @launch grid=(256,1,1) block=(512,1,1) lds={LDS_TOTAL}")
    for t in ['.amdgcn_target "amdgcn-amd-amdhsa--gfx950"', ".text", f".globl {KN}", ".p2align 12", f".type {KN},@function", f"{KN}:"]: A.raw(t)
    entry()
    role_a()
    role_b()
    fin()
    for t in ['.section .rodata,"a"', ".p2align 6", f".amdhsa_kernel {KN}", "  .amdhsa_next_free_vgpr 256", "  .amdhsa_next_free_sgpr 102",
              "  .amdhsa_accum_offset 256", "  .amdhsa_group_segment_fixed_size 0", "  .amdhsa_kernarg_size 88", "  .amdhsa_user_sgpr_count 2",
              "  .amdhsa_user_sgpr_kernarg_segment_ptr 1", "  .amdhsa_system_sgpr_workgroup_id_x 1", ".end_amdhsa_kernel"]: A.raw(t)
    if "nodot" in X:
        import re
        A.L = [re.sub(r"v_dot2c?_f32_bf16 (v\d+), (v\d+), (v\d+).*", r"v_cvt_pk_bf16_f32 \1, \2, \3", x) for x in A.L]
    for fl in ("sc1", "sc0", "nt"):
        if "bw" + fl in X: A.L = [x.replace(" offen lds", f" offen {fl} lds") if f"v{vW}, {srd(S_W1)}" in x else x for x in A.L]
        if "bg" + fl in X: A.L = [x.replace(" offen lds", f" offen {fl} lds") if (f"v12, {srd(S_TAB)}" in x or f"v13, {srd(S_TAB)}" in x) else x for x in A.L]
    out = autonop([x for x in A.L if x is not None])
    open(sys.argv[1], "w").write("\n".join(out) + "\n")
main()
```

```python
import os, sys, math
sys.path.insert(0, os.path.dirname(os.path.abspath(__file__)))
from asmlib import *

STAMPS = int(os.environ.get("STAMPS", "0"))
def P(name, d): return int(os.environ.get(name, d))
SWZ = P("SWZ", 2); SKEW = P("SKEW", 0); RSLEEP = P("RSLEEP", 8); RATOM = P("RATOM", 0)
KN = "standalone__deep_cross_fibinet__recsys_kernel"
A = Asm(); e = A.e; lab = A.lab; cm = A.cm

S_IDX, S_TAB, S_W1, S_WC, S_WBI, S_SW1, S_SW2, S_W2, S_OUT, S_DBG, S_WS = [8 + 4*i for i in range(11)]
SIZE = {S_IDX: 4096*104, S_TAB: 100000*128, S_W1: 1664*512, S_WC: 86528*2, S_WBI: 8192, S_SW1: 676, S_SW2: 676, S_W2: 512,
        S_OUT: 8192, S_DBG: 256, S_WS: 1 << 28}
sW, sRG, sHF, sX16 = 52, 53, 54, 55
sT0, sT1, sT2, sT3 = 56, 57, 58, 59
sMB, sMB2, sK6, sM6 = 60, 61, 62, 63
sMa, sMa3, sMb, sKa3 = 6, 7, 3, 55
sLO, sHI, sC0, sC1, sMSK, sNL = 64, 65, 66, 67, 68, 69
KT = 84
def srd(b): return f"s[{b}:{b+3}]"

nst = [0]
FS = P("FS", 6)
fst = [0]
def fstamp(force=False):
    if STAMPS != 3 or (FS == -2 and not force): return
    k = fst[0]; fst[0] += 1
    e("s_memtime s[100:101]")
    e("s_waitcnt lgkmcnt(0)")
    e(f"v_writelane_b32 v{VST[0]}, s100, {k + 1}")
    A.ds_done = len(A.ds) - 1
def stamp():
    if STAMPS != 1: return
    k = nst[0]; nst[0] += 1
    assert k < 24
    e("s_memtime s[100:101]")
    e("s_waitcnt lgkmcnt(0)")
    e(f"v_writelane_b32 v{VST[0]}, s100, {k + 1}")
    e("s_memrealtime s[100:101]")
    e("s_waitcnt lgkmcnt(0)")
    e(f"v_writelane_b32 v{VST[0]}, s100, {k + 33}")
    A.ds_done = len(A.ds) - 1
VST = [26]

def mf16(d, a, b, c=None):
    e(f"v_mfma_f32_16x16x32_bf16 {vr(d,4)}, {vr(a,4)}, {vr(b,4)}, {'0' if c is None else vr(c,4)}")
def mf32(d, a, b, c=None):
    e(f"v_mfma_f32_32x32x16_bf16 {vr(d,16)}, {vr(a,4)}, {vr(b,4)}, {'0' if c is None else vr(c,16)}")

def mksrd(b):
    e(f"s_mov_b32 s{b+2}, {SIZE[b]}")
    e(f"s_mov_b32 s{b+3}, 0x00020000")
def cpsrd(b, k):
    e(f"s_mov_b64 s[{b}:{b+1}], s[{KT+2*k}:{KT+2*k+1}]")

def entry():
    e("s_cmp_ge_u32 s2, 256")
    e("s_cbranch_scc1 L_exit")
    if SKEW:
        cm("diagnostic: start one group late")
        e("s_and_b32 s3, s2, 7")
        e(f"s_cmp_lt_u32 s3, {P('SKG', 4)}")
        e("s_cbranch_scc1 L_nosk")
        for _ in range(SKEW): e("s_sleep 16")
        lab("L_nosk")
    if STAMPS:
        e("s_memtime s[4:5]")
        e("s_memrealtime s[70:71]")
    e(f"s_load_dwordx2 s[{S_IDX}:{S_IDX+1}], s[0:1], 0")
    e(f"s_load_dwordx2 s[{S_W1}:{S_W1+1}], s[0:1], 48")
    e(f"s_load_dwordx2 s[{S_TAB}:{S_TAB+1}], s[0:1], 8")
    e(f"s_load_dwordx8 s[{KT}:{KT+7}], s[0:1], 16")
    e(f"s_load_dwordx8 s[{KT+8}:{KT+15}], s[0:1], 56")
    if SWZ:
        cm("spread the two roles over the shader engines: swap bit 4 with a higher bit of the workgroup id")
        e(f"s_lshr_b32 s{sT0}, s2, {SWZ}")
        e(f"s_xor_b32 s{sT0}, s{sT0}, s2")
        e(f"s_bfe_u32 s{sT0}, s{sT0}, 0x10004")
        e(f"s_mul_i32 s{sT0}, s{sT0}, {0x10 | (0x10 << SWZ)}")
        e(f"s_xor_b32 s2, s2, s{sT0}")
    e("v_lshrrev_b32 v1, 6, v0")
    e(f"s_lshr_b32 s{sT0}, s2, 5")
    e(f"v_readfirstlane_b32 s{sW}, v1")
    e(f"s_and_b32 s{sT1}, s2, 7")
    e(f"s_lshl3_add_u32 s{sRG}, s{sT0}, s{sT1}")
    e(f"s_bfe_u32 s{sHF}, s2, 0x10003")
    if CPF:
        cm("pull the kernel's code into L2: one 128-byte line per wave")
        e(f"s_getpc_b64 s[{S_WC}:{S_WC+1}]")
        lab("L_pc")
        e(f"s_mov_b32 s{S_WC+2}, L_codeend-L_pc")
        e(f"s_mov_b32 s{S_WC+3}, 0x00020000")
        e(f"s_andn2_b32 s{sT0}, s2, 7")
        e(f"s_add_u32 s{sT0}, s{sT0}, s{sW}")
        e(f"s_lshl_b32 s{sT0}, s{sT0}, 7")
        e("s_mov_b64 exec, 1")
        e(f"buffer_load_dword v8, off, {srd(S_WC)}, s{sT0}")
        e("s_mov_b64 exec, -1")
    mksrd(S_IDX); mksrd(S_W1); mksrd(S_TAB)
    if P("DELAY", 0):
        cm("diagnostic: delay the workgroups with (s2 & mask) == value")
        e(f"s_and_b32 s3, s2, {P('DMASK', 16)}")
        e(f"s_cmp_lg_u32 s3, {P('DVAL', 0)}")
        e("s_cbranch_scc1 L_nodl")
        for _ in range(P("DELAY", 0)): e("s_sleep 64")
        lab("L_nodl")
    e("s_bitcmp1_b32 s2, 4")
    e("s_cbranch_scc1 L_B")

def rest_srds():
    for b in (S_SW1, S_SW2, S_WBI, S_WC, S_W2, S_OUT, S_DBG, S_WS): mksrd(b)
def rest_srds2():
    for k, b in enumerate((S_SW1, S_SW2, S_WBI, S_WC, S_W2, S_OUT, S_DBG, S_WS)): cpsrd(b, k)

def consts():
    c0 = -2.0 * math.sqrt(2.0 / math.pi) * math.log2(math.e)
    e(f"s_mov_b32 s{sLO}, 0x05040100")
    e(f"s_mov_b32 s{sHI}, 0x07060302")
    e(f"s_mov_b32 s{sC0}, {fbits(c0)}")
    e(f"s_mov_b32 s{sC1}, {fbits(c0 * 0.044715)}")
    e(f"s_mov_b32 s{sMSK}, 0xffff0000")
    e(f"s_mov_b32 s{sNL}, {fbits(-math.log2(math.e))}")

R0, R1, R2 = 0, 53248, 106496
MISC = 147456
L_WBI, L_SE1, L_SE2, L_AV = MISC - 8192, MISC + 8192, MISC + 9216, MISC + 10240
LDS_TOTAL = 163840
L_CNT = LDS_TOTAL - 64
vSw, vI, vG, vPf, vDum = 1, 2, [6, 9], 7, 8
sMG = 78
aE = [[10, 11], [12, 13]]
aC, aC6, aC2 = [14, 15], [16, 17], [22, 23]
vJ = [18, 19]
vFl, vPw = 22, 23
WFB = 0x40000
L_PST = R2
aAw = 28; aAr = [29, 30]; aRed = 31; sSt = 7
vTag2 = 26 if not STAMPS else 28
vHo, vTag, vPo = 20, 21, 24
XF, CAP, RAW, WF, T = 32, 96, 152, 180, 196
AF, DD, WB, ZF, SE1F, SE2F = T, WF, RAW, RAW + 8, RAW + 12, RAW + 16
RING = [96, 100, 104, 108, 112, 116, RAW + 20, RAW + 24]
UH, XQ, AJ = 120, RAW, WF
TS = [[T + 4*i for i in range(8)], [228, 232, 236, 240, 244, 248, 252, RAW + 16]]
ACC = [2, 10]
IMG = R2
aXw, aXr = 27, 25
ONES, DZ = CAP + 32, RAW + 24
AKL = [[1, 6, 7], [8, 9, 27]]
LF = [[[2, 3], [4, 5]], [[10, 11], [12, 13]]]
def xf(el, t, q): return XF + el*8 + t*4 + q
GAHEAD = P("GAHEAD", 6)
G0 = P("G0", 5)
TOUCH = P("TOUCH", 0)
CPF = P("CPF", 1)
X = os.environ.get("X", "").split(",")
NPF0 = P("NPF0", 3)
PFAT = P("PFAT", 9)
SPEC = P("SPEC", 14)
NPB = 0
BPF = P("BPF", 0)
PF0 = P("LEAD", 6)
GW0 = P("GW0", 0)
FLD = P("FLD", 7)
FSIG = P("FSIG", 2)
FCHK = P("FCHK", 10)
ABAR = P("ABAR", 3)
LATE0 = P("LATE0", 0)
EVEN = P("EVEN", 0)
PRIO = P("PRIO", 0)
W2PF = P("W2PF", 1)
PFE = P("PFE", 0)
ZNL = P("ZNL", 1)
PFEAT = P("PFEAT", 0)
PP = P("PP", 0)
PPU = P("PPU", 5)
DW = P("DW", 1)
W1W = P("W1W", 1)
OPS = 0
PKZ = P("PKZ", 1)
FW = P("FW", 2)
RB = P("RB", 0)
PK2 = P("PK2", 0)
MERGE = P("MERGE", 1) and FCHK != 12
BLAG = P("BLAG", 0)
LL = P("LL", 23)
DBLST = P("DBLST", 0)
NST = P("NST", 0)
NPS = P("NPS", 2)
SPF = P("SPF", -1)
PFB = [(S_W1, 512 + 1024*k) for k in range(6)] + [(S_WC, 0), (S_WC, 1024)]

def a_gaddr(k, h):
    g = vG[k & 1]
    def one(c, r):
        if h == 0: e(f"v_add_u32_dpp v{g}, v{r}, v{vSw} row_newbcast:{c} row_mask:0xf bank_mask:0x3")
        else: e(f"v_add_u32_dpp v{g}, v{r}, v{vSw} row_newbcast:{8+c} row_mask:0xf bank_mask:0xc")
    if k < 12: one(2*(k >> 2), vI + (k & 3))
    else: one(6, vI)
def a_gm0(k):
    if k < 12: e(f"s_add_u32 m0, s{sMG}, {(8*(k >> 2) + (k & 3))*4096}")
    else: e(f"s_add_u32 m0, s{sMB}, {24*4096}")
def a_gissue(k):
    A.vmem(f"buffer_load_dwordx4 v{vG[k & 1]}, {srd(S_TAB)}, 0 offen lds", f"g{k}")
def a_gather(k):
    a_gaddr(k, 0)
    a_gm0(k)
    a_gaddr(k, 1)
    a_gissue(k)

def gelu(dst, x, t0, vc0):
    e(f"v_mul_f32 v{t0}, v{x}, v{x}")
    e(f"v_fma_f32 v{t0}, v{t0}, s{sC1}, v{vc0}")
    e(f"v_mul_f32 v{t0}, v{t0}, v{x}")
    e(f"v_exp_f32 v{t0}, v{t0}")
    e(f"v_add_f32 v{t0}, 1.0, v{t0}")
    e(f"v_rcp_f32 v{t0}, v{t0}")
    e(f"v_mul_f32 v{dst}, v{x}, v{t0}")

def zipl(lists):
    n = max(len(x) for x in lists)
    for i in range(n):
        for x in lists:
            if i < len(x): A.L.append(x[i])
class Cap:
    def __enter__(s): s.sv = A.L; A.L = []; s.l = A.L; return s
    def __exit__(s, *a): A.L = s.sv

ob = [0]
class Older:
    def __enter__(s):
        ob[0] += 1; s.n = ob[0]
        e(f"s_cmp_ge_u32 s{sW}, 4"); e(f"s_cbranch_scc1 L_o{s.n}")
    def __exit__(s, *a): lab(f"L_o{s.n}")
class Younger:
    def __enter__(s):
        ob[0] += 1; s.n = ob[0]
        e(f"s_cmp_lt_u32 s{sW}, 4"); e(f"s_cbranch_scc1 L_o{s.n}")
    def __exit__(s, *a): lab(f"L_o{s.n}")

def setexec(m32):
    e(f"s_mov_b32 exec_lo, {m32:#x}")
    e(f"s_mov_b32 exec_hi, {m32:#x}")

def role_a():
    A.reset()
    U, AK, ACCP = 228, 236, 252
    t0, t1, t2, t3, t4, t5 = U, U+1, U+2, U+3, U+4, U+5
    L15, G, aWb, GP, R01 = CAP + 51, CAP + 52, CAP + 53, CAP + 54, CAP + 55
    aS1, aS1t, aS2 = CAP + 48, CAP + 49, CAP + 50
    PA = CAP
    sKb, sJt, sWF, sPc = sM6, 55, sK6, 3
    cm("===== role A")
    e(f"v_bfe_u32 v{t0}, v0, 3, 5")
    e(f"v_mul_u32_u24 v{t0}, 104, v{t0}")
    e(f"v_and_b32 v{t1}, 7, v0")
    e(f"v_lshl_add_u32 v{t0}, v{t1}, 4, v{t0}")
    e(f"v_lshrrev_b32 v{t2}, 8, v0")
    e(f"v_lshl_add_u32 v{t0}, v{t2}, 4, v{t0}")
    cm("waves 4..7 read 16 bytes further; their lane 6 reads from field 25 instead")
    e(f"v_mul_u32_u24 v{t2}, 12, v{t2}")
    setexec(0x40404040)
    e(f"v_sub_u32 v{t0}, v{t0}, v{t2}")
    e("s_mov_b64 exec, -1")
    e(f"s_lshl1_add_u32 s{sT2}, s{sRG}, s{sHF}")
    e(f"s_mul_i32 s{sT2}, s{sT2}, {32*104}")
    e(f"s_lshl_b32 s{sMB}, s{sW}, 10")
    cm("producers (wg & 4 == 0): piece of w_cross, task = (part, jt, kb, g'); wave t loads line i(t) for 4 columns (lanes 0..31)")
    sG, sNP = 79, 82
    e(f"s_and_b32 s{sG}, s{sRG}, 3")
    e(f"s_bfe_u32 s{sKb}, s{sRG}, 0x10003")
    e(f"s_lshl1_add_u32 s{sKb}, s{sKb}, s{sHF}")
    e(f"s_bfe_u32 s{sJt}, s{sRG}, 0x10004")
    e(f"s_and_b32 s{sNP}, s{sRG}, 4")
    e(f"s_lshl_b32 s{sNP}, s{sNP}, 26")
    e(f"v_bfe_u32 v{t1}, v0, 1, 1")
    e(f"v_and_b32 v{t2}, 1, v0")
    e(f"v_lshl_add_u32 v{t1}, v{t1}, 3, v{t2}")
    e(f"s_lshl3_add_u32 s{sT0}, s{sJt}, s{sG}")
    e(f"s_lshl_b32 s{sT0}, s{sT0}, 1")
    e(f"v_add_u32 v{t1}, s{sT0}, v{t1}")
    e(f"s_add_u32 s{sT0}, s{sG}, 24")
    e(f"v_min_u32 v{t1}, s{sT0}, v{t1}")
    e(f"v_bfe_u32 v{t2}, v0, 2, 3")
    e(f"v_lshl_add_u32 v{t1}, v{t1}, 3, v{t2}")
    e(f"v_lshlrev_b32 v{t1}, 4, v{t1}")
    e(f"s_lshr_b32 s{sT0}, s{sW}, 1")
    e(f"s_lshl2_add_u32 s{sT0}, s{sT0}, s{sKb}")
    e(f"s_min_u32 s{sT0}, s{sT0}, 12")
    e(f"s_and_b32 s{sT1}, s{sW}, 1")
    e(f"s_lshl1_add_u32 s{sT0}, s{sT0}, s{sT1}")
    e(f"s_lshr_b32 s{sT1}, s{sRG}, 5")
    e(f"s_mul_i32 s{sT1}, s{sT1}, 26")
    e(f"s_add_u32 s{sT0}, s{sT0}, s{sT1}")
    e(f"s_mul_i32 s{sT0}, s{sT0}, 3328")
    e(f"s_add_u32 s{sPc}, s{sT0}, s{sNP}")
    e(f"s_mov_b32 s{S_SW2+2}, {SIZE[S_WC]}")
    e(f"s_mov_b32 s{S_SW2+3}, 0x00020000")
    e(f"s_lshr_b32 s{sT1}, s{sMB}, 1")
    e(f"s_add_u32 m0, s{sT1}, {L_PST}")
    e(f"s_lshr_b32 s6, s2, 5")
    e(f"s_lshl1_add_u32 s6, s6, s{sHF}")
    e("s_waitcnt lgkmcnt(0)")
    A.vmem(f"buffer_load_dwordx4 {vr(vI,4)}, v{t0}, {srd(S_IDX)}, s{sT2} offen", "idx")
    cpsrd(S_SW2, 3)
    fstamp()
    e("s_mov_b32 exec_hi, 0")
    A.vmem(f"buffer_load_dwordx4 v{t1}, {srd(S_SW2)}, s{sPc} offen lds", "pc")
    e("s_mov_b64 exec, -1")
    mksrd(S_WBI); cpsrd(S_WBI, 2)
    e(f"v_lshlrev_b32 v{t3}, 4, v0")
    e(f"s_mul_i32 s{sT0}, s{sW}, 1056")
    e(f"s_add_u32 m0, s{sT0}, {L_WBI}")
    e(f"s_lshl_b32 s{sT0}, s6, 13")
    A.vmem(f"buffer_load_dwordx4 v{t3}, {srd(S_WBI)}, 0 offen lds", "sm")
    e(f"v_and_b32 v{t2}, 63, v0")
    e(f"v_lshl_add_u32 v{vPf}, v{t2}, 7, s{sT0}")
    e(f"s_sub_u32 s{sT1}, s{sW}, {8 - NPF0}")
    e(f"s_lshl_b32 s{sT1}, s{sT1}, 17")
    e(f"s_add_u32 s{sT1}, s{sT1}, s{sT0}")
    e(f"s_add_u32 s{sT1}, s{sT1}, {PF0*32768}")
    e(f"s_cmp_lt_u32 s{sW}, {8 - NPF0}")
    e(f"s_cselect_b32 s{sT1}, 0x7f000000, s{sT1}")
    e(f"s_cmp_eq_u32 s{sW}, 0")
    e(f"s_cselect_b64 s[{S_SW1}:{S_SW1+1}], s[{KT}:{KT+1}], s[{KT+2}:{KT+3}]")
    e(f"s_min_u32 s{sT0}, s{sMB}, 2048")
    e(f"s_add_u32 m0, s{sT0}, {L_SE1}")
    e(f"s_cmp_lt_u32 s{sW}, 2")
    e(f"s_cselect_b64 s[{S_SW1}:{S_SW1+1}], s[{S_SW1}:{S_SW1+1}], s[{S_W1}:{S_W1+1}]")
    e(f"s_cselect_b32 s{S_SW1+2}, 676, s{S_W1+2}")
    e(f"s_cselect_b32 s{sT1}, 0, s{sT1}")
    e(f"s_cselect_b32 s{sT3}, 4, 7")
    e(f"s_mov_b32 s{S_SW1+3}, 0x00020000")
    e(f"v_lshlrev_b32 v{t4}, s{sT3}, v{t2}")
    A.vmem(f"buffer_load_dwordx4 v{t4}, {srd(S_SW1)}, s{sT1} offen lds", "se")
    fstamp()
    e("s_branch L_A2")
    sv = (A.vm, A.ds, A.vm_done, A.ds_done, nst[0])
    b_head()
    A.vm, A.ds, A.vm_done, A.ds_done, nst[0] = sv
    lab("L_A2")
    e(f"s_and_b32 s{sT0}, s{sMB}, 0x1000")
    e(f"s_mul_i32 s{sT0}, s{sT0}, 3")
    e(f"s_add_u32 s{sMG}, s{sMB}, s{sT0}")
    e(f"v_lshrrev_b32 v{t1}, 4, v0")
    e(f"v_xor_b32 v{t1}, v{t1}, v0")
    e(f"v_and_b32 v{t1}, 7, v{t1}")
    e(f"v_lshlrev_b32 v{vSw}, 4, v{t1}")
    e(f"v_and_b32 v{L15}, 15, v0")
    e(f"v_bfe_u32 v{G}, v0, 4, 2")
    e(f"v_bfe_u32 v{t0}, v0, 1, 3")
    e(f"s_and_b32 s{sT0}, s{sMB}, 0x400")
    e(f"s_lshl_b32 s{sT0}, s{sT0}, 1")
    e(f"v_lshl_add_u32 v{aC[1]}, v{L15}, 7, s{sT0}")
    e(f"v_xor_b32 v{t2}, v{G}, v{t0}")
    e(f"v_lshl_add_u32 v{aE[0][0]}, v{t2}, 4, v{aC[1]}")
    e(f"v_xor_b32 v{aE[1][0]}, 64, v{aE[0][0]}")
    e(f"v_xor_b32 v{aE[0][1]}, 0x800, v{aE[0][0]}")
    e(f"v_xor_b32 v{aE[1][1]}, 0x800, v{aE[1][0]}")
    e(f"v_bfe_u32 v{GP}, v0, 2, 2")
    e(f"v_and_b32 v{t1}, 1, v0")
    e(f"v_lshl_add_u32 v{t1}, v{GP}, 1, v{t1}")
    e(f"v_bfe_u32 v{t4}, v0, 1, 1")
    e(f"v_lshl_add_u32 v{R01}, v{t4}, 3, v{t1}")
    e(f"s_lshl_b32 s{sT0}, s{sW}, 3")
    e(f"v_xor_b32 v{t3}, s{sT0}, v{R01}")
    e(f"s_movk_i32 s{sT0}, 528")
    e(f"v_mad_u32_u24 v{t3}, v{G}, s{sT0}, v{t3}")
    e(f"s_mov_b32 s{sT0}, {L_WBI}")
    e(f"v_lshl_add_u32 v{aWb}, v{t3}, 1, s{sT0}")
    e(f"s_lshl_b32 s{sT0}, s{sW}, 11")
    e(f"s_add_u32 s{sT0}, s{sT0}, {IMG}")
    e(f"s_xor_b32 s{sT1}, s{sT0}, 0x800")
    e(f"v_lshl_add_u32 v{t3}, v{G}, 7, v{L15}")
    e(f"v_lshl_add_u32 v{aXw}, v{t3}, 2, s{sT1}")
    e(f"v_and_b32 v{t3}, 63, v0")
    e(f"v_lshl_add_u32 v{aXr}, v{t3}, 2, s{sT0}")
    e(f"v_and_b32 v{t4}, 3, v0")
    e(f"v_bfe_u32 v{t5}, v0, 2, 3")
    e(f"v_lshl_add_u32 v{t3}, v{t4}, 3, v{t5}")
    e(f"s_lshl_b32 s{sT0}, s{sW}, 6")
    e(f"s_add_u32 s{sT0}, s{sT0}, {L_PST}")
    e(f"v_lshl_add_u32 v{PA}, v{t3}, 1, s{sT0}")
    e(f"v_mul_u32_u24 v{t3}, 3328, v{t5}")
    e(f"v_lshl_add_u32 v{PA+1}, v{t4}, 4, v{t3}")
    e(f"v_mov_b32 v{PA + 7}, 0")
    e(f"s_lshl2_add_u32 s{sT1}, s{sKb}, s{sG}")
    e(f"s_lshl_b32 s{sT1}, s{sT1}, 2")
    e(f"s_mul_i32 s{sT0}, s{sG}, 3")
    e(f"s_min_u32 s{sT0}, s{sT0}, 8")
    e(f"s_mul_i32 s{sT2}, s{sKb}, 10")
    e(f"s_add_u32 s{sT0}, s{sT0}, s{sT2}")
    e(f"s_add_u32 s{sT0}, s{sT0}, 64")
    e(f"s_cmp_lt_u32 s{sG}, 2")
    e(f"s_mov_b32 s{sG}, 0x33333333")
    e(f"s_cselect_b32 s{sG}, 0x77777777, s{sG}")
    e(f"s_cmp_eq_u32 s{sJt}, 0")
    e(f"s_cselect_b32 s{sT0}, s{sT1}, s{sT0}")
    e(f"s_cselect_b32 s{sG}, -1, s{sG}")
    e(f"s_lshr_b32 s{sT1}, s{sRG}, 5")
    e(f"s_mul_i32 s{sT1}, s{sT1}, 104")
    e(f"s_add_u32 s{sT0}, s{sT0}, s{sT1}")
    e(f"s_lshl_b32 s{sT0}, s{sT0}, 4")
    e(f"s_mul_i32 s{sMB2}, s{sW}, {8*3328}")
    e(f"s_add_u32 s{sMB2}, s{sMB2}, {WFB}")
    e(f"s_add_u32 s{sT0}, s{sT0}, s{sMB2}")
    e(f"s_add_u32 s{sWF}, s{sT0}, s{sNP}")
    e(f"s_lshl_b32 s{sT0}, s{sKb}, 3")
    e(f"s_lshl_b32 s{sJt}, 0xff, s{sT0}")
    mksrd(S_WS); cpsrd(S_WS, 7)
    e(f"v_and_b32 v{t3}, 31, v0")
    e(f"v_bfe_u32 v{t4}, v0, 5, 1")
    e(f"v_lshl_add_u32 v{t3}, v{t4}, 6, v{t3}")
    e(f"s_lshl2_add_u32 s{sT0}, s{sRG}, s{sHF}")
    e(f"s_lshl_b32 s{sT0}, s{sT0}, 8")
    e(f"v_lshl_add_u32 v{vHo}, v{t3}, 3, s{sT0}")
    def late_setup():
        u0, u1, u2 = PA + 2, PA + 3, aWb
        e(f"v_bfe_u32 v{u0}, v0, 1, 3")
        e(f"v_xor_b32 v{u0}, s{sW}, v{u0}")
        e(f"v_lshl_add_u32 v{u0}, v{u0}, 4, v{aC[1]}")
        e(f"v_lshl_add_u32 v{aC[0]}, v{G}, 13, v{u0}")
        e(f"v_xor_b32 v{aC[1]}, 0x800, v{aC[0]}")
        e(f"v_min_u32 v{u1}, 1, v{G}")
        e(f"v_add_u32 v{u1}, 24, v{u1}")
        e(f"v_lshl_add_u32 v{aC6[0]}, v{u1}, 12, v{u0}")
        e(f"v_xor_b32 v{aC6[1]}, 0x800, v{aC6[0]}")
        e(f"v_and_b32 v{u0}, 63, v0")
        e(f"v_lshlrev_b32 v{vJ[0]}, 4, v{u0}")
        e(f"s_lshl3_add_u32 s{sT0}, s6, s{sW}")
        e(f"s_mul_i32 s{sT0}, s{sT0}, {13*128}")
        e(f"s_add_u32 s{sT0}, s{sT0}, {WFB}")
        e(f"v_lshl_add_u32 v{vPw}, v{u0}, 7, s{sT0}")
        e(f"v_mul_u32_u24 v{u0}, 3, v{GP}")
        e(f"v_min_u32 v{u0}, 8, v{u0}")
        e(f"v_mad_u32_u24 v{u0}, v{G}, 10, v{u0}")
        e(f"v_and_b32 v{u1}, 3, v0")
        e(f"v_bfrev_b32 v{vJ[1]}, 2")
        setexec(0x33773377)
        e(f"v_add_lshl_u32 v{vJ[1]}, v{u0}, v{u1}, 4")
        e("s_mov_b64 exec, -1")
        e(f"s_and_b32 s{sT0}, s{sW}, 1")
        e(f"s_mul_i32 s{sT2}, s{sT0}, {16*144}")
        e(f"s_sub_u32 s{sT3}, {16*144 + L_AV}, s{sT2}")
        e(f"s_add_u32 s{sT2}, s{sT2}, {L_AV}")
        e(f"v_mul_u32_u24 v{u0}, 144, v{L15}")
        e(f"v_lshl_add_u32 v{u0}, v{G}, 5, v{u0}")
        e(f"v_add_u32 v{aAr[0]}, s{sT2}, v{u0}")
        e(f"v_add_u32 v{aAr[1]}, s{sT3}, v{u0}")
        e(f"s_lshl_b32 s{sSt}, s{sW}, 11")
        e(f"s_add_u32 s{sSt}, s{sSt}, {R2}")
        e(f"v_add_u32 v{aRed}, s{sSt}, v{vJ[0]}")
        with Older():
            e(f"s_and_b32 s{sT1}, s{sW}, 2")
            e(f"s_lshl_b32 s{sT1}, s{sT1}, 3")
            e(f"v_add_u32 v{u0}, s{sT1}, v{R01}")
            e(f"v_add_u32 v{u1}, 24, v{GP}")
            e(f"v_min_u32 v{u0}, v{u0}, v{u1}")
            e(f"v_mov_b32 v{u2}, {L_SE1}")
            e(f"s_movk_i32 s{sT3}, 208")
            e(f"v_mad_u32_u24 v{u1}, v{G}, s{sT3}, v{u2}")
            e(f"v_lshl_add_u32 v{aS2}, v{u0}, 1, v{u1}")
            e(f"v_lshl_add_u32 v{u2}, v{L15}, 1, v{u2}")
            e(f"v_mad_u32_u24 v{aS1t}, v{G}, 26, v{u2}")
            e(f"v_mad_u32_u24 v{aS1}, v{G}, 52, v{u2}")
            e(f"v_add_u32 v{aAw}, s{sT1}, v{aAr[0]}")
            for b in (S_OUT, S_DBG): mksrd(b)
            for k, b in enumerate((S_OUT, S_DBG)): cpsrd(b, k + 5)
            c0 = -2.0 * math.sqrt(2.0 / math.pi) * math.log2(math.e)
            e(f"s_mov_b32 s{sC0}, {fbits(c0)}")
            e(f"s_mov_b32 s{sC1}, {fbits(c0 * 0.044715)}")
            e(f"s_mov_b32 s{sMSK}, 0xffff0000")
            e(f"s_mov_b32 s{sNL}, {fbits(-math.log2(math.e))}")
            e(f"v_mov_b32 v{ZF+3}, 0")
    stamp()
    fstamp()
    A.vm_wait("idx")
    stamp()
    fs0 = (lambda: fstamp()) if FS == -1 else (lambda: None)
    fs0()
    for d in range(4): e(f"v_lshlrev_b32 v{vI+d}, 7, v{vI+d}")
    for s in range(G0): a_gather(s)
    fs0()
    def pfbatch(first=None, n=4):
        first = NPF0 + PFE if first is None else first
        assert first >= 1 or n < 4
        e(f"s_lshl_b32 s{sT1}, s{sW}, 17")
        e(f"s_add_u32 s{sT1}, s{sT1}, {PF0*32768 + first*131072}")
        if n < 4:
            e(f"s_cmp_lt_u32 s{sW}, {n}")
            e(f"s_cselect_b32 s{sT1}, s{sT1}, 0x7f000000")
        A.vmem(f"buffer_load_dword v{vDum}, v{vPf}, {srd(S_W1)}, s{sT1} offen", "o:pf")
    if PFE and PFEAT == 0:
        with Older(): pfbatch(NPF0, PFE)
    with Older():
        e(f"s_lshl_b32 s{sT0}, s{sW}, 28")
        A.vmem(f"buffer_load_dword v{vTag}, v{vHo}, {srd(S_WS)}, s{sT0} offen offset:4 sc1", "o:snap")
        e(f"s_add_u32 s{sT0}, s{sT0}, 0x10000")
        A.vmem(f"buffer_load_dword v{vTag2 if not STAMPS else vPo}, v{vHo}, {srd(S_WS)}, s{sT0} offen offset:4 sc1", "o:snap")
        cm("ONES quad r: 1/64 in the rows with (m&3) == r")
        e(f"v_and_b32 v{t4}, 3, v0")
        e(f"v_mov_b32 v{t5}, 0x3c803c80")
        for r in range(4):
            e(f"v_cmp_eq_u32 vcc, {r}, v{t4}")
            e(f"v_cndmask_b32 v{ONES + 4*r}, 0, v{t5}, vcc")
            for d in range(1, 4): e(f"v_mov_b32 v{ONES + 4*r + d}, v{ONES + 4*r}")
        e(f"s_waitcnt vmcnt({A.vm_count('sm', True)})")
    with Younger(): e(f"s_waitcnt vmcnt({A.vm_count('sm', False)})")
    fs0()
    e("s_barrier")
    fs0()
    e(f"s_cmp_lg_u32 s{sNP}, 0")
    e("s_mov_b32 exec_hi, 0")
    e("s_cbranch_scc1 L_np")
    for t in range(8):
        A.lds(f"ds_read_u16 v{PA + 12 + t}, v{PA} offset:{t*512}", "pr")
    lab("L_np")
    e("s_mov_b64 exec, -1")
    for k in range(16):
        if k == 7:
            A.ds_wait("pr")
            for q in range(3): e(f"v_lshl_or_b32 v{PA + 4 + q}, v{PA + 13 + 2*q}, 16, v{PA + 12 + 2*q}")
            e("s_mov_b32 exec_hi, 0")
            e(f"s_mov_b32 exec_lo, s{sJt}")
            e(f"v_lshl_or_b32 v{PA + 7}, v{PA + 19}, 16, v{PA + 18}")
            e("s_mov_b64 exec, -1")
        A.lds(f"ds_read_u16 v{T + k}, v{aWb} offset:{4*1056*(k >> 3) + (k & 7)*128}", "wb")
    e("s_mov_b32 exec_hi, 0")
    e(f"s_mov_b32 exec_lo, s{sG}")
    A.vmem(f"buffer_store_dwordx4 {vr(PA + 4, 4)}, v{PA + 1}, {srd(S_WS)}, s{sWF} offen sc1", "st")
    e("s_mov_b64 exec, -1")
    fs0()
    A.ds_all()
    for d in range(8): e(f"v_lshl_or_b32 v{WB + d}, v{T + 2*d + 1}, 16, v{T + 2*d}")
    if not LATE0: late_setup()
    def se_frags():
        TM2 = CAP + 20
        with Older():
            e("s_waitcnt lgkmcnt(4)")
            for t in range(6):
                e(f"ds_read_u16 v{TM2 + t}, v{CAP + 48} offset:{(8*(t >> 1) + (t & 1))*26}")
            e(f"ds_read_u16 v{SE1F + 3}, v{CAP + 49} offset:{24*26}")
            for kk in range(4):
                e(f"ds_read_u16 v{TM2 + 8 + kk}, v{CAP + 50} offset:{1024 + kk*52}")
            e("s_waitcnt lgkmcnt(0)")
            for q in range(3): e(f"v_lshl_or_b32 v{SE1F + q}, v{TM2 + 2*q + 1}, 16, v{TM2 + 2*q}")
            for q in range(2): e(f"v_lshl_or_b32 v{SE2F + q}, v{TM2 + 8 + 2*q + 1}, 16, v{TM2 + 8 + 2*q}")
    deferred = []
    fs0()
    stamp()
    def swaps(q, tls=(0, 1)):
        for tl in tls:
            for r in range(2):
                R = [xf(2*g + r, tl, q) for g in range(4)]
                e(f"v_permlane32_swap_b32 v{R[0]}, v{R[2]}")
                e(f"v_permlane32_swap_b32 v{R[1]}, v{R[3]}")
        for tl in tls:
            for r in range(2):
                R = [xf(2*g + r, tl, q) for g in range(4)]
                e(f"v_permlane16_swap_b32 v{R[0]}, v{R[1]}")
                e(f"v_permlane16_swap_b32 v{R[2]}, v{R[3]}")
    def pack(s):
        q, Gq = s >> 2, s & 3
        d = DD + (s & 1)*8
        if s in (4, 8): e(f"v_add_u32 v{aXw}, 0x4000, v{aXw}")
        for r in range(2):
            e(f"v_cvt_pk_bf16_f32 v{d + 2 + r}, v{d + 2 + r}, v{d + 6 + r}")
        A.lds(f"ds_write2_b32 v{aXw}, v{d + 2}, v{d + 3} offset0:{(s & 3)*16} offset1:{(s & 3)*16 + 64}", "xw")
        for r in range(2):
            e(f"v_cvt_pk_bf16_f32 v{xf(2*Gq + r, 0, q)}, v{d + r}, v{d + 4 + r}")
    def packz(sg, dz=None):
        dz = DZ if dz is None else dz
        for h in range(2): e(f"v_cvt_pk_bf16_f32 v{dz + 2*h}, v{dz + 2*h}, v{dz + 2*h + 1}")
        for h in range(2):
            s_ = 2*sg + h
            e(f"v_mov_b32_dpp v{ZF + (s_ >> 2)}, v{dz + 2*h} quad_perm:[0,1,2,3] row_mask:{1 << (s_ & 3):#x} bank_mask:0xf")
    wl = [0]
    def wload():
        k = wl[0]
        if k >= 32: return
        wl[0] += 1
        u, part, x = k >> 2, (k >> 1) & 1, k & 1
        ep, jt = u >> 1, u & 1
        if 8 <= k < 8 + NST:
            A.vm_wait(f"ws{k}")
            A.lds(f"ds_read_b128 {vr(RING[k % 8], 4)}, v{aRed} offset:{stoff(k)}", f"w{k >> 1}")
            return
        if "nowl" in X and k >= 8:
            A.vm.append(f"w{k >> 1}"); A.vm_done = len(A.vm) - 1
            return
        if "j0" in X: jt = 0
        if k % 8 < 2: e(f"s_add_u32 s{80 + x}, s{sMB2}, {(2*ep + x)*3328}")
        A.vmem(f"buffer_load_dwordx4 {vr(RING[k % 8], 4)}, v{vJ[jt]}, {srd(S_WS)}, s{80 + x} offen offset:{part*1664 + jt*1024} sc1", f"w{k >> 1}")
    def stoff(k): return ((k - 8) >> 1)*16384 + ((k - 8) & 1)*1024
    sl = [8]
    def wstage():
        k = sl[0]
        if k >= 8 + NST: return
        sl[0] += 1
        u, part, x = k >> 2, (k >> 1) & 1, k & 1
        ep, jt = u >> 1, u & 1
        e(f"s_add_u32 m0, s{sSt}, {stoff(k)}")
        e(f"s_add_u32 s{sT0}, s{sMB2}, {(2*ep + x)*3328 + part*1664 + jt*1024}")
        A.vmem(f"buffer_load_dwordx4 v{vJ[jt]}, {srd(S_WS)}, s{sT0} offen sc1 lds", f"ws{k}")
    def early():
        for _ in range(NPS):
            if wl[0] < 4: wload()
            else: wstage()
    QB = [[AF + 4*i for i in range(8)], [AK, AK+4, AK+8, AK+12, U, U+4, ACCP, RAW+20]]
    def rd(sg, i):
        f = 4*sg + (i >> 1)
        A.lds(f"ds_read_b128 {vr(QB[sg & 1][i], 4)}, v{aE[i & 1][0]} offset:{(f & 15)*4096}", f"e{sg}_{i >> 1}")
    def mmi(sg, i):
        d = DD + (i >> 1)*4
        if i & 1: mf16(d, WB + 4, QB[sg & 1][i], d)
        else:
            A.ds_wait(f"e{sg}_{i >> 1}")
            mf16(d, WB, QB[sg & 1][i])
    def zmm(sg):
        for i in range(8): mf16(DZ, ONES + 4*(i >> 1), QB[sg & 1][i], DZ if i else None)
    def zblock(sg):
        with Older():
            if sg: packz(sg - 1)
            dn = A.ds_done
            A.ds_wait(f"e{sg}_3")
            A.ds_done = dn
            zmm(sg)
    def issue(s):
        if s + GAHEAD < 13:
            a_gather(s + GAHEAD)
    swq = []
    def take(lst, n):
        for _ in range(n):
            if lst: A.L.append(lst.pop(0))
    if PFE and PFEAT == 1:
        with Older(): pfbatch(NPF0, PFE)
    for s in range(G0, GAHEAD): a_gather(s)
    def signal(prod):
        with Older():
            cm("signal (wave 0 only stays in range): snapshot taken" + (", fragments stored" if prod else ""))
            e(f"s_lshl_b32 s{sT0}, s{sHF}, 4")
            e(f"s_lshl_b32 s{sT0}, 0x100, s{sT0}")
            e(f"v_mov_b32 v{vSg}, s{sT0}")
            e(f"s_lshl_b32 s{sT0}, s{sW}, 6")
            e(f"s_add_u32 s{sT0}, s{sT0}, s{sRG}")
            e(f"s_lshl2_add_u32 s{sT0}, s{sT0}, s{sNP}")
            if not prod: e(f"s_xor_b32 s{sT0}, s{sT0}, 0x10000000")
            e("s_mov_b64 exec, 1")
            A.vmem(f"buffer_atomic_or v{vSg}, off, {srd(S_DBG)}, s{sT0} sc1", "o:sig")
            e("s_mov_b64 exec, -1")
    vSg = CAP + 55
    def flagcheck():
        cm("wave 0: every producer of this group's W-fragment image has signalled")
        e(f"s_cmp_lg_u32 s{sW}, 0")
        e("s_cbranch_scc1 L_flok")
        lab("L_flp")
        e(f"v_and_b32 v{vFl}, 0x01000100, v{vFl}")
        e(f"v_cmp_ne_u32 vcc, 0x01000100, v{vFl}")
        e("s_or_b32 vcc_lo, vcc_lo, vcc_hi")
        e("s_and_b32 vcc_lo, vcc_lo, 0x0f0f0f0f")
        e("s_cbranch_scc0 L_flok")
        e(f"s_sleep {RSLEEP}")
        e(f"v_lshrrev_b32 v{vFl}, 2, v{vJ[0]}")
        e(f"buffer_load_dword v{vFl}, v{vFl}, {srd(S_DBG)}, 0 offen sc1")
        e("s_waitcnt vmcnt(0)")
        e("s_branch L_flp")
        lab("L_flok")
    def body(s):
        sg = s >> 1
        if s == 12: return
        if s % 2 == 0:
            for i in range(8):
                if sg: mmi(sg - 1, i)
                rd(sg, i)
            return
        if sg:
            pack(2*sg - 2); pack(2*sg - 1)
        if sg in (2, 4): swaps((sg >> 1) - 1, (0,))
        if sg == 5:
            for el in range(8):
                A.lds(f"ds_read2st64_b32 {vr(xf(el, 1, 0), 2)}, v{aXr} offset0:{el} offset1:{64 + el}", "xr")
    if PRIO:
        e(f"s_cmp_lt_u32 s{sW}, 4")
        e("s_cbranch_scc1 L_prio")
        e("s_setprio 1")
        lab("L_prio")
    for s in range(13):
        cm(f"-- A step {s}")
        if s % 2 == 0:
            if s < 12 or not MERGE:
                need_o, need_y = [], []
                if s == 12 or (s == 10 and MERGE): need_o.append("g12"); need_y.append("g12")
                elif s & 2: need_y.append(f"g{4*(s >> 2) + 3}")
                else: need_o.append(f"g{4*(s >> 2) + 3}")
                if s == FSIG: need_o.append("st"); need_y.append("st")
                if s == FCHK: need_o.append("o:fl")
                no = min([A.vm_count(t, True) for t in need_o]) if need_o else None
                ny = min([A.vm_count(t, False) for t in need_y]) if need_y else None
                if no is not None and no == ny: e(f"s_waitcnt vmcnt({no})")
                else:
                    if no is not None:
                        with Older(): e(f"s_waitcnt vmcnt({no})")
                    if ny is not None:
                        with Younger(): e(f"s_waitcnt vmcnt({ny})")
                if s == 10: A.ds_wait("xw")
                if s == FCHK: flagcheck()
                if s == 0: fs0()
                if FS == -2: fstamp(True)
                e("s_barrier")
                if FS == -2: fstamp(True)
                if s == 0: fs0()
            if s in (0, 4, 8, 12): stamp()
            if s == FSIG: signal(True)
            if s == FCHK:
                e("s_mov_b64 exec, 0x1fff")
                A.vmem(f"buffer_load_dword v{vDum}, v{vPw}, {srd(S_WS)}, 0 offen sc1", "pf")
                e("s_mov_b64 exec, -1")
            if s == 10: signal(False)
            body(s)
            issue(s)
            if s == 0 and LATE0: late_setup()
            if s >= FCHK and s < 12: early()
            continue
        body(s)
        issue(s)
        if s in (FLD, PFAT):
            with Older():
                if s == FLD:
                    e(f"v_lshrrev_b32 v{vFl}, 2, v{vJ[0]}")
                    e(f"s_lshl_b32 s{sT0}, s{sW}, 8")
                    A.vmem(f"buffer_load_dword v{vFl}, v{vFl}, {srd(S_DBG)}, s{sT0} offen sc1", "o:fl")
                if s == PFAT: pfbatch()
        if s > FCHK: early()
        if s == 7:
            for r in aE[0] + aE[1]: e(f"v_add_u32 v{r}, 0x10000, v{r}")
        if s == 1: se_frags()
        if ZNL: zblock(s >> 1)
        elif s >= 3: zblock((s >> 1) - 1)
    cm("last two fields: both row tiles; then the fragments of super-step 5")
    DL = 228
    DT = CAP + 16
    LF = [[[DL + tl*8 + fi*4 + r for r in range(2)] for fi in range(2)] for tl in range(2)]
    for tl in range(2):
        for i in range(4):
            A.lds(f"ds_read_b128 {vr(AF + tl*16 + 4*i, 4)}, v{aE[i & 1][tl]} offset:{(8 + (i >> 1))*4096}", f"l{tl}{i >> 1}")
    for tl in range(2): e(f"v_add_u32 v{aC2[tl]}, 0x10000, v{aC[tl]}")
    def lastmm():
        for tl in range(2):
            for i in range(4):
                d = DL + tl*8 + (i >> 1)*4
                if not i & 1: A.ds_wait(f"l{tl}{i >> 1}")
                mf16(d, WB + 4*(i & 1), AF + tl*16 + 4*i, d if i & 1 else None)
    def tailwork():
        swaps(2, (0,))
        for tl in range(2):
            for el in range(8):
                if el < 2: e(f"v_cvt_pk_bf16_f32 v{xf(el, tl, 3)}, v{DL + tl*8 + (el & 1)}, v{DL + tl*8 + 4 + (el & 1)}")
                else: e(f"v_mov_b32 v{xf(el, tl, 3)}, v{xf(el & 1, tl, 3)}")
        while wl[0] < 8: wload()
        for tl in range(2):
            for p in range(2): e(f"v_mov_b32 v{UH + tl*16 + 14 + p}, 0")
    if PRIO == 1: e("s_setprio 0")
    e(f"s_cmp_ge_u32 s{sW}, 4")
    e("s_cbranch_scc1 L_nosenet")
    cm("waves 0..3: SENET first")
    sv = (list(A.vm), A.vm_done, wl[0], sl[0], list(A.ds), A.ds_done)
    A.ds_wait("e5_3")
    if not ZNL:
        packz(4)
        zmm(5)
    else:
        for i in range(4): mmi(5, i)
    A.ds_wait("l01")
    for i in range(4): mf16(DT, ONES + 4*(i >> 1), AF + 4*i, DT if i else None)
    if not ZNL:
        for i in range(4): mmi(5, i)
    packz(5)
    e(f"v_cvt_pk_bf16_f32 v{DT}, v{DT}, 0")
    e(f"v_cvt_pk_bf16_f32 v{DT + 1}, v{DT + 1}, 0")
    for h in range(2): e(f"v_mov_b32_dpp v{ZF + 3}, v{DT + h} quad_perm:[0,1,2,3] row_mask:{1 << h:#x} bank_mask:0xf")
    b = 128
    mf16(b, SE1F, ZF)
    for i in range(4, 8): mmi(5, i)
    pack(10)
    e(f"v_mov_b32 v{b+20}, s{sC0}")
    e(f"v_cvt_pk_bf16_f32 v{b+8}, v{b+0}, v{b+1}")
    e(f"v_cvt_pk_bf16_f32 v{b+9}, v{b+2}, v{b+3}")
    for d in range(2):
        e(f"v_lshlrev_b32 v{b+2*d}, 16, v{b+8+d}")
        e(f"v_and_b32 v{b+2*d+1}, s{sMSK}, v{b+8+d}")
    ls = []
    for r in range(4):
        with Cap() as c: gelu(b + 4 + r, b + r, b + 12 + r, b + 20)
        ls.append(c.l)
    zipl(ls)
    e(f"v_cvt_pk_bf16_f32 v{b+10}, v{b+4}, v{b+5}")
    e(f"v_cvt_pk_bf16_f32 v{b+11}, v{b+6}, v{b+7}")
    e(f"v_mfma_f32_16x16x16_bf16 {vr(b+16,4)}, {vr(SE2F,2)}, {vr(b+10,2)}, 0")
    pack(11)
    e(f"v_cvt_pk_bf16_f32 v{b+8}, v{b+16}, v{b+17}")
    e(f"v_cvt_pk_bf16_f32 v{b+9}, v{b+18}, v{b+19}")
    for d in range(2):
        e(f"v_lshlrev_b32 v{b+2*d}, 16, v{b+8+d}")
        e(f"v_and_b32 v{b+2*d+1}, s{sMSK}, v{b+8+d}")
    for r in range(4): e(f"v_mul_f32 v{b+r}, s{sNL}, v{b+r}")
    for r in range(4): e(f"v_exp_f32 v{b+r}, v{b+r}")
    for r in range(4): e(f"v_add_f32 v{b+r}, 1.0, v{b+r}")
    for r in range(4): e(f"v_rcp_f32 v{b+r}, v{b+r}")
    for r in range(4): e(f"v_cvt_pk_bf16_f32 v{b+4+r}, 0, v{b+r}")
    e(f"ds_write_b128 v{aAw}, {vr(b+4,4)}")
    e("s_waitcnt lgkmcnt(0)")
    A.ds_done = len(A.ds) - 1
    stamp()
    e("s_barrier")
    lastmm()
    tailwork()
    e("s_branch L_post")
    lab("L_nosenet")
    e("s_nop 7")
    if PP & 1: e("s_setprio 1")
    A.vm, A.vm_done, wl[0], sl[0], A.ds, A.ds_done = list(sv[0]), sv[1], sv[2], sv[3], list(sv[4]), sv[5]
    for i in range(8): mmi(5, i)
    lastmm()
    pack(10); pack(11)
    tailwork()
    e("s_waitcnt lgkmcnt(0)")
    e("s_barrier")
    lab("L_post")
    A.ds_done = len(A.ds) - 1
    for el in range(2):
        A.lds(f"ds_read_b32 v{xf(el, 1, 2)}, v{aXr} offset:{32768 + el*256}", "x2")
    for tl in range(2):
        for u in range(2):
            A.lds(f"ds_read_b128 {vr(AJ + tl*8 + u*4, 4)}, v{aAr[tl]} offset:{u*16}", "ak")
    e(f"v_bfe_u32 v{XQ}, v0, 4, 2")
    e(f"v_lshlrev_b32 v{XQ}, 5, v{XQ}")
    for tl in range(2):
        e(f"v_sub_u32 v{aAr[tl]}, v{aAr[tl]}, v{XQ}")
        A.lds(f"ds_read2_b32 {vr(XQ + 4 + 2*tl, 2)}, v{aAr[tl]} offset0:6 offset1:14", "ak")
    def mms(u, part):
        ep = u >> 1
        tg = f"w{2*u + (1 if W1W and u else part)}"
        if tg in A.vm: A.vm_wait(tg)
        if tg in A.ds: A.ds_wait(tg)
        for x in range(2):
            for tl in range(2):
                mf16(TS[u & 1][part*4 + x*2 + tl], RING[(4*u + 2*part + x) % 8], XQ + x*8 + tl*4 if part else xf(2*ep + x, tl, 0))
    def xq(ep):
        tmp = TS[0][4]
        for x in range(2):
            for tl in range(2):
                src = xf(2*ep + x, tl, 0)
                for qq in range(3):
                    if OPS: e(f"v_dot2_f32_bf16 v{tmp + tl*6 + 2*qq}, v{src + qq}, v{AJ + tl*8 + 2*qq}, 0 op_sel:[0,1,0] op_sel_hi:[1,0,0]")
                    else: e(f"v_dot2_f32_bf16 v{tmp + tl*6 + 2*qq}, v{src + qq}, v{AKL[tl][qq]}, 0")
                    e(f"v_dot2_f32_bf16 v{tmp + tl*6 + 2*qq + 1}, v{src + qq}, v{AJ + tl*8 + 2*qq + 1}, 0")
            for tl in range(2):
                dst = XQ + x*8 + tl*4
                if ep == 0: e(f"v_cvt_pk_bf16_f32 v{dst + 3}, v{LF[tl][0][x]}, v{LF[tl][1][x]}")
                for qq in range(3):
                    e(f"v_cvt_pk_bf16_f32 v{dst + qq}, v{tmp + tl*6 + 2*qq}, v{tmp + tl*6 + 2*qq + 1}")
    def fin(u):
        ep, jt = u >> 1, u & 1
        S_ = TS[u & 1]
        for tl in range(2):
            for x in range(2):
                p, q_, a = S_[x*2 + tl], S_[4 + x*2 + tl], AJ + tl*8 + 4*jt
                for r in range(3 if jt else 4): e(f"v_fmac_f32 v{p+r}, v{q_+r}, v{a+r}")
            for r in range(3 if jt else 4):
                e(f"v_cvt_pk_bf16_f32 v{UH + tl*16 + (4*jt + r)*2 + (ep & 1)}, v{S_[tl] + r}, v{S_[2 + tl] + r}")
    def cq(hf):
        for tl in range(2):
            for t in range(7):
                base = aC6[tl] if t == 6 else (aC2[tl] if t >= 4 else aC[tl])
                off = 0 if t == 6 else ((t >> 1) & 1)*32768 + (t & 1)*4096
                A.lds(f"ds_read_b64 {vr(XF + tl*16 + 2*t, 2)}, v{base} offset:{off + 8*hf}", "cq")
    def diag(hf):
        A.ds_wait("cq")
        for k in range(4):
            for tl in range(2):
                mf16(ACC[tl], UH + tl*16 + 4*k, XF + tl*16 + 4*k, ACC[tl] if (hf or k) else None)
    def weave(ml, fl):
        k = 0; nm = sum(1 for m in ml if "v_mfma" in m); i = 0
        for m in ml:
            A.L.append(m)
            if "v_mfma" in m:
                i += 1
                tgt = i * len(fl) // nm
                while k < tgt:
                    A.L.append(fl[k]); k += 1
    for el in range(2, 8):
        A.lds(f"ds_read_b32 v{xf(el, 1, 2)}, v{aXr} offset:{32768 + el*256}", "x3")
    A.ds_wait("x2")
    mms(0, 0)
    A.ds_wait("ak")
    for tl in range(2):
        if not OPS:
            for qq in range(3): e(f"v_lshrrev_b32 v{AKL[tl][qq]}, 16, v{AJ + tl*8 + 2*qq}")
        for fi in range(2):
            for r in range(2): e(f"v_mul_f32 v{LF[tl][fi][r]}, v{LF[tl][fi][r]}, v{XQ + 4 + 2*tl + fi}")
    for u in range(8):
        ep, jt = u >> 1, u & 1
        cm(f"-- block ep {ep} jt {jt}")
        if jt == 0:
            stamp()
            if ep == 1: A.ds_wait("x3")
            with Cap() as cx: xq(ep)
            if PKZ and u:
                S_ = TS[1]
                for tl in range(2):
                    for x in range(2):
                        p, q_, a = S_[x*2 + tl], S_[4 + x*2 + tl], AJ + tl*8 + 4
                        e(f"v_pk_fma_f32 {vr(p,2)}, {vr(q_,2)}, {vr(a,2)}, {vr(p,2)}")
                A.L.extend(cx.l[:-6])
            else: A.L.extend(cx.l)
        with Cap() as c2:
            if u: fin(u - 1)
        if PKZ and u and jt == 0:
            keep = []; n = 0
            for x in c2.l:
                if "v_fmac" in x:
                    n += 1
                    if n % 3: continue
                keep.append(x)
            c2.l[:] = cx.l[-6:] + keep
        if DW and u == 5:
            fm = [x for x in c2.l if "v_fmac" in x]; cv = [x for x in c2.l if "v_fmac" not in x]
            with Cap() as c0: diag(0)
            weave(c0.l, fm)
            c2.l[:] = cv
        post = []
        if PK2 and jt == 1 and not (DW and u == 5):
            S_ = TS[0]
            with Cap() as cp:
                for x in range(2):
                    p, q_, a = S_[x*2 + 1], S_[4 + x*2 + 1], AJ + 8
                    e(f"v_pk_fma_f32 {vr(p+2,2)}, {vr(q_+2,2)}, {vr(a+2,2)}, {vr(p+2,2)}")
            l = list(c2.l)
            c2.l[:] = l[:14] + l[16:18] + l[20:22]
            post = cp.l + l[22:24]
        with Cap() as c1:
            if u: mms(u, 0)
            mms(u, 1)
        weave(c1.l, c2.l)
        for _ in range(4): wload()
        A.L.extend(post)
        if u == PPU and PP & 2:
            with Younger(): e("s_setprio 1")
        if u == PPU and PP & 4: e("s_setprio 0")
        if u == 3: cq(0)
        if u == 4 and not DW: diag(0)
        if u == 5: cq(1)
    e(f"s_and_b32 s{sT0}, s{sMB}, 0x400")
    e(f"v_add_u32 v{aRed}, s{sT0}, v{aRed}")
    e(f"v_xor_b32 v{aAr[0]}, 0x400, v{aRed}")
    if STAMPS: e(f"v_mov_b32 v{vTag2}, v{vPo}")
    e(f"s_lshl_b32 s{sT0}, s{sW}, 28")
    e(f"buffer_load_dwordx2 {vr(vPo,2)}, v{vHo}, {srd(S_WS)}, s{sT0} offen sc1")
    with Cap() as c2: fin(7)
    with Cap() as c0: diag(1)
    if FW == 2:
        S_ = TS[1]
        for tl in range(2):
            for x in range(2):
                p, q_, a = S_[x*2 + tl], S_[4 + x*2 + tl], AJ + tl*8 + 4
                e(f"v_pk_fma_f32 {vr(p,2)}, {vr(q_,2)}, {vr(a,2)}, {vr(p,2)}")
        keep = []; n = 0
        for x in c2.l:
            if "v_fmac" in x:
                n += 1
                if n % 3: continue
            keep.append(x)
        w_, m = c0.l[:-8], c0.l[-8:]
        A.L.extend(w_)
        weave(m[:4], keep)
        A.L.extend(m[4:])
    elif FW:
        w_, m = c0.l[:-8], c0.l[-8:]
        A.L.extend(w_)
        weave(m[:4], c2.l[:11])
        weave([m[4], m[6]], c2.l[11:])
        A.L.extend([m[5], m[7]])
    else: A.L.extend(c2.l + c0.l)
    stamp()
    e(f"s_cmp_lg_u32 s{sW}, 0")
    e(f"ds_write_b128 v{aRed}, {vr(ACC[0], 4)}")
    e(f"ds_write_b128 v{aAr[0]}, {vr(ACC[1], 4)}")
    e("s_cbranch_scc0 L_w0")
    e("s_waitcnt lgkmcnt(0)")
    e("s_barrier")
    e("s_branch L_end")
    lab("L_w0")
    P2 = 40
    if not RB: e(f"buffer_load_dwordx2 {vr(P2,2)}, v{vHo}, {srd(S_WS)}, 0 offen sc1")
    e(f"v_and_b32 v1, 31, v0")
    e(f"v_and_b32 v6, 15, v0")
    e(f"v_lshrrev_b32 v7, 2, v6")
    e(f"v_lshl_add_u32 v7, v7, 4, v6")
    e(f"v_lshlrev_b32 v7, 4, v7")
    e(f"v_and_b32 v6, 3, v0")
    e(f"v_lshl_add_u32 v7, v6, 2, v7")
    e(f"v_bfe_u32 v6, v0, 4, 1")
    e(f"v_lshl_add_u32 v7, v6, 10, v7")
    e(f"v_bfe_u32 v6, v0, 5, 1")
    e(f"v_lshl_add_u32 v7, v6, 13, v7")
    e(f"v_add_u32 v7, {R2}, v7")
    e(f"s_lshl1_add_u32 s{sT0}, s{sRG}, s{sHF}")
    e(f"s_lshl_b32 s{sT0}, s{sT0}, 6")
    e(f"v_lshlrev_b32 v9, 1, v1")
    e(f"s_lshl_b32 s{sT1}, s{sRG}, 2")
    cm("wait for both deep partials: a lane is done when its tag differs from the snapshot or its producer's arrival flag is set")
    e(f"s_mov_b32 s{sT3}, 0")
    if RB:
        e("s_waitcnt lgkmcnt(0)")
        e("s_barrier")
        e(f"buffer_load_dwordx2 {vr(P2,2)}, v{vHo}, {srd(S_WS)}, 0 offen sc1")
        for k in range(4): e(f"ds_read_b32 v{32 + k}, v7 offset:{2048*k}")
        e("s_waitcnt lgkmcnt(0)")
        e("v_add_f32 v32, v32, v33")
        e("v_add_f32 v34, v34, v35")
        e("v_add_f32 v32, v32, v34")
    lab("L_poll")
    e("s_waitcnt vmcnt(1)")
    e(f"v_cmp_eq_u32 vcc, v{vPo+1}, v{vTag}")
    e("s_cbranch_vccz L_got")
    if "noB" in X or "nopoll" in X: e("s_branch L_got")
    e(f"buffer_load_dwordx2 {vr(vPo,2)}, v{vHo}, {srd(S_WS)}, 0 offen sc1")
    e("s_waitcnt vmcnt(1)")
    e(f"v_cmp_eq_u32 vcc, v{P2+1}, v{vTag}")
    e("s_cbranch_vccz L_got2")
    e(f"buffer_load_dwordx2 {vr(P2,2)}, v{vHo}, {srd(S_WS)}, 0 offen sc1")
    e(f"s_add_u32 s{sT3}, s{sT3}, 1")
    e(f"s_and_b32 s{sT2}, s{sT3}, 15")
    e("s_cbranch_scc1 L_poll")
    cm("now and then: the write-through copy (producer on another die), and the flags (a partial was already there at the snapshot)")
    e("s_mov_b64 exec, 1")
    e(f"buffer_load_dword v{vPo+3}, off, {srd(S_DBG)}, s{sT1} sc1")
    e("s_waitcnt vmcnt(0)")
    e(f"v_readfirstlane_b32 s{sT2}, v{vPo+3}")
    e("s_mov_b64 exec, -1")
    e(f"s_bitcmp1_b32 s{sT2}, 1")
    e("s_cselect_b32 s6, 0, -1")
    e(f"s_bitcmp1_b32 s{sT2}, 17")
    e("s_cselect_b32 s7, 0, -1")
    e(f"s_mov_b32 s{sT2}, 0x10000")
    e(f"buffer_load_dwordx2 {vr(vPo,2)}, v{vHo}, {srd(S_WS)}, s{sT2} offen sc1")
    e("s_waitcnt vmcnt(0)")
    e(f"v_cmp_eq_u32 vcc, v{vPo+1}, v{vTag2}")
    e("s_and_b64 vcc, vcc, s[6:7]")
    e("s_cbranch_scc0 L_got")
    e(f"buffer_load_dwordx2 {vr(vPo,2)}, v{vHo}, {srd(S_WS)}, 0 offen sc1")
    e(f"buffer_load_dwordx2 {vr(P2,2)}, v{vHo}, {srd(S_WS)}, 0 offen sc1")
    e("s_branch L_poll")
    if RB:
        lab("L_got")
        e(f"v_add_f32 v32, v32, v{vPo}")
        e("s_branch L_got3")
        lab("L_got2")
        e(f"v_add_f32 v32, v32, v{P2}")
        lab("L_got3")
        stamp()
    else:
        lab("L_got")
        e(f"v_mov_b32 v8, v{vPo}")
        e("s_branch L_got3")
        lab("L_got2")
        e(f"v_mov_b32 v8, v{P2}")
        lab("L_got3")
        stamp()
        e("s_waitcnt lgkmcnt(0)")
        e("s_barrier")
        for k in range(4): e(f"ds_read_b32 v{32 + k}, v7 offset:{2048*k}")
        e("s_waitcnt lgkmcnt(2)")
        e("v_add_f32 v32, v32, v33")
        e("v_add_f32 v32, v32, v8")
        e("s_waitcnt lgkmcnt(0)")
        e("v_add_f32 v34, v34, v35")
        e("v_add_f32 v32, v32, v34")
    e("v_mov_b32 v33, v32")
    e("v_permlane32_swap_b32 v32, v33")
    e("v_add_f32 v4, v32, v33")
    e("v_cvt_pk_bf16_f32 v4, v4, v4")
    e("s_mov_b32 exec_hi, 0")
    e(f"buffer_store_short v4, v9, {srd(S_OUT)}, s{sT0} offen")
    if STAMPS:
        e("s_mov_b64 exec, -1")
    e("s_branch L_end")

NWS, NGS = 8, 4
WBASE, GBASE = 0, NWS*16384
B_RED = 4*16384
LEAD = P("LEAD", 6)

BST = {}
vW, vS, vIa, vGt = 1, 2, [4, 8], [12, 13]
def b_head():
    lab("L_B")
    cm("===== role B")
    if "noB" in X: e("s_branch L_exit")
    e(f"s_cmp_lt_u32 s{sW}, 4")
    e("s_cbranch_scc1 L_Bc")
    A.reset(); nst[0] = 0
    t0, t1, t2 = 14, 15, 16
    e("s_setprio 3")
    e(f"v_bfe_u32 v{t0}, v0, 4, 4")
    e(f"v_lshlrev_b32 v{t0}, 9, v{t0}")
    e(f"v_bfe_u32 v{t1}, v0, 4, 2")
    e(f"v_lshlrev_b32 v{t1}, 2, v{t1}")
    e(f"s_and_b32 s{sT0}, s{sW}, 2")
    e(f"v_xor_b32 v{t1}, v{t1}, v0")
    e(f"v_xor_b32 v{t1}, s{sT0}, v{t1}")
    e(f"v_and_b32 v{t1}, 15, v{t1}")
    e(f"v_lshl_add_u32 v{t0}, v{t1}, 4, v{t0}")
    e(f"s_lshl_b32 s{sT0}, s{sHF}, 8")
    e(f"v_add_u32 v{vW}, s{sT0}, v{t0}")
    e(f"s_and_b32 s{sMB}, s{sW}, 3")
    e(f"s_lshl_b32 s{sMB}, s{sMB}, 10")
    e(f"v_bfe_u32 v{t0}, v0, 3, 5")
    e(f"v_mul_u32_u24 v{t0}, 104, v{t0}")
    e(f"v_and_b32 v{t1}, 7, v0")
    e(f"v_lshl_add_u32 v{t0}, v{t1}, 4, v{t0}")
    e(f"s_mul_i32 s{sT1}, s{sRG}, {64*104}")
    e(f"s_lshr_b32 s{sT2}, s2, 5")
    if LEAD != 8:
        e(f"s_mul_i32 s{sT2}, s{sT2}, {LEAD}")
        e(f"s_lshr_b32 s{sT2}, s{sT2}, 3")
    e(f"s_lshl_b32 s{sT0}, s{sT2}, 15")
    e(f"s_mov_b32 s{sT3}, 0")
    if BPF:
        e(f"v_bfe_u32 v{t1}, v0, 1, 4")
        e(f"v_bfe_u32 v{t2}, v0, 6, 2")
        e(f"v_lshl_add_u32 v{t1}, v{t2}, 4, v{t1}")
        e(f"v_lshlrev_b32 v{t1}, 9, v{t1}")
        e(f"v_and_b32 v{t2}, 1, v0")
        e(f"v_lshl_add_u32 v{t1}, v{t2}, 7, v{t1}")
        e(f"s_lshl_b32 s{sT2}, s{sHF}, 8")
        e(f"s_add_u32 s{sT2}, s{sT2}, s{sT0}")
        e(f"s_add_u32 s{sT2}, s{sT2}, {8*32768}")
    e("s_waitcnt lgkmcnt(0)")
    stamp()
    A.vmem(f"buffer_load_dwordx4 {vr(vIa[0],4)}, v{t0}, {srd(S_IDX)}, s{sT1} offen", "idx")
    A.vmem(f"buffer_load_dwordx4 {vr(vIa[1],4)}, v{t0}, {srd(S_IDX)}, s{sT1} offen offset:{32*104}", "idx")
    if W2PF:
        mksrd(S_W2); cpsrd(S_W2, 4)
        e(f"s_lshr_b32 s{sT2}, s{sMB}, 3")
        e("s_mov_b64 exec, 1")
        A.vmem(f"buffer_load_dword v{t2}, off, {srd(S_W2)}, s{sT2}", "pf")
        e("s_mov_b64 exec, -1")
    if BPF:
        e("s_mov_b32 exec_hi, 0")
        A.vmem(f"buffer_load_dword v{t2}, v{t1}, {srd(S_W1)}, s{sT2} offen", "pf")
        e("s_mov_b64 exec, -1")
    lab("L_lead")
    e(f"s_lshr_b32 s{sT2}, s{sT0}, 1")
    e(f"s_add_u32 m0, s{sT2}, s{sMB}")
    e(f"s_add_u32 s{sT3}, s{sT3}, 1")
    for n in range(4):
        e(f"buffer_load_dwordx4 v{vW}, {srd(S_W1)}, s{sT0} offen lds")
        if n < 3: e("s_addk_i32 m0, 0x1000")
        e(f"s_addk_i32 s{sT0}, 0x2000")
    e(f"s_cmp_lt_u32 s{sT0}, {LEAD*32768}")
    e(f"s_cselect_b32 s{sT0}, s{sT0}, 0")
    e(f"s_cmp_lt_u32 s{sT3}, {LEAD}")
    e("s_cbranch_scc1 L_lead")
    for k in range(4*LEAD - LEAD): A.vm.append("lead")
    for f in range(LEAD): A.vm.append(f"w{f}")
    e("s_branch L_Bl2")
    BST["sv"] = (A.vm, A.ds, A.vm_done, A.ds_done, nst[0])

def role_b():
    A.vm, A.ds, A.vm_done, A.ds_done, nst[0] = BST["sv"]
    lab("L_Bl2")
    t1 = 15
    e(f"v_lshrrev_b32 v{t1}, 4, v0")
    e(f"v_xor_b32 v{t1}, v{t1}, v0")
    e(f"v_and_b32 v{t1}, 7, v{t1}")
    e(f"v_lshlrev_b32 v{vS}, 4, v{t1}")
    if STAMPS:
        rest_srds(); rest_srds2()
    if TOUCH == 2:
        for k in (4, 5, 6, 7):
            e(f"s_load_dword s{sT3}, s[{KT+2*k}:{KT+2*k+1}], 0")
    wq = [(f, n) for f in range(LEAD, 26) for n in range(4)]
    def wpiece():
        f, n = wq.pop(0)
        e(f"s_add_u32 m0, s{sMB}, {WBASE + (f % NWS)*16384 + n*4096}")
        e(f"s_mov_b32 s{sT0}, {f*32768 + n*8192}")
        A.vmem(f"buffer_load_dwordx4 v{vW}, {srd(S_W1)}, s{sT0} offen lds", f"w{f}")
    def gpiece(f):
        c = f >> 2
        for u in range(2):
            e(f"v_add_u32_dpp v{vGt[u]}, v{vIa[u] + (f & 3)}, v{vS} row_newbcast:{c} row_mask:0xf bank_mask:0x3")
        e(f"s_add_u32 m0, s{sMB}, {GBASE + (f % NGS)*8192}")
        for u in range(2):
            e(f"v_add_u32_dpp v{vGt[u]}, v{vIa[u] + (f & 3)}, v{vS} row_newbcast:{8+c} row_mask:0xf bank_mask:0xc")
        A.vmem(f"buffer_load_dwordx4 v{vGt[0]}, {srd(S_TAB)}, 0 offen lds", f"g{f}")
        e("s_addk_i32 m0, 0x1000")
        A.vmem(f"buffer_load_dwordx4 v{vGt[1]}, {srd(S_TAB)}, 0 offen lds", f"g{f}")
    A.vm_wait("idx")
    for u in range(2):
        for d in range(4): e(f"v_lshlrev_b32 v{vIa[u]+d}, 7, v{vIa[u]+d}")
    stamp()
    for f in range(NGS):
        gpiece(f)
        if f >= GW0:
            for _ in range((NWS - LEAD)*4 // (NGS - GW0)): wpiece()
    while wq[0][0] < NWS: wpiece()
    tot = len(wq); done = 0
    nsteps = 26 - NGS
    for f in range(26):
        A.vm_wait(f"g{f}"); A.vm_wait(f"w{f}")
        e("s_barrier")
        if f in (0, 6, 12, 18, 25): stamp()
        if f >= 1 and f - 1 + NGS < 26:
            tgt = f * tot // nsteps
            while done < tgt and wq and wq[0][0] <= f - 1 + NWS:
                wpiece(); done += 1
            gpiece(f - 1 + NGS)
    assert not wq
    e("s_branch L_end")
    lab("L_Bc")
    A.reset(); nst[0] = 0
    aEm = [1, 2]; aW = [[3, 4], [5, 6]]
    W2 = 176; ACC = 32
    EF = lambda st, ks, rt: 64 + st*32 + ks*16 + rt*4
    WFr = lambda st, ks, ct: 128 + st*16 + ks*8 + ct*4
    t0, t1, t2, t3 = 7, 9, 10, 11
    rest_srds()
    consts()
    e(f"v_and_b32 v{t0}, 15, v0")
    e(f"v_bfe_u32 v{t1}, v0, 4, 2")
    e(f"v_bfe_u32 v{t2}, v0, 1, 3")
    e(f"v_xor_b32 v{t2}, v{t2}, v{t1}")
    e(f"v_lshlrev_b32 v{t2}, 4, v{t2}")
    e(f"v_lshl_add_u32 v{t2}, v{t0}, 7, v{t2}")
    e(f"v_add_u32 v{aEm[0]}, {GBASE}, v{t2}")
    e(f"v_xor_b32 v{aEm[1]}, 64, v{aEm[0]}")
    e(f"v_bfe_u32 v{t0}, v0, 2, 2")
    e(f"v_lshl_add_u32 v{t2}, v{t1}, 3, v{t0}")
    e(f"v_lshlrev_b32 v{t2}, 8, v{t2}")
    e(f"v_xor_b32 v{t0}, s{sW}, v{t0}")
    e(f"v_lshl_add_u32 v{t2}, v{t0}, 6, v{t2}")
    e(f"v_bfe_u32 v{t0}, v0, 4, 1")
    e(f"v_lshl_add_u32 v{t2}, v{t0}, 5, v{t2}")
    e(f"v_and_b32 v{t0}, 3, v0")
    e(f"v_lshl_add_u32 v{aW[0][0]}, v{t0}, 3, v{t2}")
    e(f"v_xor_b32 v{aW[0][1]}, 32, v{aW[0][0]}")
    for ct in range(2): e(f"v_add_u32 v{aW[1][ct]}, 0x10000, v{aW[0][ct]}")
    e(f"s_lshl_b32 s{sT0}, s{sHF}, 8")
    e(f"s_lshl_b32 s{sT1}, s{sW}, 6")
    e(f"s_add_u32 s{sT0}, s{sT0}, s{sT1}")
    e(f"v_lshlrev_b32 v{t1}, 3, v{t1}")
    e("s_waitcnt lgkmcnt(0)")
    rest_srds2()
    e(f"s_mov_b32 s{sT2}, s{sT0}")
    if NPB:
        cm("weight prefetch into L2: 16 lines per wave and block")
        e(f"s_lshr_b32 s{sT0}, s2, 5")
        e(f"s_lshl1_add_u32 s{sT0}, s{sT0}, s{sHF}")
        e(f"s_lshl2_add_u32 s{sT0}, s{sT0}, s{sW}")
        e(f"s_lshl_b32 s{sT0}, s{sT0}, 11")
        e(f"v_and_b32 v{t0}, 15, v0")
        e(f"v_lshl_add_u32 v{t0}, v{t0}, 7, s{sT0}")
        e(f"v_bfe_u32 v{t2}, v0, 4, 2")
        e(f"v_lshl_add_u32 v{t0}, v{t2}, 17, v{t0}")
        nw1 = min(NPB, 6 - NPF0)
        for b0 in range(0, nw1, 4):
            n = min(4, nw1 - b0)
            if n < 4: e(f"s_mov_b64 exec, {hex((1 << (16*n)) - 1) if n < 3 else '-1'}")
            if n == 3: e("s_mov_b32 exec_hi, 0xffff")
            if n == 2: e("s_mov_b32 exec_lo, -1"); e("s_mov_b32 exec_hi, 0")
            e(f"s_mov_b32 s{sT0}, {65536 + (NPF0 + b0)*131072}")
            e(f"buffer_load_dword v{t3}, v{t0}, {srd(S_W1)}, s{sT0} offen")
            e("s_mov_b64 exec, -1")
    for i in range(32): e(f"v_mov_b32 v{ACC+i}, 0")
    C0 = 12
    e(f"v_mov_b32 v{C0}, s{sC0}"); e(f"v_mov_b32 v{C0+1}, s{sC0}")
    e(f"v_mov_b32 v{C0+2}, s{sC1}"); e(f"v_mov_b32 v{C0+3}, s{sC1}")
    W2R = 160
    vHo, vBt, vBt2 = 172, 175, 193
    e(f"v_lshlrev_b32 v{vHo}, 3, v0")
    e(f"s_lshl1_add_u32 s{sT3}, s{sRG}, s{sHF}")
    e(f"s_lshl_b32 s{sT3}, s{sT3}, 9")
    e(f"s_lshl_b32 s{sT0}, s{sW}, 28")
    e(f"s_add_u32 s{sT3}, s{sT3}, s{sT0}")
    def late_loads():
        for q in range(2):
            A.vmem(f"buffer_load_dwordx2 {vr(W2R + 2*q, 2)}, v{t1}, {srd(S_W2)}, s{sT2} offen offset:{32*q}", "w2")
        A.vmem(f"buffer_load_dword v{vBt}, v{vHo}, {srd(S_WS)}, s{sT3} offen offset:4 sc1", "tag")
        e(f"s_add_u32 s{sMB}, s{sT3}, 0x10000")
        A.vmem(f"buffer_load_dword v{vBt2}, v{vHo}, {srd(S_WS)}, s{sMB} offen offset:4 sc1", "tag")
        e(f"s_lshl_b32 s{sT0}, s{sW}, 6")
        e(f"s_add_u32 s{sT0}, s{sT0}, s{sRG}")
        e(f"s_lshl_b32 s{sT0}, s{sT0}, 2")
        e("s_mov_b64 exec, 1")
        A.vmem(f"buffer_load_dword v{vHo+1}, off, {srd(S_DBG)}, s{sT0} sc1", "afl")
        e("s_mov_b64 exec, -1")
    def w2_unpack():
        A.vm_wait("w2")
        for d in range(4):
            e(f"v_lshlrev_b32 v{W2 + 2*d}, 16, v{W2R + d}")
            e(f"v_and_b32 v{W2 + 2*d + 1}, s{sMSK}, v{W2R + d}")
    stamp()
    def rdl(f, ks):
        st = f & 1; ws = f % NWS
        out = []
        def w(ct, u): out.append((f"ds_read_b64_tr_b16 {vr(WFr(st, ks, ct) + 2*u, 2)}, v{aW[ws >> 2][ct]} offset:{(ws & 3)*16384 + ks*8192 + u*1024}", f"r{f}_{ks}a"))
        def em(rt, tag): out.append((f"ds_read_b128 {vr(EF(st, ks, rt), 4)}, v{aEm[ks]} offset:{(f % NGS)*8192 + rt*2048}", tag))
        w(0, 0); w(0, 1); w(1, 0); w(1, 1); em(0, f"r{f}_{ks}a"); em(1, f"r{f}_{ks}b"); em(2, f"r{f}_{ks}c"); em(3, f"r{f}_{ks}d")
        return out
    def mm1(f, ks, rt, ct):
        st = f & 1
        if "bnomm" in X: return
        if "snake" in X and rt & 1: ct ^= 1
        if "rtin" in X:
            k_ = rt*2 + ct; rt, ct = (k_ & 3) if k_ < 4 else 3 - (k_ & 3), k_ >> 2
        d = ACC + rt*8 + ct*4
        if "swapab" in X: mf16(d, EF(st, ks, rt), WFr(st, ks, ct), d)
        else: mf16(d, WFr(st, ks, ct), EF(st, ks, rt), d)
    for f in range(26):
        cm(f"-- B step {f}")
        e("s_barrier")
        if f in (0, 6, 12, 18, 25): stamp()
        if "bidle" in X:
            if f == 23: late_loads()
            continue
        r0, r1 = rdl(f, 0), rdl(f, 1)
        if BLAG:
            rr = r0 + r1
            for k in range(16):
                if f: mm1(f - 1, k >> 3, (k >> 1) & 3, k & 1)
                for _ in range(2):
                    if rr: A.lds(*rr.pop(0))
            if f == LL: late_loads()
            A.ds_all()
            continue
        for k in range(8):
            A.lds(*r0[k])
            if k >= 4 and f: mm1(f - 1, 1, (k - 4) >> 1, k & 1)
        for k in range(4):
            if f: mm1(f - 1, 1, 2 + (k >> 1), k & 1)
            A.lds(*r1[k])
        for k in range(8):
            if "rtin" in X:
                if k < 4: A.ds_wait(f"r{f}_0" + "abcd"[k])
            elif not k & 1: A.ds_wait(f"r{f}_0" + "abcd"[k >> 1])
            mm1(f, 0, k >> 1, k & 1)
            if k < 4: A.lds(*r1[4 + k])
        if f == LL: late_loads()
        A.ds_all()
    if BLAG:
        for k in range(16): mm1(25, k & 1, k >> 2, (k >> 1) & 1)
    else:
        for k in range(8): mm1(25, 1, k >> 1, k & 1)
    w2_unpack()
    stamp()
    S = 164
    TT = 64
    for hf in range(2):
        ls = []
        for p in range(8):
            rt = 2*hf + (p >> 2); pp = p & 3
            x = ACC + rt*8 + 2*pp; t = TT + 2*p
            with Cap() as c:
                e(f"v_pk_mul_f32 {vr(t,2)}, {vr(x,2)}, {vr(x,2)}")
                e(f"v_pk_fma_f32 {vr(t,2)}, {vr(t,2)}, {vr(C0+2,2)}, {vr(C0,2)}")
                e(f"v_pk_mul_f32 {vr(t,2)}, {vr(t,2)}, {vr(x,2)}")
                e(f"v_exp_f32 v{t}, v{t}")
                e(f"v_exp_f32 v{t+1}, v{t+1}")
                e(f"v_pk_mul_f32 {vr(x,2)}, {vr(x,2)}, {vr(W2 + 2*pp,2)}")
                e(f"v_pk_add_f32 {vr(t,2)}, {vr(t,2)}, 1.0 op_sel_hi:[1,0]")
                e(f"v_rcp_f32 v{t}, v{t}")
                e(f"v_rcp_f32 v{t+1}, v{t+1}")
                if pp == 0: e(f"v_pk_mul_f32 {vr(S + 2*rt,2)}, {vr(x,2)}, {vr(t,2)}")
                else: e(f"v_pk_fma_f32 {vr(S + 2*rt,2)}, {vr(x,2)}, {vr(t,2)}, {vr(S + 2*rt,2)}")
            ls.append(c.l)
        zipl(ls)
    for rt in range(4): e(f"v_add_f32 v{S + 2*rt}, v{S + 2*rt}, v{S + 2*rt + 1}")
    e(f"v_lshlrev_b32 v1, 2, v0")
    e(f"v_add_u32 v1, {B_RED}, v1")
    e(f"v_permlane32_swap_b32 v{S}, v{S+4}")
    e(f"v_permlane32_swap_b32 v{S+2}, v{S+6}")
    e(f"v_add_f32 v{S}, v{S}, v{S+4}")
    e(f"v_add_f32 v{S+2}, v{S+2}, v{S+6}")
    e(f"v_permlane16_swap_b32 v{S}, v{S+2}")
    e(f"v_add_f32 v{S}, v{S}, v{S+2}")
    e(f"ds_write_b32 v1, v{S}")
    e("s_waitcnt lgkmcnt(0)")
    e("s_barrier")
    stamp()
    e(f"s_cmp_lg_u32 s{sW}, 0")
    e("s_cbranch_scc1 L_end")
    for k in range(1, 4): e(f"ds_read_b32 v{16+k}, v1 offset:{256*k}")
    e(f"s_lshl_b32 s{sT1}, s{sRG}, 2")
    e(f"s_lshl_b32 s{sT2}, s{sHF}, 4")
    e(f"s_lshl_b32 s{sT2}, 2, s{sT2}")
    e(f"v_mov_b32 v6, s{sT2}")
    e("s_waitcnt vmcnt(0) lgkmcnt(0)")
    e(f"v_add_u32 v{vBt}, 1, v{vBt}")
    e(f"v_add_u32 v{vBt2}, 1, v{vBt2}")
    e(f"v_add_f32 v{S}, v{S}, v17")
    e(f"v_add_f32 v18, v18, v19")
    e(f"v_add_f32 v{vBt-1}, v{S}, v18")
    e(f"buffer_store_dwordx2 {vr(vBt-1,2)}, v{vHo}, {srd(S_WS)}, s{sT3} offen")
    e(f"v_mov_b32 v{vBt2-1}, v{vBt-1}")
    e(f"buffer_store_dwordx2 {vr(vBt2-1,2)}, v{vHo}, {srd(S_WS)}, s{sMB} offen sc1")
    e(f"v_readfirstlane_b32 s{sT0}, v{vHo+1}")
    e(f"s_and_b32 s{sT0}, s{sT0}, 0x01000100")
    e(f"s_cmp_eq_u32 s{sT0}, 0x01000100")
    e("s_cbranch_scc1 L_end")
    e("s_waitcnt vmcnt(0)")
    e("s_mov_b64 exec, 1")
    e(f"buffer_atomic_or v6, off, {srd(S_DBG)}, s{sT1} sc1")
    if STAMPS: e("s_mov_b64 exec, -1")

def fin():
    lab("L_end")
    if STAMPS:
        e("s_waitcnt vmcnt(0)")
        e("s_memtime s[100:101]")
        e("s_memrealtime s[72:73]")
        e("s_waitcnt lgkmcnt(0)")
        e(f"v_writelane_b32 v{VST[0]}, s4, 0")
        e(f"v_writelane_b32 v{VST[0]}, s70, 32")
        e(f"v_writelane_b32 v{VST[0]}, s100, 25")
        e(f"v_writelane_b32 v{VST[0]}, s72, 57")
        e(f"s_lshl3_add_u32 s{sT0}, s2, s{sW}")
        e(f"s_lshl_b32 s{sT0}, s{sT0}, 8")
        e(f"s_add_u32 s{sT0}, s{sT0}, 0x400000")
        e("v_and_b32 v0, 63, v0")
        e("v_lshlrev_b32 v0, 2, v0")
        e(f"buffer_store_dword v{VST[0]}, v0, {srd(S_WS)}, s{sT0} offen")
    lab("L_exit")
    e("s_endpgm")
    lab("L_codeend")

def main():
    A.raw("; Kernarg: in0 idx, in1 table, in2 se_w1, in3 se_w2, in4 w_bi, in5 w_cross, in6 w_deep1, in7 w_deep2, out, debug, ws")
    A.raw(f"; @launch grid=(256,1,1) block=(512,1,1) lds={LDS_TOTAL}")
    for t in ['.amdgcn_target "amdgcn-amd-amdhsa--gfx950"', ".text", f".globl {KN}", ".p2align 12", f".type {KN},@function", f"{KN}:"]: A.raw(t)
    entry()
    role_a()
    role_b()
    fin()
    for t in ['.section .rodata,"a"', ".p2align 6", f".amdhsa_kernel {KN}", "  .amdhsa_next_free_vgpr 256", "  .amdhsa_next_free_sgpr 102",
              "  .amdhsa_accum_offset 256", "  .amdhsa_group_segment_fixed_size 0", "  .amdhsa_kernarg_size 88", "  .amdhsa_user_sgpr_count 2",
              "  .amdhsa_user_sgpr_kernarg_segment_ptr 1", "  .amdhsa_system_sgpr_workgroup_id_x 1", ".end_amdhsa_kernel"]: A.raw(t)
    if "nodot" in X:
        import re
        A.L = [re.sub(r"v_dot2c?_f32_bf16 (v\d+), (v\d+), (v\d+).*", r"v_cvt_pk_bf16_f32 \1, \2, \3", x) for x in A.L]
    for fl in ("sc1", "sc0", "nt"):
        if "bw" + fl in X: A.L = [x.replace(" offen lds", f" offen {fl} lds") if f"v{vW}, {srd(S_W1)}" in x else x for x in A.L]
        if "bg" + fl in X: A.L = [x.replace(" offen lds", f" offen {fl} lds") if (f"v12, {srd(S_TAB)}" in x or f"v13, {srd(S_TAB)}" in x) else x for x in A.L]
    out = autonop([x for x in A.L if x is not None])
    open(sys.argv[1], "w").write("\n".join(out) + "\n")
main()
```
